```python
import torch

def _softmax(x, axis=-1):
    return torch.softmax(x, dim=axis)
def _gelu(x):
    return torch.nn.functional.gelu(x, approximate="tanh")
def _silu(x):
    return torch.nn.functional.silu(x)
def _sigmoid(x):
    return torch.sigmoid(x)
def _layernorm(x, axis=-1, eps=1e-5):
    m = x.mean(dim=axis, keepdim=True)
    v = x.var(dim=axis, keepdim=True, unbiased=False)
    return (x - m) / torch.sqrt(v + eps)
def _scatter_add(tgt, idx, src, axis=0):
    return tgt.clone().index_add_(axis, idx, src)
def _segment_sum(src, seg, n):
    out = torch.zeros((n,) + src.shape[1:], dtype=src.dtype)
    return out.index_add_(0, seg, src)
def _pad(x, pw):
    flat = tuple(v for pair in reversed(pw) for v in pair)
    return torch.nn.functional.pad(x, flat)

kernel_name = 'standalone__glu_gated_swiglu__prompt'

def setup_inputs():

    _w = (lambda a: (lambda t: t.to(torch.bfloat16) if t.is_floating_point() else t)(torch.as_tensor(a)))
    B, S, D, F = 1, 2048, 640, 1536
    return {
        "x": _w((lambda *s: torch.randn(*s, dtype=torch.bfloat16) * 0.05)(B, S, D)),
        "w1": _w((lambda *s: torch.randn(*s, dtype=torch.bfloat16) * 0.05)(D, F) * (2.0 / D) ** 0.5),
        "w3": _w((lambda *s: torch.randn(*s, dtype=torch.bfloat16) * 0.05)(D, F) * (2.0 / D) ** 0.5),
        "w2": _w((lambda *s: torch.randn(*s, dtype=torch.bfloat16) * 0.05)(F, D) * (2.0 / F) ** 0.5),
    }

def reference(x, w1, w3, w2):
    gate = torch.einsum("bsd,df->bsf", x, w1)
    up = torch.einsum("bsd,df->bsf", x, w3)
    h = _silu(gate) * up
    out = torch.einsum("bsf,fd->bsd", h, w2)
    return out
```

```python
import sys

NAME = "standalone__glu_gated_swiglu__prompt"

X_BYTES = 2048 * 640 * 2
W_BYTES = 640 * 1536 * 2
OUT_BYTES = 2048 * 640 * 2
H_BYTES = 128 * 49152
W2P_OFF = 8 << 20
W2P_BYTES = 40 * 49152
STAMP_OFF = 16 << 20

NU = 13
XS = NU * 2048
STAGE = XS + 16384
NSTAGE = 3

HEADER = """; Kernarg layout for this problem (56 bytes, ptrs only, base s[0:1]):
"""


class Em:
    def __init__(self):
        self.L = []
        self.lds = []
        self.lds_done = 0
        self.vm = []
        self.vm_done = 0
        self.vnext = 1
        self.snext = 4

    def __call__(self, s):
        for line in s.split("\n"):
            line = line.strip()
            if line:
                self.L.append(line if line.endswith(":") else "    " + line)

    def v(self, n=1, align=1):
        b = (self.vnext + align - 1) // align * align
        self.vnext = b + n
        assert self.vnext <= 256, "out of arch VGPRs"
        return b

    def s(self, n=1, align=1):
        b = (self.snext + align - 1) // align * align
        self.snext = b + n
        assert self.snext <= 102, "out of SGPRs"
        return b

    def ldsop(self, txt, tag=None):
        self(txt)
        self.lds.append(tag)

    def vmop(self, txt, tag=None):
        self(txt)
        self.vm.append(tag)

    def _need(self, ops, tags):
        idx = -1
        for t in tags:
            c = [i for i, x in enumerate(ops) if x == t]
            assert c, f"tag {t} never issued"
            idx = max(idx, c[-1])
        return idx + 1

    def wait(self, lds=(), vm=(), lds_all=False, vm_all=False):
        parts = []
        n = len(self.vm) if vm_all else (self._need(self.vm, vm) if vm else 0)
        if n > self.vm_done:
            cnt = len(self.vm) - n
            assert cnt <= 63
            parts.append(f"vmcnt({cnt})")
            self.vm_done = n
        n = len(self.lds) if lds_all else (self._need(self.lds, lds) if lds else 0)
        if n > self.lds_done:
            cnt = min(len(self.lds) - n, 15)
            parts.append(f"lgkmcnt({cnt})")
            self.lds_done = len(self.lds) - cnt
        if parts:
            self("s_waitcnt " + " ".join(parts))

    def reset_counts(self):
        self.lds, self.vm, self.lds_done, self.vm_done = [], [], 0, 0


def vr(b, n):
    return f"v[{b}:{b+n-1}]" if n > 1 else f"v{b}"


def ar(b, n):
    return f"a[{b}:{b+n-1}]"


def sr(b, n):
    return f"s[{b}:{b+n-1}]" if n > 1 else f"s{b}"


DEF = dict(fused=True, D=8, E=3, stamps=False, rot=0, map2="8x4", hflags="sc1", ldflags="sc1",
           w2_start="early", codepf=True, outflags="", dma_pos=None)


class Gen:
    def __init__(self, **kw):
        self.c = dict(DEF)
        self.c.update(kw)
        self.e = Em()
        self.nstamp = 0

    def stamp(self, drained=False):
        e = self.e
        if not self.c["stamps"]:
            return
        i = self.nstamp
        self.nstamp += 1
        assert i < 24
        e(f"s_memtime {sr(self.sT, 2)}")
        e("s_waitcnt lgkmcnt(0)")
        e.lds_done = len(e.lds)
        e(f"s_mov_b32 s{self.sStamp + i}, s{self.sT}")

    def write_stamps(self, label):
        e = self.e
        if not self.c["stamps"]:
            return
        e(f"s_memrealtime {sr(self.sT, 2)}\ns_waitcnt lgkmcnt(0)")
        e(f"s_mov_b32 s{self.sStamp + 25}, s{self.sT}")
        e(f"s_lshl_b32 s{self.sT}, s2, 2\ns_add_u32 s{self.sT}, s{self.sT}, s{self.sWave}\ns_lshl_b32 s{self.sT}, s{self.sT}, 7")
        e(f"s_add_u32 s{self.sT}, s{self.sT}, {STAMP_OFF + self.stamp_base}")
        e(f"v_mov_b32 v{self.vT}, s{self.sT}")
        e(f"s_mov_b32 s{self.srdH+2}, 0x10000000")
        e(f"s_mov_b64 exec, 1")
        for i in range(26):
            e(f"v_mov_b32 v{self.vT+1}, s{self.sStamp + i}")
            e(f"buffer_store_dword v{self.vT+1}, v{self.vT}, {sr(self.srdH, 4)}, 0 offen offset:{4*i}")
        e("s_waitcnt vmcnt(0)")

    def srd_adj(self, dst, addoff):
        e = self.e
        if addoff > 0:
            e(f"s_add_u32 s{dst}, s{dst}, {addoff}\ns_addc_u32 s{dst+1}, s{dst+1}, 0")
        else:
            e(f"s_sub_u32 s{dst}, s{dst}, {-addoff}\ns_subb_u32 s{dst+1}, s{dst+1}, 0")

    def srd_consts(self):
        for dst, nbytes in ((self.srdX, X_BYTES), (self.srdW1, W_BYTES), (self.srdW3, W_BYTES + 2048), (self.srdW2, W_BYTES),
                            (self.srdOut, OUT_BYTES), (self.srdD, 256), (self.srdH, H_BYTES), (self.srdP, W2P_BYTES)):
            self.e(f"s_mov_b32 s{dst+2}, {nbytes}\ns_mov_b32 s{dst+3}, 0x20000")

    def prologue(self, name, stamp_base):
        e = self.e
        e.vnext, e.snext = 1, 4
        e.reset_counts()
        self.nstamp = 0
        self.stamp_base = stamp_base
        e(f".globl {name}\n.p2align 8\n.type {name},@function\n{name}:")
        self.srdX, self.srdW1, self.srdW3, self.srdW2 = (e.s(4, 4) for _ in range(4))
        self.srdOut, self.srdH, self.srdP, self.srdD = (e.s(4, 4) for _ in range(4))
        self.sT = e.s(2, 2)
        self.sT2 = e.s(2, 2)
        self.sWave, self.sXcd, self.sSlot = e.s(), e.s(), e.s()
        self.sA, self.sB, self.sC, self.sDd = e.s(), e.s(), e.s(), e.s()
        if self.c["stamps"]:
            self.sStamp = e.s(26)
        self.vLane = e.v()
        self.vT = e.v(8, 4)
        e(f"s_cmp_ge_u32 s2, 256\ns_cbranch_scc1 L_end_{name}")
        if self.c["codepf"]:
            e(f"s_getpc_b64 {sr(self.sT, 2)}")
        for srd, off in ((self.srdX, 0), (self.srdW1, 8), (self.srdW3, 16), (self.srdW2, 24), (self.srdOut, 32),
                         (self.srdD, 40), (self.srdH, 48), (self.srdP, 48)):
            e(f"s_load_dwordx2 {sr(srd, 2)}, s[0:1], {off}")
        if self.c["stamps"]:
            for i in range(26):
                e(f"s_mov_b32 s{self.sStamp+i}, 0")
            e(f"s_memrealtime {sr(self.sT2, 2)}")
        e(f"v_lshrrev_b32 v{self.vT}, 6, v0")
        e(f"v_and_b32 v{self.vLane}, 63, v0")
        e(f"v_readfirstlane_b32 s{self.sWave}, v{self.vT}")
        e(f"s_and_b32 s{self.sXcd}, s2, 7\ns_lshr_b32 s{self.sSlot}, s2, 3")
        self.srd_consts()
        if self.c["codepf"]:
            t = self.vT + 1
            junk = e.v()
            e(f"v_lshlrev_b32 v{t}, 7, v0")
            e(f"s_and_b32 s{self.sT}, s{self.sT}, 0xffffff00")
            e(f"v_min_u32 v{t}, L_codeend_{name} - {name} - 4, v{t}")
            e.vmop(f"global_load_dword v{junk}, v{t}, {sr(self.sT, 2)}", "codepf")

    def build_srds(self):
        e = self.e
        e("s_waitcnt lgkmcnt(0)")
        if self.c["stamps"]:
            e(f"s_mov_b32 s{self.sStamp + 24}, s{self.sT2}")
        self.srd_adj(self.srdW3, -2048)
        self.srd_adj(self.srdP, W2P_OFF)

    def tr_lane_addr(self, dst, qstride_hi, qstride_lo):
        e = self.e
        t, L = self.vT, self.vLane
        e(f"v_bfe_u32 v{t}, v{L}, 5, 1\nv_mul_u32_u24 v{dst}, {qstride_hi}, v{t}")
        e(f"v_bfe_u32 v{t}, v{L}, 4, 1\nv_mul_u32_u24 v{t+1}, {qstride_lo}, v{t}\nv_add_u32 v{dst}, v{dst}, v{t+1}")
        e(f"v_lshlrev_b32 v{t+1}, 2, v{t}")
        e(f"v_bfe_u32 v{t}, v{L}, 3, 1\nv_lshl_add_u32 v{t+1}, v{t}, 1, v{t+1}")
        e(f"v_bfe_u32 v{t}, v{L}, 1, 1\ns_lshl_b32 s{self.sT}, s{self.sWave}, 1\nv_add_u32 v{t}, s{self.sT}, v{t}")
        e(f"v_xor_b32 v{t}, v{t}, v{t+1}\nv_lshl_add_u32 v{dst}, v{t}, 4, v{dst}")
        e(f"v_bfe_u32 v{t}, v{L}, 2, 2\nv_lshl_add_u32 v{dst}, v{t}, 7, v{dst}")
        e(f"v_and_b32 v{t}, 1, v{L}\nv_lshl_add_u32 v{dst}, v{t}, 3, v{dst}")

    def set_flag(self, sidx):
        e = self.e
        t = self.vT
        e(f"v_mov_b32 v{t}, s{sidx}\nv_mov_b32 v{t+1}, 1")
        e("s_mov_b64 exec, 1")
        e.vmop(f"buffer_store_byte v{t+1}, v{t}, {sr(self.srdD, 4)}, 0 offen sc0 sc1", "flag")
        e("s_mov_b64 exec, -1")

    def repack(self, name):
        e = self.e
        t, L = self.vT, self.vLane
        save = (e.vnext, list(e.vm), e.vm_done, list(e.lds), e.lds_done)
        e(f"L_repack_{name}:")
        sR = self.sA
        e(f"s_lshl_b32 s{sR}, s{self.sXcd}, 1\ns_add_u32 s{sR}, s{sR}, s{self.sSlot}\ns_sub_u32 s{sR}, s{sR}, 30")
        vD, vR, vS = e.v(), e.v(), e.v()
        F = e.v(40, 4)
        e(f"s_mul_i32 s{self.sB}, s{sR}, 96\ns_lshl_b32 s{self.sT}, s{self.sWave}, 3\ns_add_u32 s{self.sB}, s{self.sB}, s{self.sT}")
        e(f"v_lshrrev_b32 v{t}, 3, v{L}\nv_add_u32 v{t}, s{self.sB}, v{t}\nv_mul_u32_u24 v{vD}, 1280, v{t}")
        e(f"s_and_b32 s{self.sT}, s{self.sWave}, 1\ns_lshl_b32 s{self.sT}, s{self.sT}, 2")
        e(f"v_bfe_u32 v{t}, v{L}, 4, 1\nv_lshlrev_b32 v{t}, 1, v{t}\nv_add_u32 v{t}, s{self.sT}, v{t}")
        e(f"v_and_b32 v{t+1}, 7, v{L}\nv_xor_b32 v{t}, v{t}, v{t+1}\nv_lshl_add_u32 v{vD}, v{t}, 4, v{vD}")
        self.build_srds()
        e(f"s_lshl_b32 s{self.sC}, s{self.sWave}, 10")
        for kk in range(3):
            for cb in range(10):
                e(f"s_add_u32 m0, s{self.sC}, {cb*12288 + kk*4096}")
                e(f"s_mov_b32 s{self.sDd}, {kk*32*1280 + cb*128}")
                e.vmop(f"buffer_load_dwordx4 v{vD}, {sr(self.srdW2, 4)}, s{self.sDd} offen lds", ("rp", kk))
        self.tr_lane_addr(vR, 2048, 1024)
        e(f"s_mul_i32 s{self.sB}, s{self.sWave}, 49152\ns_mul_i32 s{self.sT}, s{sR}, 3072\ns_add_u32 s{self.sB}, s{self.sB}, s{self.sT}")
        e(f"v_lshlrev_b32 v{vS}, 4, v{L}\nv_add_u32 v{vS}, s{self.sB}, v{vS}")
        vR2 = e.v()
        e(f"v_add_u32 v{vR2}, {5*12288}, v{vR}")
        for kk in range(3):
            e.wait(vm=[("rp", kk)])
            e("s_barrier")
            self.stamp()
            if kk > 0:
                e.wait(vm=[("rst", kk - 1, 9)])
            for cb in range(10):
                base, off = (vR, cb * 12288) if cb < 5 else (vR2, (cb - 5) * 12288)
                for h in range(2):
                    e.ldsop(f"ds_read_b64_tr_b16 {vr(F + 4*cb + 2*h, 2)}, v{base} offset:{off + kk*4096 + h*512}", ("rr", kk, cb))
                if cb == 4:
                    e.wait(lds=[("rr", kk, 1)])
            for cb in range(10):
                e.wait(lds=[("rr", kk, cb)])
                e(f"s_mov_b32 s{self.sDd}, {cb*4*49152 + kk*1024}")
                e.vmop(f"buffer_store_dwordx4 {vr(F + 4*cb, 4)}, v{vS}, {sr(self.srdP, 4)}, s{self.sDd} offen {self.c['hflags']}", ("rst", kk, cb))
        e.wait(vm_all=True)
        self.stamp()
        if self.c["fused"]:
            e("s_barrier")
            e(f"s_add_u32 s{self.sB}, s{sR}, 240")
            e(f"s_cmp_lg_u32 s{self.sWave}, 0\ns_cbranch_scc1 L_rp_noflag_{name}")
            self.set_flag(self.sB)
            e(f"L_rp_noflag_{name}:")
        e.vnext, e.vm, e.vm_done, e.lds, e.lds_done = save

    def phase1_setup(self):
        e = self.e
        c = self.c
        t, L = self.vT, self.vLane
        self.sRb, self.sCh = e.s(), e.s()
        self.sSig, self.sSoX, self.sSoW = e.s(), e.s(), e.s()
        self.sMx, self.sMw = e.s(), e.s()
        e(f"s_mul_i32 s{self.sA}, s{self.sSlot}, 43\ns_lshr_b32 s{self.sA}, s{self.sA}, 8")
        e(f"s_mul_i32 s{self.sB}, s{self.sA}, 6\ns_sub_u32 s{self.sB}, s{self.sSlot}, s{self.sB}")
        e(f"s_and_b32 s{self.sC}, s{self.sXcd}, 1\ns_mul_i32 s{self.sC}, s{self.sC}, 5\ns_add_u32 s{self.sRb}, s{self.sC}, s{self.sA}")
        e(f"s_lshr_b32 s{self.sC}, s{self.sXcd}, 1\ns_mul_i32 s{self.sC}, s{self.sC}, 6\ns_add_u32 s{self.sCh}, s{self.sC}, s{self.sB}")
        rot = c["rot"]
        if rot == 0:
            e(f"s_mov_b32 s{self.sSig}, 0")
        else:
            e(f"s_add_u32 s{self.sSig}, s{self.sA}, s{self.sB}")
            if rot == 2:
                e(f"s_and_b32 s{self.sSig}, s{self.sSig}, 1\ns_mul_i32 s{self.sSig}, s{self.sSig}, 5")
            elif rot == 5:
                e(f"s_cmp_ge_u32 s{self.sSig}, 5\ns_cselect_b32 s{self.sC}, 5, 0\ns_sub_u32 s{self.sSig}, s{self.sSig}, s{self.sC}\ns_lshl_b32 s{self.sSig}, s{self.sSig}, 1")
            elif rot == 10:
                pass
            else:
                raise ValueError
        self.vXo = e.v(7)
        self.vWo = e.v(2)
        e(f"s_mul_i32 s{self.sA}, s{self.sWave}, 52")
        e(f"v_lshrrev_b32 v{t}, 3, v{L}\nv_add_u32 v{t}, s{self.sA}, v{t}")
        e(f"v_bfe_u32 v{t+1}, v{t}, 1, 3\nv_and_b32 v{t+2}, 7, v{L}\nv_xor_b32 v{t+1}, v{t+1}, v{t+2}")
        e(f"s_mul_i32 s{self.sB}, s{self.sRb}, 208\nv_add_u32 v{t}, s{self.sB}, v{t}\nv_mul_u32_u24 v{t}, 1280, v{t}")
        e(f"v_lshl_add_u32 v{self.vXo}, v{t+1}, 4, v{t}")
        e(f"v_xor_b32 v{t+1}, 64, v{self.vXo}")
        for i in range(1, 7):
            src = self.vXo if i % 2 == 0 else t + 1
            e(f"v_add_u32 v{self.vXo+i}, {i*10240 - (i & 3)*1024}, v{src}")
        e(f"s_lshl_b32 s{self.sA}, s{self.sWave}, 4\nv_lshrrev_b32 v{t}, 3, v{L}\nv_add_u32 v{t}, s{self.sA}, v{t}")
        e(f"v_mul_u32_u24 v{t}, 3072, v{t}")
        e(f"v_bfe_u32 v{t+1}, v{L}, 4, 1\nv_lshlrev_b32 v{t+1}, 1, v{t+1}\nv_xor_b32 v{t+1}, v{t+1}, v{t+2}")
        e(f"v_lshl_add_u32 v{t}, v{t+1}, 4, v{t}\ns_lshl_b32 s{self.sA}, s{self.sCh}, 7\nv_add_u32 v{self.vWo}, s{self.sA}, v{t}")
        e(f"v_xor_b32 v{t}, 64, v{self.vWo}\nv_add_u32 v{self.vWo+1}, {8*3072 - 1024}, v{t}")
        e(f"s_mul_i32 s{self.sMx}, s{self.sWave}, 6656")
        e(f"s_lshl_b32 s{self.sMw}, s{self.sWave}, 12\ns_add_u32 s{self.sMw}, s{self.sMw}, {XS}")

    def slab_offsets(self):
        e = self.e
        e(f"s_lshl_b32 s{self.sSoX}, s{self.sSig}, 7\ns_mul_i32 s{self.sSoW}, s{self.sSig}, 196608")
        e(f"s_add_u32 s{self.sSig}, s{self.sSig}, 1\ns_cmp_eq_u32 s{self.sSig}, 10\ns_cselect_b32 s{self.sSig}, 0, s{self.sSig}")

    def dma_list(self, s):
        e = self.e
        sb = (s % NSTAGE) * STAGE
        out = []

        def xp(i):
            def f():
                if i == 0:
                    self.slab_offsets()
                if i % 4 == 0:
                    e(f"s_add_u32 m0, s{self.sMx}, {sb + (i >> 2)*4096}")
                if i == 6:
                    e("s_mov_b32 exec_hi, 0")
                elif i % 4 == 0:
                    e("s_nop 0")
                e.vmop(f"buffer_load_dwordx4 v{self.vXo+i}, {sr(self.srdX, 4)}, s{self.sSoX} offen offset:{(i & 3)*1024} lds", ("d", s))
                if i == 6:
                    e("s_mov_b32 exec_hi, -1")
            return f

        def wp(m, j):
            def f():
                if m == 0 and j == 0:
                    e(f"s_add_u32 m0, s{self.sMw}, {sb}\ns_nop 0")
                srd = self.srdW1 if m == 0 else self.srdW3
                e.vmop(f"buffer_load_dwordx4 v{self.vWo+j}, {sr(srd, 4)}, s{self.sSoW} offen offset:{m*2048 + j*1024} lds", ("d", s))
            return f
        for i in range(7):
            out.append(xp(i))
        for m in range(2):
            for j in range(2):
                out.append(wp(m, j))
        return out

    def phase1_main(self, late_vm):
        e = self.e
        c = self.c
        D, E = c["D"], c["E"]
        R = D + 2
        t, L = self.vT, self.vLane
        for s in range(3):
            for f in self.dma_list(s):
                f()
        self.acc = e.v(NU * 8, 4)
        self.xr = e.v(R * 4, 4)
        self.wf = e.v(16, 4)
        vXa = e.v(6)
        vWa = e.v(3)
        e(f"v_and_b32 v{t}, 15, v{L}\nv_bfe_u32 v{t+1}, v{L}, 1, 3\nv_lshrrev_b32 v{t+2}, 4, v{L}\nv_xor_b32 v{t+1}, v{t+1}, v{t+2}")
        e(f"v_lshlrev_b32 v{t}, 7, v{t}\nv_lshl_add_u32 v{vXa}, v{t+1}, 4, v{t}\nv_xor_b32 v{vXa+1}, 64, v{vXa}")
        for st in (1, 2):
            e(f"v_add_u32 v{vXa+2*st}, {st*STAGE}, v{vXa}\nv_add_u32 v{vXa+2*st+1}, {st*STAGE}, v{vXa+1}")
        self.tr_lane_addr(vWa, 4096, 1024)
        e(f"v_add_u32 v{vWa}, {XS}, v{vWa}")
        e(f"v_add_u32 v{vWa+1}, {STAGE}, v{vWa}\nv_add_u32 v{vWa+2}, {2*STAGE}, v{vWa}")
        if "setup" in late_vm:
            late_vm["setup"]()

        def xread(P):
            s, p = divmod(P, 26)
            ks, u = divmod(p, NU)
            e.ldsop(f"ds_read_b128 {vr(self.xr + (P % R)*4, 4)}, v{vXa + 2*(s % NSTAGE) + ks} offset:{u*2048}", ("x", P))

        def wread(s, ks, m, h):
            e.ldsop(f"ds_read_b64_tr_b16 {vr(self.wf + ks*8 + m*4 + h*2, 2)}, v{vWa + s % NSTAGE} offset:{ks*8192 + m*2048 + h*512}", ("w", s, ks))

        self.stamp()
        e.wait(vm=[("d", 0)])
        e("s_barrier")
        self.stamp()
        for m in range(2):
            for h in range(2):
                wread(0, 0, m, h)
        for P in range(D):
            xread(P)
        pb = 26 - D + E
        pending = []
        dma_pos = c["dma_pos"]
        for s in range(10):
            post = []
            for p in range(26):
                P = 26 * s + p
                ks, u = divmod(p, NU)
                if p == pb and s < 9:
                    e.wait(vm=[("d", s + 1)], lds_all=True)
                    if ("pre_barrier", s) in late_vm:
                        late_vm[("pre_barrier", s)]()
                    e("s_barrier")
                    if c["stamps"]:
                        self.stamp()
                    assert not pending or s >= 7, (s, len(pending))
                    if s + 3 < 10:
                        pending += self.dma_list(s + 3)
                    if ("post_barrier", s) in late_vm:
                        pending += late_vm[("post_barrier", s)]()
                    post = [("w", m, h) for m in range(2) for h in range(2)] + [("x", 26 * (s + 1) + i) for i in range(D)]
                if p + D < 26:
                    xread(P + D)
                if 2 <= p <= 5:
                    wread(s, 1, (p - 2) >> 1, (p - 2) & 1)
                if post:
                    left = 26 - p
                    n = -(-len(post) // left)
                    for _ in range(n):
                        it = post.pop(0)
                        if it[0] == "w":
                            wread(s + 1, 0, it[1], it[2])
                        else:
                            xread(it[1])
                rel = (p - pb) % 26
                if pending and (rel % 2 == 1 if dma_pos is None else p in dma_pos):
                    pending.pop(0)()
                e.wait(lds=[("x", P), ("w", s, ks)])
                for m in range(2):
                    a = self.acc + u * 8 + m * 4
                    cin = "0" if (s == 0 and ks == 0) else vr(a, 4)
                    e(f"v_mfma_f32_16x16x32_bf16 {vr(a, 4)}, {vr(self.wf + ks*8 + m*4, 4)}, {vr(self.xr + (P % R)*4, 4)}, {cin}")
        self.stamp()
        return pending

    def phase1_epilogue(self, pending):
        e = self.e
        c = self.c
        t, L = self.vT, self.vLane
        vHs = e.v()
        tmp = e.v(16, 4)
        outb = e.v(8, 4)
        sK = e.s(2, 2)
        e(f"s_mov_b32 s{sK}, 0xbfb8aa3b\ns_mov_b32 s{sK+1}, 0xbfb8aa3b")
        e(f"v_bfe_u32 v{t}, v{L}, 4, 1\nv_mul_u32_u24 v{vHs}, 49152, v{t}")
        e(f"v_bfe_u32 v{t}, v{L}, 5, 1\nv_lshl_add_u32 v{vHs}, v{t}, 8, v{vHs}")
        e(f"v_and_b32 v{t}, 15, v{L}\nv_lshl_add_u32 v{vHs}, v{t}, 4, v{vHs}")
        e(f"s_mul_i32 s{self.sA}, s{self.sRb}, {NU*49152}\ns_lshl_b32 s{self.sB}, s{self.sCh}, 11\ns_add_u32 s{self.sA}, s{self.sA}, s{self.sB}")
        e(f"s_lshl_b32 s{self.sB}, s{self.sWave}, 9\ns_add_u32 s{self.sA}, s{self.sA}, s{self.sB}")
        e(f"v_add_u32 v{vHs}, s{self.sA}, v{vHs}")
        e("s_nop 4")

        def unit(u, dst):
            g = self.acc + u * 8
            up = g + 4
            T = tmp
            for i in (0, 2):
                e(f"v_pk_mul_f32 {vr(T+i, 2)}, {vr(g+i, 2)}, {sr(sK, 2)}")
            for i in range(4):
                e(f"v_exp_f32 v{T+i}, v{T+i}")
            for i in (0, 2):
                e(f"v_pk_mul_f32 {vr(T+4+i, 2)}, {vr(g+i, 2)}, {vr(up+i, 2)}")
            for i in (0, 2):
                e(f"v_pk_add_f32 {vr(T+i, 2)}, {vr(T+i, 2)}, 1.0 op_sel_hi:[1,0]")
            for i in range(4):
                e(f"v_rcp_f32 v{T+i}, v{T+i}")
            if pending:
                pending.pop(0)()
            else:
                e("s_nop 0")
            for i in (0, 2):
                e(f"v_pk_mul_f32 {vr(T+i, 2)}, {vr(T+i, 2)}, {vr(T+4+i, 2)}")
            e(f"v_cvt_pk_bf16_f32 v{dst}, v{T}, v{T+1}\nv_cvt_pk_bf16_f32 v{dst+1}, v{T+2}, v{T+3}")

        for pr in range(7):
            ob = outb + (pr & 1) * 4
            unit(2 * pr, ob)
            if 2 * pr + 1 < NU:
                unit(2 * pr + 1, ob + 2)
            e(f"s_mov_b32 s{self.sB}, {pr*2*49152}")
            e("s_nop 0")
            e(f"v_permlane16_swap_b32 v{ob}, v{ob+2}\nv_permlane16_swap_b32 v{ob+1}, v{ob+3}")
            if 2 * pr + 1 >= NU:
                e(f"s_mov_b32 exec_lo, 0xffff\ns_mov_b32 exec_hi, 0xffff")
            e.vmop(f"buffer_store_dwordx4 {vr(ob, 4)}, v{vHs}, {sr(self.srdH, 4)}, s{self.sB} offen {c['hflags']}", "hst")
            if 2 * pr + 1 >= NU:
                e("s_mov_b64 exec, -1")
            if pending:
                pending.pop(0)()
        self.stamp()

    def phase2_setup(self):
        e = self.e
        c = self.c
        t, L = self.vT, self.vLane
        self.sM2, self.sNb = e.s(), e.s()
        if c["map2"] == "8x4":
            e(f"s_and_b32 s{self.sM2}, s{self.sXcd}, 3\ns_lshl_b32 s{self.sM2}, s{self.sM2}, 3\ns_and_b32 s{self.sA}, s{self.sSlot}, 7\ns_add_u32 s{self.sM2}, s{self.sM2}, s{self.sA}")
            e(f"s_lshr_b32 s{self.sNb}, s{self.sXcd}, 2\ns_lshl_b32 s{self.sNb}, s{self.sNb}, 2\ns_lshr_b32 s{self.sA}, s{self.sSlot}, 3\ns_add_u32 s{self.sNb}, s{self.sNb}, s{self.sA}")
        else:
            e(f"s_lshl_b32 s{self.sM2}, s{self.sXcd}, 2\ns_and_b32 s{self.sA}, s{self.sSlot}, 3\ns_add_u32 s{self.sM2}, s{self.sM2}, s{self.sA}")
            e(f"s_lshr_b32 s{self.sNb}, s{self.sSlot}, 2")
        self.vP, self.vHl = e.v(), e.v()
        self.sSoP = e.s()
        e(f"s_mul_i32 s{self.sA}, s{self.sWave}, 12288\nv_lshlrev_b32 v{t}, 4, v{L}\nv_add_u32 v{self.vHl}, s{self.sA}, v{t}")
        e(f"s_mul_i32 s{self.sB}, s{self.sNb}, {5*49152}\nv_add_u32 v{self.vP}, s{self.sB}, v{self.vHl}")
        if c["fused"]:
            self.vMr, self.vMh, self.vPoll = e.v(), e.v(), e.v()
            self.vPo = e.v()
            e(f"v_lshlrev_b32 v{self.vPo}, 2, v{L}")
            e(f"s_add_u32 s{self.sA}, s{self.sWave}, 60")
            e(f"v_cmp_eq_u32 vcc, s{self.sA}, v{L}\nv_mov_b32 v{t}, 0x01010101\ns_nop 0\nv_cndmask_b32 v{self.vMr}, 0, v{t}, vcc")
            e(f"s_lshl_b32 s{self.sA}, s{self.sM2}, 2\ns_mul_i32 s{self.sB}, s{self.sA}, 79\ns_lshr_b32 s{self.sB}, s{self.sB}, 10")
            e(f"s_add_u32 s{self.sA}, s{self.sA}, 3\ns_mul_i32 s{self.sC}, s{self.sA}, 79\ns_lshr_b32 s{self.sC}, s{self.sC}, 10")
            e(f"s_mul_i32 s{self.sA}, s{self.sWave}, 6")
            e(f"s_mul_i32 s{self.sB}, s{self.sB}, 24\ns_add_u32 s{self.sB}, s{self.sB}, s{self.sA}")
            e(f"s_mul_i32 s{self.sC}, s{self.sC}, 24\ns_add_u32 s{self.sC}, s{self.sC}, s{self.sA}")
            e(f"v_mov_b32 v{self.vMh}, 0")
            for b in range(4):
                for sx in (self.sB, self.sC):
                    e(f"v_add_u32 v{t}, {b}, v{self.vPo}\nv_subrev_u32 v{t}, s{sx}, v{t}")
                    e(f"v_cmp_gt_u32 vcc, 6, v{t}\nv_mov_b32 v{t+1}, {1 << (8*b)}\ns_nop 0\nv_cndmask_b32 v{t+1}, 0, v{t+1}, vcc\nv_or_b32 v{self.vMh}, v{self.vMh}, v{t+1}")

    def poll_issue(self):
        self.e.vmop(f"buffer_load_dword v{self.vPoll}, v{self.vPo}, {sr(self.srdD, 4)}, 0 offen sc0 sc1", "poll")

    def poll_check(self, mask, label):
        e = self.e
        t = self.vT
        e(f"s_branch {label}_chk")
        e(f"{label}_spin:")
        e(f"buffer_load_dword v{self.vPoll}, v{self.vPo}, {sr(self.srdD, 4)}, 0 offen sc0 sc1\ns_waitcnt vmcnt(0)")
        e(f"{label}_chk:")
        e(f"v_and_b32 v{t}, v{self.vPoll}, v{mask}\nv_cmp_ne_u32 vcc, v{t}, v{mask}\ns_cbranch_vccnz {label}_spin")

    def w2p_list(self):
        e = self.e
        out = []
        for tt in range(5):
            for ks in range(12):
                def f(tt=tt, ks=ks):
                    if ks % 4 == 0:
                        e(f"s_mov_b32 s{self.sSoP}, {tt*49152 + (ks >> 2)*4096}")
                    e.vmop(f"buffer_load_dwordx4 {ar((tt*12 + ks)*4, 4)}, v{self.vP}, {sr(self.srdP, 4)}, s{self.sSoP} offen offset:{(ks & 3)*1024} {self.c['ldflags']}", ("p", tt, ks))
                out.append(f)
        return out

    def phase2_main(self):
        e = self.e
        c = self.c
        t, L = self.vT, self.vLane
        HR = 16
        acc = e.v(80, 4)
        hr = e.v(HR * 4, 4)
        red = e.v(60, 4)
        sU = e.s(4)
        sSo = e.s()
        vRw = e.v(3)
        vRr, vO, vO2 = e.v(), e.v(), e.v()
        order = [1, 2, 3, 0]
        for v in range(4):
            e(f"s_add_u32 s{self.sA}, s{self.sWave}, {v}\ns_and_b32 s{self.sA}, s{self.sA}, 3")
            if v > 0:
                e(f"s_mul_i32 s{self.sB}, s{self.sA}, 15360\ns_add_u32 s{self.sB}, s{self.sB}, {(v-1)*5120}")
                e(f"v_lshlrev_b32 v{t}, 4, v{L}\nv_add_u32 v{vRw+v-1}, s{self.sB}, v{t}")
            else:
                e(f"s_mul_i32 s{self.sB}, s{self.sA}, 15360\nv_lshlrev_b32 v{t}, 4, v{L}\nv_add_u32 v{vRr}, s{self.sB}, v{t}")
            e(f"s_lshl_b32 s{self.sB}, s{self.sM2}, 2\ns_add_u32 s{self.sA}, s{self.sA}, s{self.sB}\ns_mul_i32 s{sU+v}, s{self.sA}, 49152")
        seq = [(v, ks) for v in order for ks in range(12)]

        def hload(i):
            v, ks = seq[i]
            if ks % 4 == 0:
                e(f"s_add_u32 s{sSo}, s{sU+v}, {(ks >> 2)*4096}")
            e.vmop(f"buffer_load_dwordx4 {vr(hr + (i % HR)*4, 4)}, v{self.vHl}, {sr(self.srdH, 4)}, s{sSo} offen offset:{(ks & 3)*1024} {c['ldflags']}", ("h", i))
        PF = HR - 2
        for i in range(PF):
            hload(i)
        e(f"s_lshl_b32 s{self.sA}, s{self.sM2}, 6\ns_lshl_b32 s{self.sB}, s{self.sWave}, 4\ns_add_u32 s{self.sA}, s{self.sA}, s{self.sB}")
        e(f"v_and_b32 v{t}, 15, v{L}\nv_add_u32 v{t}, s{self.sA}, v{t}\nv_mul_u32_u24 v{t}, 1280, v{t}")
        e(f"s_mul_i32 s{self.sA}, s{self.sNb}, 160\nv_add_u32 v{t}, s{self.sA}, v{t}")
        e(f"v_lshrrev_b32 v{t+1}, 4, v{L}\nv_lshl_add_u32 v{vO2}, v{t+1}, 3, v{t}")
        e(f"v_bfe_u32 v{t+1}, v{L}, 4, 1\nv_lshl_add_u32 v{t}, v{t+1}, 5, v{t}\nv_bfe_u32 v{t+1}, v{L}, 5, 1\nv_lshl_add_u32 v{vO}, v{t+1}, 4, v{t}")
        side = []
        for i, (v, ks) in enumerate(seq):
            if i + PF < 48:
                hload(i + PF)
            e.wait(vm=[("h", i)])
            if i == 0:
                self.stamp()
            for tt in range(5):
                a = acc + (v * 5 + tt) * 4
                cin = "0" if ks == 0 else vr(a, 4)
                e(f"v_mfma_f32_16x16x32_bf16 {vr(a, 4)}, {ar((tt*12 + ks)*4, 4)}, {vr(hr + (i % HR)*4, 4)}, {cin}")
                if side and i % 12 >= 2:
                    side.pop(0)()
            if ks == 11 and v != 0:
                for tt in range(5):
                    def wr(v=v, tt=tt):
                        e.ldsop(f"ds_write_b128 v{vRw+v-1}, {vr(acc + (v*5 + tt)*4, 4)} offset:{tt*1024}", ("rw", v))
                    side.append(wr)
                if v == 3:
                    def bar():
                        e.wait(lds_all=True)
                        e("s_barrier")
                    side += [lambda: None] * 5
                    side.append(bar)
                    for k in range(15):
                        def rd(k=k):
                            e.ldsop(f"ds_read_b128 {vr(red + k*4, 4)}, v{vRr} offset:{k*1024}", ("rr", k))
                        side.append(rd)
                    side += [lambda: None] * 5
                    for tt in range(5):
                        for i2 in (0, 2):
                            def ad(tt=tt, i2=i2):
                                e.wait(lds=[("rr", 10 + tt)])
                                r0 = red + tt * 4 + i2
                                e(f"v_pk_add_f32 {vr(r0, 2)}, {vr(r0, 2)}, {vr(r0 + 20, 2)}")
                                e(f"v_pk_add_f32 {vr(r0, 2)}, {vr(r0, 2)}, {vr(r0 + 40, 2)}")
                            side.append(ad)
        while side:
            side.pop(0)()
        self.stamp()
        e("s_nop 7")
        ob = hr
        for tt in range(5):
            for i2 in (0, 2):
                e(f"v_pk_add_f32 {vr(acc + tt*4 + i2, 2)}, {vr(acc + tt*4 + i2, 2)}, {vr(red + tt*4 + i2, 2)}")
            e(f"v_cvt_pk_bf16_f32 v{ob + tt*2}, v{acc + tt*4}, v{acc + tt*4 + 1}\nv_cvt_pk_bf16_f32 v{ob + tt*2 + 1}, v{acc + tt*4 + 2}, v{acc + tt*4 + 3}")
        e.vmop(f"buffer_store_dwordx2 {vr(ob + 8, 2)}, v{vO2}, {sr(self.srdOut, 4)}, 0 offen offset:128 {c['outflags']}")
        for pr in range(2):
            o = ob + pr * 4
            e(f"v_permlane16_swap_b32 v{o}, v{o+2}\nv_permlane16_swap_b32 v{o+1}, v{o+3}")
            e.vmop(f"buffer_store_dwordx4 {vr(o, 4)}, v{vO}, {sr(self.srdOut, 4)}, 0 offen offset:{pr*64} {c['outflags']}")
        if c["stamps"]:
            e.wait(vm_all=True)
            self.stamp()

    def kd(self, name, nv, acc_off):
        return f""".section .rodata,"a"
.p2align 6
.amdhsa_kernel {name}
  .amdhsa_next_free_vgpr {nv}
  .amdhsa_next_free_sgpr 102
  .amdhsa_accum_offset {acc_off}
  .amdhsa_group_segment_fixed_size 0
  .amdhsa_kernarg_size 56
  .amdhsa_user_sgpr_count 2
  .amdhsa_user_sgpr_kernarg_segment_ptr 1
  .amdhsa_system_sgpr_workgroup_id_x 1
  .amdhsa_float_denorm_mode_32 3
.end_amdhsa_kernel
"""

    def build(self):
        e = self.e
        c = self.c
        lds1 = NSTAGE * STAGE
        if c["fused"]:
            name = NAME + "_kernel"
            head = HEADER + f"; @launch grid=(256,1,1) block=(256,1,1) lds={lds1}\n"
            self.prologue(name, 0)
            self.phase2_setup()
            vmark, smark = e.vnext, e.snext
            e(f"s_cmp_ge_u32 s{self.sSlot}, 30\ns_cbranch_scc1 L_repack_{name}")
            self.phase1_setup()
            self.build_srds()
            late = {}
            w2l = self.w2p_list()
            if c["w2_start"] == "early":
                late[("post_barrier", 6)] = lambda: [self.poll_issue]
                def chk():
                    e.wait(vm=["poll"])
                    self.poll_check(self.vMr, "L_pr")
                late[("pre_barrier", 7)] = chk
                late[("post_barrier", 7)] = lambda: w2l
                pending = self.phase1_main(late)
            else:
                pending = self.phase1_main(late)
                self.poll_issue()
                e.wait(vm=["poll"])
                self.poll_check(self.vMr, "L_pr")
                pending = w2l
            self.phase1_epilogue(pending)
            for _ in range(min(c.get("post_store_loads", 8), len(pending))):
                pending.pop(0)()
            e.wait(vm=["hst"])
            self.stamp()
            e("s_barrier")
            e(f"s_mul_i32 s{self.sA}, s{self.sRb}, 24\ns_add_u32 s{self.sA}, s{self.sA}, s{self.sCh}")
            e(f"s_cmp_lg_u32 s{self.sWave}, 0\ns_cbranch_scc1 L_noflag")
            nvm = len(e.vm)
            self.set_flag(self.sA)
            e.vm = e.vm[:nvm]
            e("L_noflag:")
            while pending:
                pending.pop(0)()
            e("L_join:")
            ns = self.nstamp
            self.poll_issue()
            e("s_waitcnt vmcnt(0)")
            e.reset_counts()
            self.stamp()
            self.poll_check(self.vMh, "L_ph")
            self.stamp()
            e.vnext = vmark
            self.phase2_main()
            self.write_stamps(name)
            e(f"L_end_{name}:\ns_endpgm")
            e.vnext = vmark
            self.nstamp = 0
            e.reset_counts()
            self.repack(name)
            e.reset_counts()
            self.poll_issue()
            e("s_waitcnt vmcnt(0)")
            self.poll_check(self.vMr, "L_pr2")
            for f in self.w2p_list():
                f()
            e("s_branch L_join")
            e(f"L_codeend_{name}:")
            body = "\n".join(e.L)
            return head + '.amdgcn_target "amdgcn-amd-amdhsa--gfx950"\n.text\n' + body + "\n" + self.kd(name, 512, 256)
        else:
            n1, n2 = "ffn_up_kernel", NAME + "_kernel"
            head = HEADER + f"; @launch kernel={n1} grid=(256,1,1) block=(256,1,1) lds={lds1}\n"
            head += f"; @launch kernel={n2} grid=(256,1,1) block=(256,1,1) lds=61440\n"
            self.prologue(n1, 0)
            vmark = e.vnext
            e(f"s_cmp_ge_u32 s{self.sSlot}, 30\ns_cbranch_scc1 L_repack_{n1}")
            self.phase1_setup()
            self.build_srds()
            pending = self.phase1_main({})
            self.phase1_epilogue(pending)
            if c["stamps"]:
                e.wait(vm_all=True)
                self.stamp()
            e(f"L_fin_{n1}:")
            self.write_stamps(n1)
            e(f"L_end_{n1}:\ns_endpgm")
            e.vnext = vmark
            self.nstamp = 0
            e.reset_counts()
            self.repack(n1)
            e(f"s_branch L_fin_{n1}")
            e(f"L_codeend_{n1}:")
            self.prologue(n2, 1 << 20)
            self.phase2_setup()
            self.build_srds()
            self.stamp()
            for f in self.w2p_list():
                f()
            self.stamp()
            self.phase2_main()
            self.write_stamps(n2)
            e(f"L_end_{n2}:\ns_endpgm")
            e(f"L_codeend_{n2}:")
            body = "\n".join(e.L)
            return head + '.amdgcn_target "amdgcn-amd-amdhsa--gfx950"\n.text\n' + body + "\n" + self.kd(n1, 256, 256) + self.kd(n2, 512, 256)


def parse_kw(args):
    kw = {}
    for a in args:
        k, v = a.split("=", 1)
        try:
            v = eval(v)
        except Exception:
            pass
        kw[k] = v
    return kw


if __name__ == "__main__":
    out = sys.argv[1]
    open(out, "w").write(Gen(**parse_kw(sys.argv[2:])).build())
```

```python
import sys

NAME = "standalone__glu_gated_swiglu__prompt"

X_BYTES = 2048 * 640 * 2
W_BYTES = 640 * 1536 * 2
OUT_BYTES = 2048 * 640 * 2
H_BYTES = 128 * 49152
W2P_OFF = 8 << 20
W2P_BYTES = 40 * 49152
STAMP_OFF = 16 << 20

NU = 13
XS = NU * 2048
STAGE = XS + 16384
NSTAGE = 3

HEADER = """; Kernarg layout for this problem (56 bytes, ptrs only, base s[0:1]):
"""


class Em:
    def __init__(self):
        self.L = []
        self.lds = []
        self.lds_done = 0
        self.vm = []
        self.vm_done = 0
        self.vnext = 1
        self.snext = 4
        self.skip_x = False
        self.skip_d = False

    def __call__(self, s):
        for line in s.split("\n"):
            line = line.strip()
            if line:
                self.L.append(line if line.endswith(":") else "    " + line)

    def v(self, n=1, align=1):
        b = (self.vnext + align - 1) // align * align
        self.vnext = b + n
        assert self.vnext <= 256, "out of arch VGPRs"
        return b

    def s(self, n=1, align=1):
        b = (self.snext + align - 1) // align * align
        self.snext = b + n
        assert self.snext <= 102, "out of SGPRs"
        return b

    def ldsop(self, txt, tag=None):
        if not (self.skip_x and tag and tag[0] == "x" and tag[1] >= 26):
            self(txt)
        self.lds.append(tag)

    def vmop(self, txt, tag=None):
        if not (self.skip_d and isinstance(tag, tuple) and tag[0] == "d" and tag[1] >= 3):
            self(txt)
        self.vm.append(tag)

    def _need(self, ops, tags):
        idx = -1
        for t in tags:
            c = [i for i, x in enumerate(ops) if x == t]
            assert c, f"tag {t} never issued"
            idx = max(idx, c[-1])
        return idx + 1

    def wait(self, lds=(), vm=(), lds_all=False, vm_all=False):
        parts = []
        n = len(self.vm) if vm_all else (self._need(self.vm, vm) if vm else 0)
        if n > self.vm_done:
            cnt = len(self.vm) - n
            assert cnt <= 63
            parts.append(f"vmcnt({cnt})")
            self.vm_done = n
        n = len(self.lds) if lds_all else (self._need(self.lds, lds) if lds else 0)
        if n > self.lds_done:
            cnt = min(len(self.lds) - n, 15)
            parts.append(f"lgkmcnt({cnt})")
            self.lds_done = len(self.lds) - cnt
        if parts:
            self("s_waitcnt " + " ".join(parts))

    def reset_counts(self):
        self.lds, self.vm, self.lds_done, self.vm_done = [], [], 0, 0


def vr(b, n):
    return f"v[{b}:{b+n-1}]" if n > 1 else f"v{b}"


def ar(b, n):
    return f"a[{b}:{b+n-1}]"


def sr(b, n):
    return f"s[{b}:{b+n-1}]" if n > 1 else f"s{b}"


DEF = dict(fused=True, D=8, E=3, stamps=False, rot=0, map2="8x4", hflags="sc1", ldflags="sc1",
           w2_start="early", codepf=True, outflags="", dma_pos=None)


class Gen:
    def __init__(self, **kw):
        self.c = dict(DEF)
        self.c.update(kw)
        self.e = Em()
        self.e.skip_x = self.c.get("no_xread", False)
        self.e.skip_d = self.c.get("no_dma", False)
        self.nstamp = 0

    def stamp(self, drained=False):
        e = self.e
        if not self.c["stamps"]:
            return
        i = self.nstamp
        self.nstamp += 1
        assert i < 23
        e(f"s_memtime {sr(self.sT, 2)}")
        e("s_waitcnt lgkmcnt(0)")
        e.lds_done = len(e.lds)
        e(f"s_mov_b32 s{self.sStamp + i}, s{self.sT}")

    def write_stamps(self, label):
        e = self.e
        if not self.c["stamps"]:
            return
        e(f"s_memrealtime {sr(self.sT, 2)}\ns_memtime {sr(self.sT3, 2)}\ns_waitcnt lgkmcnt(0)")
        e(f"s_mov_b32 s{self.sStamp + 25}, s{self.sT}\ns_mov_b32 s{self.sStamp + 23}, s{self.sT3}")
        e(f"s_lshl_b32 s{self.sT}, s2, 2\ns_add_u32 s{self.sT}, s{self.sT}, s{self.sWave}\ns_lshl_b32 s{self.sT}, s{self.sT}, 7")
        e(f"s_add_u32 s{self.sT}, s{self.sT}, {STAMP_OFF + self.stamp_base}")
        e(f"v_mov_b32 v{self.vT}, s{self.sT}")
        e(f"s_mov_b32 s{self.srdH+2}, 0x10000000")
        e(f"s_mov_b64 exec, 1")
        for i in range(26):
            e(f"v_mov_b32 v{self.vT+1}, s{self.sStamp + i}")
            e(f"buffer_store_dword v{self.vT+1}, v{self.vT}, {sr(self.srdH, 4)}, 0 offen offset:{4*i}")
        e("s_waitcnt vmcnt(0)")

    def srd_adj(self, dst, addoff):
        e = self.e
        if addoff > 0:
            e(f"s_add_u32 s{dst}, s{dst}, {addoff}\ns_addc_u32 s{dst+1}, s{dst+1}, 0")
        else:
            e(f"s_sub_u32 s{dst}, s{dst}, {-addoff}\ns_subb_u32 s{dst+1}, s{dst+1}, 0")

    def srd_consts(self):
        for dst, nbytes in ((self.srdX, X_BYTES), (self.srdW1, W_BYTES), (self.srdW3, W_BYTES + 2048), (self.srdW2, W_BYTES),
                            (self.srdOut, OUT_BYTES), (self.srdD, 256), (self.srdH, H_BYTES), (self.srdP, W2P_BYTES)):
            self.e(f"s_mov_b32 s{dst+2}, {nbytes}\ns_mov_b32 s{dst+3}, 0x20000")

    def prologue(self, name, stamp_base):
        e = self.e
        e.vnext, e.snext = 1, 4
        e.reset_counts()
        self.nstamp = 0
        self.stamp_base = stamp_base
        e(f".globl {name}\n.p2align 8\n.type {name},@function\n{name}:")
        self.srdX, self.srdW1, self.srdW3, self.srdW2 = (e.s(4, 4) for _ in range(4))
        self.srdOut, self.srdH, self.srdP, self.srdD = (e.s(4, 4) for _ in range(4))
        self.sT = e.s(2, 2)
        self.sT2 = e.s(2, 2)
        self.sWave, self.sXcd, self.sSlot = e.s(), e.s(), e.s()
        self.sA, self.sB, self.sC, self.sDd = e.s(), e.s(), e.s(), e.s()
        if self.c["stamps"]:
            self.sStamp = e.s(26)
        self.vLane = e.v()
        self.vT = e.v(8, 4)
        e(f"s_cmp_ge_u32 s2, 256\ns_cbranch_scc1 L_end_{name}")
        if self.c["codepf"]:
            e(f"s_getpc_b64 {sr(self.sT, 2)}")
        for srd, off in ((self.srdX, 0), (self.srdW1, 8), (self.srdW3, 16), (self.srdW2, 24), (self.srdOut, 32),
                         (self.srdD, 40), (self.srdH, 48), (self.srdP, 48)):
            e(f"s_load_dwordx2 {sr(srd, 2)}, s[0:1], {off}")
        if self.c["stamps"]:
            for i in range(26):
                e(f"s_mov_b32 s{self.sStamp+i}, 0")
            e(f"s_memrealtime {sr(self.sT2, 2)}")
            self.sT3 = e.s(2, 2)
            e(f"s_memtime {sr(self.sT3, 2)}")
        e(f"v_lshrrev_b32 v{self.vT}, 6, v0")
        e(f"v_and_b32 v{self.vLane}, 63, v0")
        e(f"v_readfirstlane_b32 s{self.sWave}, v{self.vT}")
        e(f"s_and_b32 s{self.sXcd}, s2, 7\ns_lshr_b32 s{self.sSlot}, s2, 3")
        self.srd_consts()
        if self.c["codepf"]:
            t = self.vT + 1
            junk = e.v()
            e(f"v_lshlrev_b32 v{t}, 7, v0")
            e(f"s_and_b32 s{self.sT}, s{self.sT}, 0xffffff00")
            e(f"v_min_u32 v{t}, L_codeend_{name} - {name} - 4, v{t}")
            e.vmop(f"global_load_dword v{junk}, v{t}, {sr(self.sT, 2)}", "codepf")

    def build_srds(self):
        e = self.e
        e("s_waitcnt lgkmcnt(0)")
        if self.c["stamps"]:
            e(f"s_mov_b32 s{self.sStamp + 24}, s{self.sT2}")
            e(f"s_mov_b32 s{self.sStamp}, s{self.sT3}")
            self.nstamp = max(self.nstamp, 1)
            self.stamp()
        self.srd_adj(self.srdW3, -2048)
        self.srd_adj(self.srdP, W2P_OFF)

    def tr_lane_addr(self, dst, qstride_hi, qstride_lo):
        e = self.e
        t, L = self.vT, self.vLane
        e(f"v_bfe_u32 v{t}, v{L}, 5, 1\nv_mul_u32_u24 v{dst}, {qstride_hi}, v{t}")
        e(f"v_bfe_u32 v{t}, v{L}, 4, 1\nv_mul_u32_u24 v{t+1}, {qstride_lo}, v{t}\nv_add_u32 v{dst}, v{dst}, v{t+1}")
        e(f"v_lshlrev_b32 v{t+1}, 2, v{t}")
        e(f"v_bfe_u32 v{t}, v{L}, 3, 1\nv_lshl_add_u32 v{t+1}, v{t}, 1, v{t+1}")
        e(f"v_bfe_u32 v{t}, v{L}, 1, 1\ns_lshl_b32 s{self.sT}, s{self.sWave}, 1\nv_add_u32 v{t}, s{self.sT}, v{t}")
        e(f"v_xor_b32 v{t}, v{t}, v{t+1}\nv_lshl_add_u32 v{dst}, v{t}, 4, v{dst}")
        e(f"v_bfe_u32 v{t}, v{L}, 2, 2\nv_lshl_add_u32 v{dst}, v{t}, 7, v{dst}")
        e(f"v_and_b32 v{t}, 1, v{L}\nv_lshl_add_u32 v{dst}, v{t}, 3, v{dst}")

    def set_flag(self, sidx):
        e = self.e
        t = self.vT
        e(f"v_mov_b32 v{t}, s{sidx}\nv_mov_b32 v{t+1}, 1")
        e("s_mov_b64 exec, 1")
        e.vmop(f"buffer_store_byte v{t+1}, v{t}, {sr(self.srdD, 4)}, 0 offen sc0 sc1", "flag")
        e("s_mov_b64 exec, -1")

    def repack(self, name):
        e = self.e
        t, L = self.vT, self.vLane
        save = (e.vnext, list(e.vm), e.vm_done, list(e.lds), e.lds_done)
        e(f"L_repack_{name}:")
        sR = self.sA
        e(f"s_lshl_b32 s{sR}, s{self.sXcd}, 1\ns_add_u32 s{sR}, s{sR}, s{self.sSlot}\ns_sub_u32 s{sR}, s{sR}, 30")
        vD, vR, vS = e.v(), e.v(), e.v()
        F = e.v(40, 4)
        e(f"s_mul_i32 s{self.sB}, s{sR}, 96\ns_lshl_b32 s{self.sT}, s{self.sWave}, 3\ns_add_u32 s{self.sB}, s{self.sB}, s{self.sT}")
        e(f"v_lshrrev_b32 v{t}, 3, v{L}\nv_add_u32 v{t}, s{self.sB}, v{t}\nv_mul_u32_u24 v{vD}, 1280, v{t}")
        e(f"s_and_b32 s{self.sT}, s{self.sWave}, 1\ns_lshl_b32 s{self.sT}, s{self.sT}, 2")
        e(f"v_bfe_u32 v{t}, v{L}, 4, 1\nv_lshlrev_b32 v{t}, 1, v{t}\nv_add_u32 v{t}, s{self.sT}, v{t}")
        e(f"v_and_b32 v{t+1}, 7, v{L}\nv_xor_b32 v{t}, v{t}, v{t+1}\nv_lshl_add_u32 v{vD}, v{t}, 4, v{vD}")
        self.build_srds()
        e(f"s_lshl_b32 s{self.sC}, s{self.sWave}, 10")
        for kk in range(3):
            for cb in range(10):
                e(f"s_add_u32 m0, s{self.sC}, {cb*12288 + kk*4096}")
                e(f"s_mov_b32 s{self.sDd}, {kk*32*1280 + cb*128}")
                e.vmop(f"buffer_load_dwordx4 v{vD}, {sr(self.srdW2, 4)}, s{self.sDd} offen lds", ("rp", kk))
        self.tr_lane_addr(vR, 2048, 1024)
        e(f"s_mul_i32 s{self.sB}, s{self.sWave}, 49152\ns_mul_i32 s{self.sT}, s{sR}, 3072\ns_add_u32 s{self.sB}, s{self.sB}, s{self.sT}")
        e(f"v_lshlrev_b32 v{vS}, 4, v{L}\nv_add_u32 v{vS}, s{self.sB}, v{vS}")
        vR2 = e.v()
        e(f"v_add_u32 v{vR2}, {5*12288}, v{vR}")
        for kk in range(3):
            e.wait(vm=[("rp", kk)])
            e("s_barrier")
            self.stamp()
            if kk > 0:
                e.wait(vm=[("rst", kk - 1, 9)])
            for cb in range(10):
                base, off = (vR, cb * 12288) if cb < 5 else (vR2, (cb - 5) * 12288)
                for h in range(2):
                    e.ldsop(f"ds_read_b64_tr_b16 {vr(F + 4*cb + 2*h, 2)}, v{base} offset:{off + kk*4096 + h*512}", ("rr", kk, cb))
                if cb == 4:
                    e.wait(lds=[("rr", kk, 1)])
            for cb in range(10):
                e.wait(lds=[("rr", kk, cb)])
                e(f"s_mov_b32 s{self.sDd}, {cb*4*49152 + kk*1024}")
                e.vmop(f"buffer_store_dwordx4 {vr(F + 4*cb, 4)}, v{vS}, {sr(self.srdP, 4)}, s{self.sDd} offen {self.c['hflags']}", ("rst", kk, cb))
        e.wait(vm_all=True)
        self.stamp()
        if self.c["fused"]:
            e("s_barrier")
            e(f"s_add_u32 s{self.sB}, s{sR}, 240")
            e(f"s_cmp_lg_u32 s{self.sWave}, 0\ns_cbranch_scc1 L_rp_noflag_{name}")
            self.set_flag(self.sB)
            e(f"L_rp_noflag_{name}:")
        e.vnext, e.vm, e.vm_done, e.lds, e.lds_done = save

    def phase1_setup(self):
        e = self.e
        c = self.c
        t, L = self.vT, self.vLane
        self.sRb, self.sCh = e.s(), e.s()
        self.sSig, self.sSoX, self.sSoW = e.s(), e.s(), e.s()
        self.sMx, self.sMw = e.s(), e.s()
        e(f"s_mul_i32 s{self.sA}, s{self.sSlot}, 43\ns_lshr_b32 s{self.sA}, s{self.sA}, 8")
        e(f"s_mul_i32 s{self.sB}, s{self.sA}, 6\ns_sub_u32 s{self.sB}, s{self.sSlot}, s{self.sB}")
        e(f"s_and_b32 s{self.sC}, s{self.sXcd}, 1\ns_mul_i32 s{self.sC}, s{self.sC}, 5\ns_add_u32 s{self.sRb}, s{self.sC}, s{self.sA}")
        e(f"s_lshr_b32 s{self.sC}, s{self.sXcd}, 1\ns_mul_i32 s{self.sC}, s{self.sC}, 6\ns_add_u32 s{self.sCh}, s{self.sC}, s{self.sB}")
        rot = c["rot"]
        if rot == 0:
            e(f"s_mov_b32 s{self.sSig}, 0")
        else:
            e(f"s_add_u32 s{self.sSig}, s{self.sA}, s{self.sB}")
            if rot == 2:
                e(f"s_and_b32 s{self.sSig}, s{self.sSig}, 1\ns_mul_i32 s{self.sSig}, s{self.sSig}, 5")
            elif rot == 5:
                e(f"s_cmp_ge_u32 s{self.sSig}, 5\ns_cselect_b32 s{self.sC}, 5, 0\ns_sub_u32 s{self.sSig}, s{self.sSig}, s{self.sC}\ns_lshl_b32 s{self.sSig}, s{self.sSig}, 1")
            elif rot == 10:
                pass
            else:
                raise ValueError
        self.vXo = e.v(7)
        self.vWo = e.v(2)
        e(f"s_mul_i32 s{self.sA}, s{self.sWave}, 52")
        e(f"v_lshrrev_b32 v{t}, 3, v{L}\nv_add_u32 v{t}, s{self.sA}, v{t}")
        e(f"v_bfe_u32 v{t+1}, v{t}, 1, 3\nv_and_b32 v{t+2}, 7, v{L}\nv_xor_b32 v{t+1}, v{t+1}, v{t+2}")
        e(f"s_mul_i32 s{self.sB}, s{self.sRb}, 208\nv_add_u32 v{t}, s{self.sB}, v{t}\nv_mul_u32_u24 v{t}, 1280, v{t}")
        e(f"v_lshl_add_u32 v{self.vXo}, v{t+1}, 4, v{t}")
        e(f"v_xor_b32 v{t+1}, 64, v{self.vXo}")
        for i in range(1, 7):
            src = self.vXo if i % 2 == 0 else t + 1
            e(f"v_add_u32 v{self.vXo+i}, {i*10240 - (i & 3)*1024}, v{src}")
        e(f"s_lshl_b32 s{self.sA}, s{self.sWave}, 4\nv_lshrrev_b32 v{t}, 3, v{L}\nv_add_u32 v{t}, s{self.sA}, v{t}")
        e(f"v_mul_u32_u24 v{t}, 3072, v{t}")
        e(f"v_bfe_u32 v{t+1}, v{L}, 4, 1\nv_lshlrev_b32 v{t+1}, 1, v{t+1}\nv_xor_b32 v{t+1}, v{t+1}, v{t+2}")
        e(f"v_lshl_add_u32 v{t}, v{t+1}, 4, v{t}\ns_lshl_b32 s{self.sA}, s{self.sCh}, 7\nv_add_u32 v{self.vWo}, s{self.sA}, v{t}")
        e(f"v_xor_b32 v{t}, 64, v{self.vWo}\nv_add_u32 v{self.vWo+1}, {8*3072 - 1024}, v{t}")
        e(f"s_mul_i32 s{self.sMx}, s{self.sWave}, 6656")
        e(f"s_lshl_b32 s{self.sMw}, s{self.sWave}, 12\ns_add_u32 s{self.sMw}, s{self.sMw}, {XS}")

    def slab_offsets(self):
        e = self.e
        e(f"s_lshl_b32 s{self.sSoX}, s{self.sSig}, 7\ns_mul_i32 s{self.sSoW}, s{self.sSig}, 196608")
        e(f"s_add_u32 s{self.sSig}, s{self.sSig}, 1\ns_cmp_eq_u32 s{self.sSig}, 10\ns_cselect_b32 s{self.sSig}, 0, s{self.sSig}")

    def dma_list(self, s):
        e = self.e
        sb = (s % NSTAGE) * STAGE
        out = []

        def xp(i):
            def f():
                if i == 0:
                    self.slab_offsets()
                if i % 4 == 0:
                    e(f"s_add_u32 m0, s{self.sMx}, {sb + (i >> 2)*4096}")
                if i == 6:
                    e("s_mov_b32 exec_hi, 0")
                elif i % 4 == 0:
                    e("s_nop 0")
                e.vmop(f"buffer_load_dwordx4 v{self.vXo+i}, {sr(self.srdX, 4)}, s{self.sSoX} offen offset:{(i & 3)*1024} lds", ("d", s))
                if i == 6:
                    e("s_mov_b32 exec_hi, -1")
            return f

        def wp(m, j):
            def f():
                if m == 0 and j == 0:
                    e(f"s_add_u32 m0, s{self.sMw}, {sb}\ns_nop 0")
                srd = self.srdW1 if m == 0 else self.srdW3
                e.vmop(f"buffer_load_dwordx4 v{self.vWo+j}, {sr(srd, 4)}, s{self.sSoW} offen offset:{m*2048 + j*1024} lds", ("d", s))
            return f
        for i in range(7):
            out.append(xp(i))
        for m in range(2):
            for j in range(2):
                out.append(wp(m, j))
        return out

    def phase1_main(self, late_vm):
        e = self.e
        c = self.c
        D, E = c["D"], c["E"]
        R = D + 2
        t, L = self.vT, self.vLane
        for s in range(3):
            for f in self.dma_list(s):
                f()
        self.acc = e.v(NU * 8, 4)
        self.xr = e.v(R * 4, 4)
        self.wf = e.v(16, 4)
        vXa = e.v(6)
        vWa = e.v(3)
        e(f"v_and_b32 v{t}, 15, v{L}\nv_bfe_u32 v{t+1}, v{L}, 1, 3\nv_lshrrev_b32 v{t+2}, 4, v{L}\nv_xor_b32 v{t+1}, v{t+1}, v{t+2}")
        e(f"v_lshlrev_b32 v{t}, 7, v{t}\nv_lshl_add_u32 v{vXa}, v{t+1}, 4, v{t}\nv_xor_b32 v{vXa+1}, 64, v{vXa}")
        for st in (1, 2):
            e(f"v_add_u32 v{vXa+2*st}, {st*STAGE}, v{vXa}\nv_add_u32 v{vXa+2*st+1}, {st*STAGE}, v{vXa+1}")
        self.tr_lane_addr(vWa, 4096, 1024)
        e(f"v_add_u32 v{vWa}, {XS}, v{vWa}")
        e(f"v_add_u32 v{vWa+1}, {STAGE}, v{vWa}\nv_add_u32 v{vWa+2}, {2*STAGE}, v{vWa}")
        if "setup" in late_vm:
            late_vm["setup"]()

        def xread(P):
            s, p = divmod(P, 26)
            ks, u = divmod(p, NU)
            e.ldsop(f"ds_read_b128 {vr(self.xr + (P % R)*4, 4)}, v{vXa + 2*(s % NSTAGE) + ks} offset:{u*2048}", ("x", P))

        def wread(s, ks, m, h):
            e.ldsop(f"ds_read_b64_tr_b16 {vr(self.wf + ks*8 + m*4 + h*2, 2)}, v{vWa + s % NSTAGE} offset:{ks*8192 + m*2048 + h*512}", ("w", s, ks))

        self.stamp()
        e.wait(vm=[("d", 0)])
        e("s_barrier")
        self.stamp()
        for m in range(2):
            for h in range(2):
                wread(0, 0, m, h)
        for P in range(D):
            xread(P)
        pb = 26 - D + E
        pending = []
        dma_pos = c["dma_pos"]
        for s in range(10):
            post = []
            for p in range(26):
                P = 26 * s + p
                ks, u = divmod(p, NU)
                if p == pb and s < 9:
                    e.wait(vm=[("d", s + 1)], lds_all=True)
                    if ("pre_barrier", s) in late_vm:
                        late_vm[("pre_barrier", s)]()
                    e("s_barrier")
                    if c["stamps"] and (c["stamps"] == "all" or s in (0, 4, 8)):
                        self.stamp()
                    assert not pending or s >= 7, (s, len(pending))
                    if ("post_barrier", s) in late_vm:
                        pending += late_vm[("post_barrier", s)]()
                    if s + 3 < 10:
                        pending += self.dma_list(s + 3)
                    post = [("w", m, h) for m in range(2) for h in range(2)] + [("x", 26 * (s + 1) + i) for i in range(D)]
                if p + D < 26:
                    xread(P + D)
                if 2 <= p <= 5:
                    wread(s, 1, (p - 2) >> 1, (p - 2) & 1)
                if post:
                    left = 26 - p
                    n = -(-len(post) // left)
                    for _ in range(n):
                        it = post.pop(0)
                        if it[0] == "w":
                            wread(s + 1, 0, it[1], it[2])
                        else:
                            xread(it[1])
                rel = (p - pb) % 26
                if pending and (rel % 2 == 1 if dma_pos is None else p in dma_pos):
                    pending.pop(0)()
                e.wait(lds=[("x", P), ("w", s, ks)])
                for m in range(2):
                    a = self.acc + u * 8 + m * 4
                    cin = "0" if (s == 0 and ks == 0) else vr(a, 4)
                    if not (c.get("no_mfma") and s >= 1):
                        e(f"v_mfma_f32_16x16x32_bf16 {vr(a, 4)}, {vr(self.wf + ks*8 + m*4, 4)}, {vr(self.xr + (P % R)*4, 4)}, {cin}")
        self.stamp()
        return pending

    def phase1_epilogue(self, pending):
        e = self.e
        c = self.c
        t, L = self.vT, self.vLane
        vHs = e.v()
        tmp = e.v(16, 4)
        outb = e.v(8, 4)
        sK = e.s(2, 2)
        e(f"s_mov_b32 s{sK}, 0xbfb8aa3b\ns_mov_b32 s{sK+1}, 0xbfb8aa3b")
        e(f"v_bfe_u32 v{t}, v{L}, 4, 1\nv_mul_u32_u24 v{vHs}, 49152, v{t}")
        e(f"v_bfe_u32 v{t}, v{L}, 5, 1\nv_lshl_add_u32 v{vHs}, v{t}, 8, v{vHs}")
        e(f"v_and_b32 v{t}, 15, v{L}\nv_lshl_add_u32 v{vHs}, v{t}, 4, v{vHs}")
        e(f"s_mul_i32 s{self.sA}, s{self.sRb}, {NU*49152}\ns_lshl_b32 s{self.sB}, s{self.sCh}, 11\ns_add_u32 s{self.sA}, s{self.sA}, s{self.sB}")
        e(f"s_lshl_b32 s{self.sB}, s{self.sWave}, 9\ns_add_u32 s{self.sA}, s{self.sA}, s{self.sB}")
        e(f"v_add_u32 v{vHs}, s{self.sA}, v{vHs}")
        e("s_nop 4")

        def unit(u, dst):
            g = self.acc + u * 8
            up = g + 4
            T = tmp
            for i in (0, 2):
                e(f"v_pk_mul_f32 {vr(T+i, 2)}, {vr(g+i, 2)}, {sr(sK, 2)}")
            for i in range(4):
                e(f"v_exp_f32 v{T+i}, v{T+i}")
            for i in (0, 2):
                e(f"v_pk_mul_f32 {vr(T+4+i, 2)}, {vr(g+i, 2)}, {vr(up+i, 2)}")
            for i in (0, 2):
                e(f"v_pk_add_f32 {vr(T+i, 2)}, {vr(T+i, 2)}, 1.0 op_sel_hi:[1,0]")
            for i in range(4):
                e(f"v_rcp_f32 v{T+i}, v{T+i}")
            if pending:
                pending.pop(0)()
            else:
                e("s_nop 0")
            for i in (0, 2):
                e(f"v_pk_mul_f32 {vr(T+i, 2)}, {vr(T+i, 2)}, {vr(T+4+i, 2)}")
            e(f"v_cvt_pk_bf16_f32 v{dst}, v{T}, v{T+1}\nv_cvt_pk_bf16_f32 v{dst+1}, v{T+2}, v{T+3}")

        for pr in range(7):
            ob = outb + (pr & 1) * 4
            unit(2 * pr, ob)
            if 2 * pr + 1 < NU:
                unit(2 * pr + 1, ob + 2)
            e(f"s_mov_b32 s{self.sB}, {pr*2*49152}")
            e("s_nop 0")
            e(f"v_permlane16_swap_b32 v{ob}, v{ob+2}\nv_permlane16_swap_b32 v{ob+1}, v{ob+3}")
            if 2 * pr + 1 >= NU:
                e(f"s_mov_b32 exec_lo, 0xffff\ns_mov_b32 exec_hi, 0xffff")
            e.vmop(f"buffer_store_dwordx4 {vr(ob, 4)}, v{vHs}, {sr(self.srdH, 4)}, s{self.sB} offen {c['hflags']}", "hst")
            if 2 * pr + 1 >= NU:
                e("s_mov_b64 exec, -1")
            if pending:
                pending.pop(0)()
        self.stamp()

    def phase2_setup(self):
        e = self.e
        c = self.c
        t, L = self.vT, self.vLane
        self.sM2, self.sNb = e.s(), e.s()
        if c["map2"] == "8x4":
            e(f"s_and_b32 s{self.sM2}, s{self.sXcd}, 3\ns_lshl_b32 s{self.sM2}, s{self.sM2}, 3\ns_and_b32 s{self.sA}, s{self.sSlot}, 7\ns_add_u32 s{self.sM2}, s{self.sM2}, s{self.sA}")
            e(f"s_lshr_b32 s{self.sNb}, s{self.sXcd}, 2\ns_lshl_b32 s{self.sNb}, s{self.sNb}, 2\ns_lshr_b32 s{self.sA}, s{self.sSlot}, 3\ns_add_u32 s{self.sNb}, s{self.sNb}, s{self.sA}")
        else:
            e(f"s_lshl_b32 s{self.sM2}, s{self.sXcd}, 2\ns_and_b32 s{self.sA}, s{self.sSlot}, 3\ns_add_u32 s{self.sM2}, s{self.sM2}, s{self.sA}")
            e(f"s_lshr_b32 s{self.sNb}, s{self.sSlot}, 2")
        self.vP, self.vHl = e.v(), e.v()
        self.sSoP = e.s()
        e(f"s_mul_i32 s{self.sA}, s{self.sWave}, 12288\nv_lshlrev_b32 v{t}, 4, v{L}\nv_add_u32 v{self.vHl}, s{self.sA}, v{t}")
        e(f"s_mul_i32 s{self.sB}, s{self.sNb}, {5*49152}\nv_add_u32 v{self.vP}, s{self.sB}, v{self.vHl}")
        if c["fused"]:
            self.vMr, self.vMh, self.vPoll = e.v(), e.v(), e.v()
            self.vPo = e.v()
            e(f"v_lshlrev_b32 v{self.vPo}, 2, v{L}")
            e(f"s_add_u32 s{self.sA}, s{self.sWave}, 60")
            e(f"v_cmp_eq_u32 vcc, s{self.sA}, v{L}\nv_mov_b32 v{t}, 0x01010101\ns_nop 0\nv_cndmask_b32 v{self.vMr}, 0, v{t}, vcc")
            e(f"s_lshl_b32 s{self.sA}, s{self.sM2}, 2\ns_mul_i32 s{self.sB}, s{self.sA}, 79\ns_lshr_b32 s{self.sB}, s{self.sB}, 10")
            e(f"s_add_u32 s{self.sA}, s{self.sA}, 3\ns_mul_i32 s{self.sC}, s{self.sA}, 79\ns_lshr_b32 s{self.sC}, s{self.sC}, 10")
            e(f"s_mul_i32 s{self.sA}, s{self.sWave}, 6")
            e(f"s_mul_i32 s{self.sB}, s{self.sB}, 24\ns_add_u32 s{self.sB}, s{self.sB}, s{self.sA}")
            e(f"s_mul_i32 s{self.sC}, s{self.sC}, 24\ns_add_u32 s{self.sC}, s{self.sC}, s{self.sA}")
            e(f"v_mov_b32 v{self.vMh}, 0")
            for b in range(4):
                for sx in (self.sB, self.sC):
                    e(f"v_add_u32 v{t}, {b}, v{self.vPo}\nv_subrev_u32 v{t}, s{sx}, v{t}")
                    e(f"v_cmp_gt_u32 vcc, 6, v{t}\nv_mov_b32 v{t+1}, {1 << (8*b)}\ns_nop 0\nv_cndmask_b32 v{t+1}, 0, v{t+1}, vcc\nv_or_b32 v{self.vMh}, v{self.vMh}, v{t+1}")

    def poll_issue(self):
        self.e.vmop(f"buffer_load_dword v{self.vPoll}, v{self.vPo}, {sr(self.srdD, 4)}, 0 offen sc0 sc1", "poll")

    def poll_check(self, mask, label):
        e = self.e
        t = self.vT
        e(f"s_mov_b32 s{self.sDd}, 0x40000")
        e(f"s_branch {label}_chk")
        e(f"{label}_spin:")
        e(f"s_sub_u32 s{self.sDd}, s{self.sDd}, 1\ns_cbranch_scc1 {label}_out")
        e(f"buffer_load_dword v{self.vPoll}, v{self.vPo}, {sr(self.srdD, 4)}, 0 offen sc0 sc1\ns_waitcnt vmcnt(0)")
        e(f"{label}_chk:")
        e(f"v_and_b32 v{t}, v{self.vPoll}, v{mask}\nv_cmp_ne_u32 vcc, v{t}, v{mask}\ns_cbranch_vccnz {label}_spin")
        e(f"{label}_out:")

    def w2p_list(self):
        e = self.e
        out = []
        for tt in range(5):
            for ks in range(12):
                def f(tt=tt, ks=ks):
                    if ks % 4 == 0:
                        e(f"s_mov_b32 s{self.sSoP}, {tt*49152 + (ks >> 2)*4096}")
                    e.vmop(f"buffer_load_dwordx4 {ar((tt*12 + ks)*4, 4)}, v{self.vP}, {sr(self.srdP, 4)}, s{self.sSoP} offen offset:{(ks & 3)*1024} {self.c['ldflags']}", ("p", tt, ks))
                out.append(f)
        return out

    def phase2_main(self):
        e = self.e
        c = self.c
        t, L = self.vT, self.vLane
        HR = 16
        acc = e.v(80, 4)
        hr = e.v(HR * 4, 4)
        red = e.v(60, 4)
        sU = e.s(4)
        sSo = e.s()
        vRw = e.v(3)
        vRr, vO, vO2 = e.v(), e.v(), e.v()
        order = [1, 2, 3, 0]
        for v in range(4):
            e(f"s_add_u32 s{self.sA}, s{self.sWave}, {v}\ns_and_b32 s{self.sA}, s{self.sA}, 3")
            if v > 0:
                e(f"s_mul_i32 s{self.sB}, s{self.sA}, 15360\ns_add_u32 s{self.sB}, s{self.sB}, {(v-1)*5120}")
                e(f"v_lshlrev_b32 v{t}, 4, v{L}\nv_add_u32 v{vRw+v-1}, s{self.sB}, v{t}")
            else:
                e(f"s_mul_i32 s{self.sB}, s{self.sA}, 15360\nv_lshlrev_b32 v{t}, 4, v{L}\nv_add_u32 v{vRr}, s{self.sB}, v{t}")
            e(f"s_lshl_b32 s{self.sB}, s{self.sM2}, 2\ns_add_u32 s{self.sA}, s{self.sA}, s{self.sB}\ns_mul_i32 s{sU+v}, s{self.sA}, 49152")
        seq = [(v, ks) for v in order for ks in range(12)]

        def hload(i):
            v, ks = seq[i]
            if ks % 4 == 0:
                e(f"s_add_u32 s{sSo}, s{sU+v}, {(ks >> 2)*4096}")
            e.vmop(f"buffer_load_dwordx4 {vr(hr + (i % HR)*4, 4)}, v{self.vHl}, {sr(self.srdH, 4)}, s{sSo} offen offset:{(ks & 3)*1024} {c['ldflags']}", ("h", i))
        PF = HR - 2
        for i in range(PF):
            hload(i)
        e(f"s_lshl_b32 s{self.sA}, s{self.sM2}, 6\ns_lshl_b32 s{self.sB}, s{self.sWave}, 4\ns_add_u32 s{self.sA}, s{self.sA}, s{self.sB}")
        e(f"v_and_b32 v{t}, 15, v{L}\nv_add_u32 v{t}, s{self.sA}, v{t}\nv_mul_u32_u24 v{t}, 1280, v{t}")
        e(f"s_mul_i32 s{self.sA}, s{self.sNb}, 160\nv_add_u32 v{t}, s{self.sA}, v{t}")
        e(f"v_lshrrev_b32 v{t+1}, 4, v{L}\nv_lshl_add_u32 v{vO2}, v{t+1}, 3, v{t}")
        e(f"v_bfe_u32 v{t+1}, v{L}, 4, 1\nv_lshl_add_u32 v{t}, v{t+1}, 5, v{t}\nv_bfe_u32 v{t+1}, v{L}, 5, 1\nv_lshl_add_u32 v{vO}, v{t+1}, 4, v{t}")
        side = []
        for i, (v, ks) in enumerate(seq):
            if i + PF < 48:
                hload(i + PF)
            e.wait(vm=[("h", i)])
            if i == 0:
                self.stamp()
            for tt in range(5):
                a = acc + (v * 5 + tt) * 4
                cin = "0" if ks == 0 else vr(a, 4)
                e(f"v_mfma_f32_16x16x32_bf16 {vr(a, 4)}, {ar((tt*12 + ks)*4, 4)}, {vr(hr + (i % HR)*4, 4)}, {cin}")
                if side and i % 12 >= 2:
                    side.pop(0)()
            if ks == 11 and v != 0:
                for tt in range(5):
                    def wr(v=v, tt=tt):
                        e.ldsop(f"ds_write_b128 v{vRw+v-1}, {vr(acc + (v*5 + tt)*4, 4)} offset:{tt*1024}", ("rw", v))
                    side.append(wr)
                if v == 3:
                    def bar():
                        e.wait(lds_all=True)
                        e("s_barrier")
                    side += [lambda: None] * 5
                    side.append(bar)
                    for k in range(15):
                        def rd(k=k):
                            e.ldsop(f"ds_read_b128 {vr(red + k*4, 4)}, v{vRr} offset:{k*1024}", ("rr", k))
                        side.append(rd)
                    side += [lambda: None] * 5
                    for tt in range(5):
                        for i2 in (0, 2):
                            def ad(tt=tt, i2=i2):
                                e.wait(lds=[("rr", 10 + tt)])
                                r0 = red + tt * 4 + i2
                                e(f"v_pk_add_f32 {vr(r0, 2)}, {vr(r0, 2)}, {vr(r0 + 20, 2)}")
                                e(f"v_pk_add_f32 {vr(r0, 2)}, {vr(r0, 2)}, {vr(r0 + 40, 2)}")
                            side.append(ad)
        while side:
            side.pop(0)()
        self.stamp()
        e("s_nop 7")
        ob = hr
        for tt in range(5):
            for i2 in (0, 2):
                e(f"v_pk_add_f32 {vr(acc + tt*4 + i2, 2)}, {vr(acc + tt*4 + i2, 2)}, {vr(red + tt*4 + i2, 2)}")
            e(f"v_cvt_pk_bf16_f32 v{ob + tt*2}, v{acc + tt*4}, v{acc + tt*4 + 1}\nv_cvt_pk_bf16_f32 v{ob + tt*2 + 1}, v{acc + tt*4 + 2}, v{acc + tt*4 + 3}")
        e.vmop(f"buffer_store_dwordx2 {vr(ob + 8, 2)}, v{vO2}, {sr(self.srdOut, 4)}, 0 offen offset:128 {c['outflags']}")
        for pr in range(2):
            o = ob + pr * 4
            e(f"v_permlane16_swap_b32 v{o}, v{o+2}\nv_permlane16_swap_b32 v{o+1}, v{o+3}")
            e.vmop(f"buffer_store_dwordx4 {vr(o, 4)}, v{vO}, {sr(self.srdOut, 4)}, 0 offen offset:{pr*64} {c['outflags']}")
        if c["stamps"]:
            e.wait(vm_all=True)
            self.stamp()

    def kd(self, name, nv, acc_off):
        return f""".section .rodata,"a"
.p2align 6
.amdhsa_kernel {name}
  .amdhsa_next_free_vgpr {nv}
  .amdhsa_next_free_sgpr 102
  .amdhsa_accum_offset {acc_off}
  .amdhsa_group_segment_fixed_size 0
  .amdhsa_kernarg_size 56
  .amdhsa_user_sgpr_count 2
  .amdhsa_user_sgpr_kernarg_segment_ptr 1
  .amdhsa_system_sgpr_workgroup_id_x 1
  .amdhsa_float_denorm_mode_32 3
.end_amdhsa_kernel
"""

    def build(self):
        e = self.e
        c = self.c
        lds1 = NSTAGE * STAGE
        if c["fused"]:
            name = NAME + "_kernel"
            head = HEADER + f"; @launch grid=(256,1,1) block=(256,1,1) lds={lds1}\n"
            self.prologue(name, 0)
            self.phase2_setup()
            vmark, smark = e.vnext, e.snext
            e(f"s_cmp_ge_u32 s{self.sSlot}, 30\ns_cbranch_scc1 L_repack_{name}")
            self.phase1_setup()
            self.build_srds()
            late = {}
            w2l = self.w2p_list()
            if c["w2_start"] == "early":
                late[("post_barrier", 6)] = lambda: [self.poll_issue]
                def chk():
                    e.wait(vm=["poll"])
                    self.poll_check(self.vMr, "L_pr")
                late[("pre_barrier", 7)] = chk
                late[("post_barrier", 7)] = lambda: w2l
                pending = self.phase1_main(late)
            else:
                pending = self.phase1_main(late)
                self.poll_issue()
                e.wait(vm=["poll"])
                self.poll_check(self.vMr, "L_pr")
                pending = w2l
            self.phase1_epilogue(pending)
            for _ in range(min(c.get("post_store_loads", 8), len(pending))):
                pending.pop(0)()
            e.wait(vm=["hst"])
            self.stamp()
            e("s_barrier")
            e(f"s_mul_i32 s{self.sA}, s{self.sRb}, 24\ns_add_u32 s{self.sA}, s{self.sA}, s{self.sCh}")
            e(f"s_cmp_lg_u32 s{self.sWave}, 0\ns_cbranch_scc1 L_noflag")
            nvm = len(e.vm)
            self.set_flag(self.sA)
            e.vm = e.vm[:nvm]
            e("L_noflag:")
            while pending:
                pending.pop(0)()
            e("L_join:")
            ns = self.nstamp
            self.poll_issue()
            e("s_waitcnt vmcnt(0)")
            e.reset_counts()
            self.stamp()
            self.poll_check(self.vMh, "L_ph")
            self.stamp()
            e.vnext = vmark
            self.phase2_main()
            self.write_stamps(name)
            e(f"L_end_{name}:\ns_endpgm")
            e.vnext = vmark
            self.nstamp = 0
            e.reset_counts()
            self.repack(name)
            e.reset_counts()
            self.poll_issue()
            e("s_waitcnt vmcnt(0)")
            self.poll_check(self.vMr, "L_pr2")
            for f in self.w2p_list():
                f()
            e("s_branch L_join")
            e(f"L_codeend_{name}:")
            body = "\n".join(e.L)
            return head + '.amdgcn_target "amdgcn-amd-amdhsa--gfx950"\n.text\n' + body + "\n" + self.kd(name, 512, 256)
        else:
            n1, n2 = "ffn_up_kernel", NAME + "_kernel"
            head = HEADER + f"; @launch kernel={n1} grid=(256,1,1) block=(256,1,1) lds={lds1}\n"
            head += f"; @launch kernel={n2} grid=(256,1,1) block=(256,1,1) lds=61440\n"
            self.prologue(n1, 0)
            vmark = e.vnext
            e(f"s_cmp_ge_u32 s{self.sSlot}, 30\ns_cbranch_scc1 L_repack_{n1}")
            self.phase1_setup()
            self.build_srds()
            pending = self.phase1_main({})
            self.phase1_epilogue(pending)
            if c["stamps"]:
                e.wait(vm_all=True)
                self.stamp()
            e(f"L_fin_{n1}:")
            self.write_stamps(n1)
            e(f"L_end_{n1}:\ns_endpgm")
            e.vnext = vmark
            self.nstamp = 0
            e.reset_counts()
            self.repack(n1)
            e(f"s_branch L_fin_{n1}")
            e(f"L_codeend_{n1}:")
            self.prologue(n2, 1 << 20)
            self.phase2_setup()
            self.build_srds()
            self.stamp()
            for f in self.w2p_list():
                f()
            self.stamp()
            self.phase2_main()
            self.write_stamps(n2)
            e(f"L_end_{n2}:\ns_endpgm")
            e(f"L_codeend_{n2}:")
            body = "\n".join(e.L)
            return head + '.amdgcn_target "amdgcn-amd-amdhsa--gfx950"\n.text\n' + body + "\n" + self.kd(n1, 256, 256) + self.kd(n2, 512, 256)


def parse_kw(args):
    kw = {}
    for a in args:
        k, v = a.split("=", 1)
        try:
            v = eval(v)
        except Exception:
            pass
        kw[k] = v
    return kw


if __name__ == "__main__":
    out = sys.argv[1]
    open(out, "w").write(Gen(**parse_kw(sys.argv[2:])).build())
```

```python
import sys

NAME = "standalone__glu_gated_swiglu__prompt"
KN = NAME + "_kernel"

X_BYTES = 2048 * 640 * 2
W_BYTES = 640 * 1536 * 2
OUT_BYTES = 2048 * 640 * 2
H_BYTES = 128 * 49152
W2P_OFF = 8 << 20
W2P_BYTES = 40 * 49152
FLAG_OFF = 12 << 20
FLAG_BYTES = 262144
FR_OFF = 196608
FSTAGE = 40960
STAMP_OFF = 16 << 20

NU = 13
XS = NU * 2048
STAGE = XS + 16384
NSTAGE = 3
RED0 = NSTAGE * STAGE
REDSZ = 25600
LDS_TOTAL = RED0 + REDSZ

HEADER = """; Kernarg layout for this problem (56 bytes, ptrs only, base s[0:1]):
;   offset  24: d_in[3] w2  shape=(1536, 640) dtype=bfloat16 strides=(1280, 2) contiguous=True
"""


class Em:
    def __init__(self):
        self.L = []
        self.reset_counts()
        self.vnext = 1
        self.snext = 4
        self.skip = lambda kind, tag: False
        self.t = self.tm = self.tv = 0

    def __call__(self, s):
        for line in s.split("\n"):
            line = line.strip()
            if line:
                self.L.append(line if line.endswith(":") else "    " + line)
                self.tick(line)

    def tick(self, line):
        op = line.split(" ")[0]
        if op.startswith("v_mfma"):
            self.t = max(self.t, self.tm + 16)
            self.tm = self.t
            self.t += 4
        elif op.startswith("v_"):
            self.t = max(self.t, self.tm + 8) + (8 if op.startswith(("v_exp", "v_rcp", "v_perm")) else 4)
        elif op.startswith(("buffer", "global")):
            self.t += 12
            self.tv = self.t
        elif op.startswith("ds_write"):
            self.t += 16
        elif op.startswith(("s_waitcnt", "s_nop")) or op.endswith(":"):
            self.t += 1
        else:
            self.t += 4

    def v(self, n=1, align=1):
        b = (self.vnext + align - 1) // align * align
        self.vnext = b + n
        assert self.vnext <= 256, "out of arch VGPRs"
        return b

    def s(self, n=1, align=1):
        b = (self.snext + align - 1) // align * align
        self.snext = b + n
        assert self.snext <= 102, "out of SGPRs"
        return b

    def ldsop(self, txt, tag=None):
        if not self.skip("lds", tag):
            self(txt)
        self.lds.append(tag)

    def vmop(self, txt, tag=None):
        if not self.skip("vm", tag):
            self(txt)
        self.vm.append(tag)

    def _need(self, ops, tags):
        idx = -1
        for t in tags:
            c = [i for i, x in enumerate(ops) if x == t]
            assert c, f"tag {t} never issued"
            idx = max(idx, c[-1])
        return idx + 1

    def wait(self, lds=(), vm=(), lds_all=False, vm_all=False):
        parts = []
        n = len(self.vm) if vm_all else (self._need(self.vm, vm) if vm else 0)
        if n > self.vm_done:
            cnt = min(len(self.vm) - n, 63)
            parts.append(f"vmcnt({cnt})")
            self.vm_done = len(self.vm) - cnt
        n = len(self.lds) if lds_all else (self._need(self.lds, lds) if lds else 0)
        if n > self.lds_done:
            cnt = min(len(self.lds) - n, 15)
            parts.append(f"lgkmcnt({cnt})")
            self.lds_done = len(self.lds) - cnt
        if parts:
            self("s_waitcnt " + " ".join(parts))

    def reset_counts(self):
        self.lds, self.vm, self.lds_done, self.vm_done = [], [], 0, 0


def vr(b, n):
    return f"v[{b}:{b+n-1}]" if n > 1 else f"v{b}"


def ar(b, n):
    return f"a[{b}:{b+n-1}]"


def sr(b, n):
    return f"s[{b}:{b+n-1}]" if n > 1 else f"s{b}"


DEF = dict(D=9, E=3, stamps=False, G=5, lead=1, xm=0, map2="8x4", stf="sc1", ldf="sc1", codepf=True, outflags="",
           npre=20, pre0=8, tail=13, PF=9, HR=12, pollks=6, fA=6, fB=10, fC=-1, fD=1, align=12,
           tback=32, tdma=70, tw2=72, crit=3, rpv=1, rpos=0, rpub=3, rsk=8, l2pf=0, w2at=7, sleep=2, grot=0, wspace=1, ssleep=8, m1at=7, spf=(2, 3, 4), hfirst=44, pd0=10, epiA=4, epiB=4)


class Gen:
    def __init__(self, **kw):
        self.c = dict(DEF)
        self.c.update(kw)
        self.e = Em()
        c = self.c

        def skip(kind, tag):
            if kind == "vm" and tag in c.get("skipvm", ()):
                return True
            if not isinstance(tag, tuple):
                return False
            if kind == "vm" and tag[0] in c.get("skipvm", ()):
                return True
            if c.get("nohst") and kind == "vm" and tag[0] == "hst":
                return True
            if c.get("noflag") and kind == "vm" and tag[0] in ("flag", "pollh"):
                return True
            if c.get("no_dma") and kind == "vm" and tag[0] == "d" and tag[1] >= 3:
                return True
            if c.get("no_xread") and kind == "lds" and tag[0] == "x" and tag[1] >= 26:
                return True
            return False
        self.e.skip = skip
        self.nstamp = 0

    def stamp(self):
        e = self.e
        if not self.c["stamps"]:
            return
        i = self.nstamp
        self.nstamp += 1
        assert i < 31
        e(f"s_memtime {sr(self.sT, 2)}\ns_memrealtime {sr(self.sT3, 2)}")
        e("s_waitcnt lgkmcnt(0)")
        e.lds_done = len(e.lds)
        e(f"v_writelane_b32 v{self.vStamp}, s{self.sT}, {i}\nv_writelane_b32 v{self.vStamp}, s{self.sT3}, {32 + i}")

    def write_stamps(self):
        e = self.e
        if not self.c["stamps"]:
            return
        keep = self.nstamp
        self.nstamp = 30
        self.stamp()
        self.nstamp = keep
        e(f"s_lshl_b32 s{self.sT}, s2, 2\ns_add_u32 s{self.sT}, s{self.sT}, s{self.sWave}\ns_lshl_b32 s{self.sT}, s{self.sT}, 8")
        e(f"s_add_u32 s{self.sT}, s{self.sT}, {STAMP_OFF}")
        e(f"v_lshlrev_b32 v{self.vT}, 2, v{self.vLane}\nv_add_u32 v{self.vT}, s{self.sT}, v{self.vT}")
        e(f"s_mov_b32 s{self.srdH+2}, 0x10000000")
        e(f"buffer_store_dword v{self.vStamp}, v{self.vT}, {sr(self.srdH, 4)}, 0 offen")
        e("s_waitcnt vmcnt(0)")

    def srd_adj(self, dst, addoff):
        e = self.e
        if addoff > 0:
            e(f"s_add_u32 s{dst}, s{dst}, {addoff}\ns_addc_u32 s{dst+1}, s{dst+1}, 0")
        else:
            e(f"s_sub_u32 s{dst}, s{dst}, {-addoff}\ns_subb_u32 s{dst+1}, s{dst+1}, 0")

    def srd_const(self, dst, nbytes):
        self.e(f"s_mov_b32 s{dst+2}, {nbytes}\ns_mov_b32 s{dst+3}, 0x20000")

    def tr_lane_addr(self, dst, qstride_hi, qstride_lo, sub):
        e = self.e
        t, L = self.vT, self.vLane
        e(f"v_bfe_u32 v{t}, v{L}, 5, 1\nv_mul_u32_u24 v{dst}, {qstride_hi}, v{t}")
        e(f"v_bfe_u32 v{t}, v{L}, 4, 1\nv_mul_u32_u24 v{t+1}, {qstride_lo}, v{t}\nv_add_u32 v{dst}, v{dst}, v{t+1}")
        e(f"v_lshlrev_b32 v{t+1}, 2, v{t}")
        e(f"v_bfe_u32 v{t}, v{L}, 3, 1\nv_lshl_add_u32 v{t+1}, v{t}, 1, v{t+1}")
        e(f"v_bfe_u32 v{t}, v{L}, 1, 1")
        if sub is not None:
            e(f"s_lshl_b32 s{self.sA}, s{sub}, 1\nv_add_u32 v{t}, s{self.sA}, v{t}")
        e(f"v_xor_b32 v{t}, v{t}, v{t+1}\nv_lshl_add_u32 v{dst}, v{t}, 4, v{dst}")
        e(f"v_bfe_u32 v{t}, v{L}, 2, 2\nv_lshl_add_u32 v{dst}, v{t}, 7, v{dst}")
        e(f"v_and_b32 v{t}, 1, v{L}\nv_lshl_add_u32 v{dst}, v{t}, 3, v{dst}")

    def spin(self, label, load, check):
        e = self.e
        if self.c.get("nocheck"):
            return
        check()
        e(f"s_cbranch_vccz {label}_out")
        e(f"s_mov_b32 s{self.sSpin}, 0x40000")
        e(f"{label}_spin:")
        e(f"s_sleep {self.c['ssleep'] if label == 'L_m1s' else self.c['sleep']}")
        e(load)
        e("s_waitcnt vmcnt(0)")
        check()
        e(f"s_cbranch_vccz {label}_out")
        e(f"s_sub_u32 s{self.sSpin}, s{self.sSpin}, 1\ns_cbranch_scc0 {label}_spin")
        e(f"{label}_out:")

    def tok_txt(self):
        return f"buffer_load_dword v{self.vTok}, off, {sr(self.srdD, 4)}, 0 sc1"

    def tok_check(self, label):
        self.spin(label, self.tok_txt(), lambda: self.e(f"v_cmp_eq_u32 vcc, 0, v{self.vTok}"))

    def poll_txt(self, vaddr, soff):
        return f"buffer_load_dword v{self.vPoll}, v{vaddr}, {sr(self.srdF, 4)}, {soff} offen sc1"

    def poll_check(self, label, vaddr, soff):
        self.spin(label, self.poll_txt(vaddr, soff), lambda: self.e(f"v_cmp_ne_u32 vcc, v{self.vPoll}, v{self.vTok}"))

    def publish(self, label, sreg, srd=None, cond=None):
        e = self.e
        if self.c.get("noflag"):
            return
        e(f"s_cmp_lg_u32 s{self.sWave if cond is None else cond}, 0\ns_cbranch_scc1 {label}")
        e(f"s_mov_b64 exec, 1\nbuffer_store_dword v{self.vTok}, off, {sr(self.srdF if srd is None else srd, 4)}, s{sreg} sc1\ns_mov_b64 exec, -1")
        e(f"{label}:")

    def publish_h(self, pr, stage):
        e = self.e
        e.wait(vm=[("hst", pr)])
        e("s_barrier")
        self.publish(f"L_pub{stage}", self.sFl)
        if stage < 4:
            e(f"s_add_u32 s{self.sFl}, s{self.sFl}, {FSTAGE}")

    def prologue(self):
        e = self.e
        c = self.c
        e(f".globl {KN}\n.p2align {c['align']}\n.type {KN},@function\n{KN}:")
        self.srdX, self.srdW1, self.srdW3, self.srdW2 = (e.s(4, 4) for _ in range(4))
        self.srdOut, self.srdH, self.srdP, self.srdD, self.srdF = (e.s(4, 4) for _ in range(5))
        self.sT, self.sT2 = e.s(2, 2), e.s(2, 2)
        self.sWave, self.sXcd, self.sSlot = e.s(), e.s(), e.s()
        self.sA, self.sB, self.sC, self.sSpin, self.sFl = (e.s() for _ in range(5))
        if c["stamps"]:
            self.vStamp = e.v()
            self.sT3, self.sT4 = e.s(2, 2), e.s(2, 2)
        self.vLane = e.v()
        self.vT = e.v(4, 4)
        self.vTok, self.vPoll = e.v(), e.v()
        e(f"s_cmp_ge_u32 s2, 256\ns_cbranch_scc1 L_end_{KN}")
        if c["codepf"]:
            e(f"s_getpc_b64 {sr(self.sT, 2)}")
        for srd, off in ((self.srdX, 0), (self.srdW1, 8), (self.srdW3, 16), (self.srdW2, 24), (self.srdOut, 32),
                         (self.srdD, 40), (self.srdH, 48), (self.srdP, 48), (self.srdF, 48)):
            e(f"s_load_dwordx2 {sr(srd, 2)}, s[0:1], {off}")
        e(f"s_memrealtime {sr(self.sT2, 2)}")
        if c["stamps"]:
            e(f"v_mov_b32 v{self.vStamp}, 0")
            e(f"s_memtime {sr(self.sT4, 2)}")
        e(f"v_lshrrev_b32 v{self.vT}, 6, v0")
        e(f"v_and_b32 v{self.vLane}, 63, v0")
        e(f"v_readfirstlane_b32 s{self.sWave}, v{self.vT}")
        if c["codepf"]:
            t = self.vT + 1
            e(f"v_lshlrev_b32 v{t}, 7, v0")
            e(f"s_and_b32 s{self.sT}, s{self.sT}, 0xffffff00")
            e(f"v_min_u32 v{t}, L_codeend - {KN} - 4, v{t}")
            e.vmop(f"global_load_dword v{self.vPoll}, v{t}, {sr(self.sT, 2)}", "codepf")
        e(f"s_and_b32 s{self.sXcd}, s2, 7\ns_lshr_b32 s{self.sSlot}, s2, 3")
        for dst, nbytes in ((self.srdX, X_BYTES), (self.srdW1, W_BYTES), (self.srdW3, W_BYTES + 2048), (self.srdD, 256)):
            self.srd_const(dst, nbytes)

    def after_kernarg(self, tag):
        e = self.e
        e("s_waitcnt lgkmcnt(0)")
        if self.c["stamps"]:
            e(f"v_writelane_b32 v{self.vStamp}, s{self.sT4}, 0\nv_writelane_b32 v{self.vStamp}, s{self.sT2}, 32")
            self.nstamp = 1
            self.stamp()

    def late_srds(self):
        for dst, nbytes in ((self.srdOut, OUT_BYTES), (self.srdH, H_BYTES), (self.srdP, W2P_BYTES),
                            (self.srdF, FLAG_BYTES)):
            self.srd_const(dst, nbytes)
        self.srd_adj(self.srdP, W2P_OFF)
        self.srd_adj(self.srdF, FLAG_OFF)

    def publish_token(self):
        e = self.e
        t = self.vT
        e(f"s_or_b32 s{self.sA}, s2, s{self.sWave}\ns_cmp_lg_u32 s{self.sA}, 0\ns_cbranch_scc1 L_notok")
        e(f"s_max_u32 s{self.sA}, s{self.sT2}, 1\nv_mov_b32 v{t}, s{self.sA}")
        e(f"s_mov_b64 exec, 1\nbuffer_store_dword v{t}, off, {sr(self.srdD, 4)}, 0 sc1\ns_mov_b64 exec, -1")
        e("L_notok:")

    def phase1_setup(self):
        e = self.e
        c = self.c
        t, L = self.vT, self.vLane
        self.sRb, self.sCh = e.s(), e.s()
        self.sSoX, self.sSoW = e.s(10), e.s()
        self.sMx, self.sMw = e.s(), e.s()
        sG, sSig = e.s(), e.s()
        e(f"s_mul_i32 s{self.sA}, s{self.sSlot}, 43\ns_lshr_b32 s{self.sA}, s{self.sA}, 8")
        e(f"s_mul_i32 s{self.sB}, s{self.sA}, 6\ns_sub_u32 s{self.sB}, s{self.sSlot}, s{self.sB}")
        e(f"s_and_b32 s{self.sC}, s{self.sXcd}, 1\ns_mul_i32 s{self.sC}, s{self.sC}, 5\ns_add_u32 s{self.sRb}, s{self.sC}, s{self.sA}")
        e(f"s_lshr_b32 s{self.sC}, s{self.sXcd}, 1\ns_mul_i32 s{self.sC}, s{self.sC}, 6\ns_add_u32 s{self.sCh}, s{self.sC}, s{self.sB}")
        G = c["G"]
        e(f"s_add_u32 s{sG}, s{self.sA}, s{self.sB}")
        if G == 1:
            e(f"s_mov_b32 s{sG}, 0")
        elif G == 2:
            e(f"s_and_b32 s{sG}, s{sG}, 1")
        else:
            e(f"s_mul_i32 s{self.sC}, s{sG}, {-(-256 // G)}\ns_lshr_b32 s{self.sC}, s{self.sC}, 8\ns_mul_i32 s{self.sC}, s{self.sC}, {G}\ns_sub_u32 s{sG}, s{sG}, s{self.sC}")
        e(f"s_lshr_b32 s{self.sC}, s{self.sXcd}, 1\ns_add_u32 s{self.sC}, s{self.sC}, s{self.sXcd}\ns_and_b32 s{sSig}, s{self.sC}, 1")
        self.sG, self.sSig = sG, sSig
        self.slab_off(0)
        self.slab_off(1)
        self.vXo = e.v(7)
        self.vWo = e.v(2)
        e(f"s_mul_i32 s{self.sA}, s{self.sWave}, 52")
        e(f"v_lshrrev_b32 v{t}, 3, v{L}\nv_add_u32 v{t}, s{self.sA}, v{t}")
        e(f"v_bfe_u32 v{t+1}, v{t}, 1, 3\nv_and_b32 v{t+2}, 7, v{L}\nv_xor_b32 v{t+1}, v{t+1}, v{t+2}")
        e(f"s_mul_i32 s{self.sB}, s{self.sRb}, 208\nv_add_u32 v{t}, s{self.sB}, v{t}\nv_mul_u32_u24 v{t}, 1280, v{t}")
        e(f"v_lshl_add_u32 v{self.vXo}, v{t+1}, 4, v{t}")
        e(f"v_xor_b32 v{t+1}, 64, v{self.vXo}")
        for i in range(1, 7):
            src = self.vXo if i % 2 == 0 else t + 1
            e(f"v_add_u32 v{self.vXo+i}, {i*10240 - (i & 3)*1024}, v{src}")
        e(f"s_lshl_b32 s{self.sA}, s{self.sWave}, 4\nv_lshrrev_b32 v{t}, 3, v{L}\nv_add_u32 v{t}, s{self.sA}, v{t}")
        e(f"v_mul_u32_u24 v{t}, 3072, v{t}")
        e(f"v_bfe_u32 v{t+1}, v{L}, 4, 1\nv_lshlrev_b32 v{t+1}, 1, v{t+1}\nv_xor_b32 v{t+1}, v{t+1}, v{t+2}")
        e(f"v_lshl_add_u32 v{t}, v{t+1}, 4, v{t}\ns_lshl_b32 s{self.sA}, s{self.sCh}, 7\nv_add_u32 v{self.vWo}, s{self.sA}, v{t}")
        e(f"v_xor_b32 v{t}, 64, v{self.vWo}\nv_add_u32 v{self.vWo+1}, {8*3072 - 1024}, v{t}")
        self.vRd, self.sRm = e.v(), e.s()
        self.sWi, self.sKap, self.sCp = e.s(), e.s(), e.s()
        vRd, sRm, sWi, sKap, sCp = self.vRd, self.sRm, self.sWi, self.sKap, self.sCp
        e(f"s_mul_i32 s{sWi}, s{self.sXcd}, 30\ns_add_u32 s{sWi}, s{sWi}, s{self.sSlot}")
        e(f"s_mul_i32 s{sKap}, s{sWi}, 205\ns_lshr_b32 s{sKap}, s{sKap}, 10")
        e(f"s_mul_i32 s{sCp}, s{sKap}, 5\ns_sub_u32 s{sCp}, s{sWi}, s{sCp}")
        e(f"s_lshl_b32 s{self.sA}, s{sKap}, 5\ns_lshl_b32 s{sRm}, s{self.sWave}, 3\ns_add_u32 s{self.sA}, s{self.sA}, s{sRm}")
        e(f"v_lshrrev_b32 v{t}, 3, v{L}\nv_add_u32 v{t}, s{self.sA}, v{t}\nv_mul_u32_u24 v{vRd}, 1280, v{t}")
        e(f"s_and_b32 s{self.sA}, s{self.sWave}, 1\ns_lshl_b32 s{sRm}, s{self.sA}, 2")
        e(f"v_xor_b32 v{t}, s{sRm}, v{t+1}\nv_lshl_add_u32 v{vRd}, v{t}, 4, v{vRd}")
        e(f"s_lshl_b32 s{sRm}, s{sCp}, 8\nv_add_u32 v{vRd}, s{sRm}, v{vRd}")
        e(f"s_lshl_b32 s{self.sA}, s{self.sA}, 10\ns_lshr_b32 s{sRm}, s{self.sWave}, 1\ns_lshl_b32 s{sRm}, s{sRm}, 12\ns_add_u32 s{sRm}, s{sRm}, s{self.sA}")
        self.srd_const(self.srdW2, W_BYTES)
        e(f"s_mul_i32 s{self.sMx}, s{self.sWave}, 6656")
        e(f"s_lshl_b32 s{self.sMw}, s{self.sWave}, 12\ns_add_u32 s{self.sMw}, s{self.sMw}, {XS}")

    def slab_off(self, s):
        e = self.e
        G, xm = self.c["G"], self.c["xm"]
        base = s // G * G
        d = self.sSoX + s
        if self.c.get("lead"):
            e(f"s_mov_b32 s{d}, {s}")
            if s < 9:
                e(f"s_cmp_eq_u32 s{self.sG}, {s % 5}\ns_cselect_b32 s{d}, {s + 1}, s{d}")
            if s > 0:
                e(f"s_cmp_eq_u32 s{self.sG}, {(s - 1) % 5}\ns_cselect_b32 s{d}, {s - 1}, s{d}")
        elif base + G > 10 or G == 1:
            e(f"s_mov_b32 s{d}, {s}")
        elif G == 2:
            e(f"s_xor_b32 s{d}, s{self.sG}, {s}")
        else:
            e(f"s_add_u32 s{d}, s{self.sG}, {s}\ns_sub_u32 s{self.sC}, s{d}, {G}\ns_cmp_ge_u32 s{d}, {base + G}\ns_cselect_b32 s{d}, s{self.sC}, s{d}")
        if xm == "rev":
            e(f"s_sub_u32 s{self.sC}, 9, s{d}\ns_cmp_eq_u32 s{self.sSig}, 1\ns_cselect_b32 s{d}, s{self.sC}, s{d}")
        elif xm:
            e(f"s_mul_i32 s{self.sC}, s{self.sSig}, {xm}\ns_add_u32 s{d}, s{d}, s{self.sC}\ns_sub_u32 s{self.sC}, s{d}, 10\ns_cmp_ge_u32 s{d}, 10\ns_cselect_b32 s{d}, s{self.sC}, s{d}")
        e(f"s_lshl_b32 s{d}, s{d}, 7")

    def dma_list(self, s):
        e = self.e
        sb = (s % NSTAGE) * STAGE
        out = []
        for m in range(2):
            for j in range(2):
                def f(m=m, j=j):
                    srd = self.srdW1 if m == 0 else self.srdW3
                    e.vmop(f"buffer_load_dwordx4 v{self.vWo+j}, {sr(srd, 4)}, s{self.sSoW} offen offset:{m*2048 + j*1024} lds", ("d", s))
                out.append((f"s_add_u32 m0, s{self.sMw}, {sb}\ns_mul_i32 s{self.sSoW}, s{self.sSoX+s}, 1536" if m + j == 0 else None, f))
        for i in range(7):
            def f(i=i):
                if i == 6:
                    e("s_mov_b32 exec_hi, 0")
                e.vmop(f"buffer_load_dwordx4 v{self.vXo+i}, {sr(self.srdX, 4)}, s{self.sSoX+s} offen offset:{(i & 3)*1024} lds", ("d", s))
                if i == 6:
                    e("s_mov_b32 exec_hi, -1")
            out.append((f"s_add_u32 m0, s{self.sMx}, {sb + (i >> 2)*4096}" if i % 4 == 0 else None, f))
        return out

    def epi_ops(self, u):
        g = self.acc + u * 8
        up = g + 4
        T = self.tmp + (u & 1) * 4
        dst = self.outb + ((u >> 1) & 1) * 4 + (u & 1) * 2
        ops = []
        for i in range(4):
            ops.append((1, f"v_mul_f32 v{T+i}, s{self.sK}, v{g+i}"))
        for i in range(4):
            ops.append((2, f"v_exp_f32 v{T+i}, v{T+i}"))
            ops.append((1, f"v_mul_f32 v{g+i}, v{g+i}, v{up+i}"))
        for i in range(4):
            ops.append((1, f"v_add_f32 v{T+i}, 1.0, v{T+i}"))
        for i in range(4):
            ops.append((2, f"v_rcp_f32 v{T+i}, v{T+i}"))
        for i in range(4):
            ops.append((1, f"v_mul_f32 v{g+i}, v{g+i}, v{T+i}"))
        ops.append((1, f"v_cvt_pk_bf16_f32 v{dst}, v{g}, v{g+1}"))
        ops.append((1, f"v_cvt_pk_bf16_f32 v{dst+1}, v{g+2}, v{g+3}"))
        return ops

    def phase1_main(self):
        e = self.e
        c = self.c
        D, E = c["D"], c["E"]
        R = D + 2
        t, L = self.vT, self.vLane
        vRd, sRm = self.vRd, self.sRm
        rpd = [(f"s_add_u32 m0, s{sRm}, {RED0 + bb*(2048 - 128)}",
                lambda bb=bb: e.vmop(f"buffer_load_dwordx4 v{vRd}, {sr(self.srdW2, 4)}, 0 offen offset:{bb*128} lds", "rpd")) for bb in range(2)]
        first = self.dma_list(0) + self.dma_list(1) + self.dma_list(2)
        k = 11 * c["rpv"] + c["rpos"]
        first = first[:k] + rpd + first[k:]
        npre = c["npre"]
        assert npre <= 24
        def emit_now(items):
            for m0, f in items:
                if m0:
                    e(m0 + "\ns_nop 0")
                f()
        emit_now(first[:c["pre0"]])
        self.acc = e.v(NU * 8, 4)
        self.xr = e.v(R * 4, 4)
        NW = 5
        self.wf = e.v(8 * NW, 4)
        vXa, vWa = e.v(6), e.v(3)
        self.vHs, vRs = e.v(), e.v()
        self.tmp = e.v(8, 4)
        self.outb = e.v(8, 4)
        self.sK, self.sHo, sRf = e.s(), e.s(), e.s()
        self.publish_token()
        self.slab_off(2)
        e(f"v_and_b32 v{t}, 15, v{L}\nv_bfe_u32 v{t+1}, v{L}, 1, 3\nv_lshrrev_b32 v{t+2}, 4, v{L}\nv_xor_b32 v{t+1}, v{t+1}, v{t+2}")
        e(f"v_lshlrev_b32 v{t}, 7, v{t}\nv_lshl_add_u32 v{vXa}, v{t+1}, 4, v{t}\nv_xor_b32 v{vXa+1}, 64, v{vXa}")
        self.tr_lane_addr(vWa, 4096, 1024, self.sWave)
        e(f"v_add_u32 v{vWa}, {XS}, v{vWa}\nv_add_u32 v{vWa+2}, {2*STAGE}, v{vWa}")
        emit_now(first[c["pre0"]:npre])
        vq = list(first[npre:])
        mark = len(e.L)
        tsave = (e.t, e.tm, e.tv)
        self.slab_off(3)
        for st in (1, 2):
            e(f"v_add_u32 v{vXa+2*st}, {st*STAGE}, v{vXa}\nv_add_u32 v{vXa+2*st+1}, {st*STAGE}, v{vXa+1}")
        e(f"v_add_u32 v{vWa+1}, {STAGE}, v{vWa}")
        self.late_srds()
        sWi, sKap, sCp = self.sWi, self.sKap, self.sCp
        e(f"s_mul_i32 s{sRf}, s{sWi}, 137\ns_lshr_b32 s{sRf}, s{sRf}, 13\ns_mul_i32 s{sRf}, s{sRf}, 4\ns_add_u32 s{sRf}, s{sRf}, s{sWi}")
        e(f"s_lshl_b32 s{sRf}, s{sRf}, 4\ns_add_u32 s{sRf}, s{sRf}, {FR_OFF}")
        e(f"s_lshl_b32 s{self.sC}, s{sCp}, 3\ns_add_u32 s{self.sC}, s{self.sC}, s{self.sWave}\ns_mul_i32 s{self.sC}, s{self.sC}, 49152")
        e(f"s_lshl_b32 s{self.sB}, s{sKap}, 10\ns_add_u32 s{self.sC}, s{self.sC}, s{self.sB}")
        e(f"v_lshlrev_b32 v{vRs}, 4, v{L}\nv_add_u32 v{vRs}, s{self.sC}, v{vRs}")
        e(f"s_mov_b32 s{self.sHo}, 196608")
        e("MARKR:")
        e("MARK1:")
        self.slab_off(4)
        e("MARK2:")
        for sx in range(5, 10):
            self.slab_off(sx)
        e("MARK3:")
        e(f"s_mov_b32 s{self.sK}, 0xbfb8aa3b")
        e(f"v_bfe_u32 v{t}, v{L}, 4, 1\nv_mul_u32_u24 v{self.vHs}, 49152, v{t}")
        e(f"v_bfe_u32 v{t}, v{L}, 5, 1\nv_lshl_add_u32 v{self.vHs}, v{t}, 8, v{self.vHs}")
        e(f"v_and_b32 v{t}, 15, v{L}\nv_lshl_add_u32 v{self.vHs}, v{t}, 4, v{self.vHs}")
        e(f"s_mul_i32 s{self.sA}, s{self.sRb}, {NU*49152}\ns_lshl_b32 s{self.sB}, s{self.sCh}, 11\ns_add_u32 s{self.sA}, s{self.sA}, s{self.sB}")
        e(f"s_lshl_b32 s{self.sB}, s{self.sWave}, 9\ns_add_u32 s{self.sA}, s{self.sA}, s{self.sB}")
        e(f"v_add_u32 v{self.vHs}, s{self.sA}, v{self.vHs}")
        e(f"s_lshr_b32 s{self.sA}, s{self.sXcd}, 1\ns_mul_i32 s{self.sB}, s{self.sA}, 6\ns_sub_u32 s{self.sB}, s{self.sCh}, s{self.sB}")
        e(f"s_lshl_b32 s{self.sC}, s{self.sRb}, 2\ns_add_u32 s{self.sA}, s{self.sA}, s{self.sC}\ns_lshl_b32 s{self.sA}, s{self.sA}, 10")
        e(f"s_lshl_b32 s{self.sB}, s{self.sB}, 7")
        e(f"s_add_u32 s{self.sFl}, s{self.sA}, s{self.sB}")
        self.phase2_setup()
        e("MARK5:")
        lines = [l.strip() for l in e.L[mark:]]
        del e.L[mark:]
        e.t, e.tm, e.tv = tsave
        setup = []
        for l in lines:
            if l.split()[0] in ("s_cselect_b32", "s_addc_u32", "s_subb_u32"):
                setup[-1] += "\n" + l
            else:
                setup.append(l)

        def setup_upto(m):
            while m in setup:
                it = setup.pop(0)
                if not it.startswith("MARK"):
                    e(it)

        seq = [(u, s, ks) for s in range(8) for ks in range(2) for u in range(NU)]
        k = c["tail"]
        seq += [(u, 8, ks) for ks in range(2) for u in range(k, NU)]
        for u in range(NU):
            if u < k:
                seq += [(u, 8, 0), (u, 8, 1)]
            seq += [(u, 9, 0), (u, 9, 1)]
        N = len(seq)
        first_use = {s: min(n for n in range(N) if seq[n][1] == s) for s in range(10)}
        last_use = {u: max(n for n in range(N) if seq[n][0] == u) for u in range(NU)}
        bpos = {s: first_use[s] - (D - E) for s in range(1, 10)}
        if bpos[9] <= bpos[8] + 1:
            bpos[9] = bpos[8]

        def xread(n):
            u, s, ks = seq[n]
            e.ldsop(f"ds_read_b128 {vr(self.xr + (n % R)*4, 4)}, v{vXa + 2*(s % NSTAGE) + ks} offset:{u*2048}", ("x", n))

        def wbuf(s, ks):
            return self.wf + ((2 * s + ks) % NW) * 8

        def wread(s, ks, m, h):
            e.ldsop(f"ds_read_b64_tr_b16 {vr(wbuf(s, ks) + m*4 + h*2, 2)}, v{vWa + s % NSTAGE} offset:{ks*8192 + m*2048 + h*512}", ("w", s, ks))

        wneed, wlast = {}, {}
        for n, (u, s, ks) in enumerate(seq):
            wneed.setdefault((s, ks), n)
            wlast[(s, ks)] = n
        lq = []

        def validate(sx):
            for ks in range(2):
                for m in range(2):
                    for h in range(2):
                        lq.append((wneed[(sx, ks)], 0, ("w", sx, ks, m, h)))
            for n in range(N):
                if seq[n][1] == sx:
                    lq.append((n, 1, ("x", n)))
            lq.sort(key=lambda z: (z[0], z[1]))

        def lds_ok(it, n):
            if it[2][0] == "x":
                return it[0] <= n + R - 2
            if it[2][0] == "r":
                return True
            _, sx, ks, m, h = it[2]
            prev = 2 * sx + ks - NW
            return prev < 0 or wlast[(prev // 2, prev % 2)] < n

        def lds_issue(it):
            lq.remove(it)
            if it[2][0] == "x":
                xread(it[2][1])
            elif it[2][0] == "r":
                _, bb, h = it[2]
                e.ldsop(f"ds_read_b64_tr_b16 {vr(self.outb + 4*bb + 2*h, 2)}, v{vWa+2} offset:{RED0 - XS - 2*STAGE + bb*2048 + h*512}", ("r", bb))
            else:
                wread(*it[2][1:])

        self.stamp()
        e.wait(vm=[("d", 0)] + (["rpd"] if c["rpv"] == 0 else []))
        e("s_barrier")
        self.stamp()
        validate(0)
        while lq[0][0] < D:
            lds_issue(lq[0])
        epi = []
        st = dict(m0=False, vslot=0, tn=0, tv=32, epi=0)
        done_units = 0

        def run_events():
            while vq and vq[0][0] == "event":
                vq.pop(0)[1]()

        def vm_issue():
            run_events()
            m0, f = vq.pop(0)
            m0 = None if m0 and m0.startswith("hguard") else m0
            if m0 and not st["m0"]:
                e(m0 + "\ns_nop 0")
            f()
            st["m0"] = False
            st["tn"] = max(st["tn"], e.t - 12 - 24) + st["tv"]
            run_events()

        def gap(n, isA):
            used = None
            st["vslot"] += 1
            head = lq[0] if lq and lds_ok(lq[0], n) else None
            backlog = sum(1 for m0, _ in vq if m0 and m0.startswith("s_")) > 3 and n < 52
            tv = c["tback"] if backlog else (c["tdma"] if about_dma(vq) else c["tw2"])
            st["tv"] = tv
            vm_ready = vq and (vq[0][0] is None or st["m0"] or (vq[0][0].startswith("hguard") and st["epi"] >= int(vq[0][0][6:]))) and e.t >= st["tn"]
            if head and head[0] - n <= c["crit"]:
                lds_issue(head)
                used = "l"
                if backlog and vm_ready:
                    vm_issue()
                    used = "v"
            elif vm_ready:
                vm_issue()
                used = "v"
            else:
                cand = [it for it in lq[:24] if lds_ok(it, n) and (it[2][0] in "wr" or it[0] - n <= D + (1 if isA else 0))]
                if cand:
                    lds_issue(cand[0])
                    used = "l"
            if used != "v" and vq and vq[0][0] and vq[0][0].startswith("s_") and not st["m0"]:
                e(vq[0][0])
                st["m0"] = True
            elif used != "v" and setup:
                for _ in range(1 if used else 2):
                    if setup:
                        it = setup.pop(0)
                        if not it.startswith("MARK"):
                            e(it)

        def pop_epi(budget):
            while epi and budget > 0:
                it = epi.pop(0)
                if callable(it):
                    it()
                    budget -= 2
                elif it[0] == "mark":
                    st["epi"] = it[1]
                    if c["stamps"] == 3 and it[1] in (3, 6, 9):
                        self.stamp()
                else:
                    e(it[1])
                    budget -= it[0]

        def store_pair(pr):
            def f():
                ob = self.outb + (pr & 1) * 4
                e(f"s_mov_b32 s{self.sHo}, {pr*2*49152}\ns_nop 0")
                e(f"v_permlane16_swap_b32 v{ob}, v{ob+2}\nv_permlane16_swap_b32 v{ob+1}, v{ob+3}")
                if 2 * pr + 1 >= NU:
                    e("s_mov_b32 exec_lo, 0xffff\ns_mov_b32 exec_hi, 0xffff")
                e.vmop(f"buffer_store_dwordx4 {vr(ob, 4)}, v{self.vHs}, {sr(self.srdH, 4)}, s{self.sHo} offen {c['stf']}", ("hst", pr))
                if 2 * pr + 1 >= NU:
                    e("s_mov_b64 exec, -1")
            return f

        def flag_item(pr, stage):
            return lambda: self.publish_h(pr, stage)

        def unit_done(u):
            epi.extend(self.epi_ops(u))
            epi.append(("mark", u + 1))
            if u % 2 == 1 or u == NU - 1:
                epi.append(store_pair(u // 2))
            if u == c["fA"]:
                epi.append(flag_item(1, 1))
            if u == c["fB"]:
                epi.append(flag_item(3, 2))
            if u == NU - 1 and c["fC"] < 0:
                epi.append(flag_item(4, 3))

        def mfma(n, m):
            u, s, ks = seq[n]
            a = self.acc + u * 8 + m * 4
            cin = "0" if (s == 0 and ks == 0) else vr(a, 4)
            if not (c.get("no_mfma") and s >= 1):
                e(f"v_mfma_f32_16x16x32_bf16 {vr(a, 4)}, {vr(wbuf(s, ks) + m*4, 4)}, {vr(self.xr + (n % R)*4, 4)}, {cin}")

        def repack_valid(n):
            for bb in range(2):
                for h in range(2):
                    lq.append((n + 14, 2, ("r", bb, h)))
            lq.sort(key=lambda z: (z[0], z[1]))

            def rstore(bb):
                def f():
                    setup_upto("MARKR:")
                    while [it for it in lq if it[2][0] == "r"]:
                        lds_issue([it for it in lq if it[2][0] == "r"][0])
                    e.wait(lds=[("r", bb)])
                    e.vmop(f"buffer_store_dwordx4 {vr(self.outb + 4*bb, 4)}, v{vRs}, {sr(self.srdP, 4)}, {'s%d' % self.sHo if bb else 0} offen {c['stf']}", "rps")
                return f
            k = min(c["rsk"], len(vq))
            vq[k:k] = [(None, rstore(0)), (None, rstore(1))]
        if c["rpv"] == 0:
            repack_valid(0)
        tail0 = last_use[0]
        e.wait(lds=[("x", 0), ("w", 0, 0)])
        for n in range(N):
            u, s, ks = seq[n]
            intail = n > tail0 + 2
            mfma(n, 0)
            bars = [sb for sb in range(1, 10) if bpos[sb] == n]
            if bars:
                sb, s0 = max(bars), min(bars)
                setup_upto(f"MARK{s0}:")
                while len([x for x in e.vm if x == ("d", sb)]) < 11:
                    vm_issue()
                rel = s0 + 2 <= 9
                extra = []
                if s0 == c["rpub"]:
                    extra = ["rps", "tok"]
                    while "tok" not in e.vm:
                        vm_issue()
                e.wait(vm=[("d", sb)] + extra, lds_all=rel)
                e("s_barrier")
                if c["stamps"] and (c["stamps"] == 2 or sb in (1, 5, 8, 9)):
                    self.stamp()
                for sx in bars:
                    validate(sx)
                if s0 == c["rpub"]:
                    self.tok_check("L_tok")
                    self.publish("L_norf", sRf)
                if s0 == c["m1at"]:
                    e(f"s_or_b32 s{self.sSpin}, s2, s{self.sWave}\ns_movk_i32 s{sRf}, 128")
                    self.publish("L_nom1", sRf, self.srdD, self.sSpin)
                if s0 == c["rpv"]:
                    repack_valid(n)
                if s0 == c["rpub"] - 1:
                    vq.insert(1, (None, lambda: e.vmop(self.tok_txt(), "tok")))
                held = [it for it in vq if getattr(it[1], "__name__", "") in ("w2", "chk", "chk0")]
                vq[:] = [it for it in vq if it not in held]
                if s0 == c["w2at"] and not c.get("p1only"):
                    vq.append((None, lambda: e.vmop(self.poll_txt(self.vFr, 0), "pollr")))
                    held = self.seam_queue()
                if rel:
                    vq += self.dma_list(s0 + 2)
                vq += held
            else:
                gap(n, False)
                if intail:
                    pop_epi(c.get("epiB", 4))
            mfma(n, 1)
            if n + 1 < N:
                u2, s2, ks2 = seq[n + 1]
                while lq and lq[0][0] <= n + 1:
                    assert lds_ok(lq[0], n + 1)
                    lds_issue(lq[0])
                e.wait(lds=[("x", n + 1), ("w", s2, ks2)])
            gap(n, True)
            while done_units < NU and last_use[done_units] + 2 <= n:
                unit_done(done_units)
                done_units += 1
            if intail:
                pop_epi(c.get("epiA", 4))
        self.stamp()
        if c.get("p1only"):
            self.write_stamps()
            e("s_endpgm")
        e("s_nop 3")
        while done_units < NU:
            unit_done(done_units)
            done_units += 1
        while epi:
            pop_epi(2)
            if vq and e.t - e.tv >= c["tw2"] - 12 and not (vq[0][0] or "").startswith(f"hguard{st['epi'] + 1}"):
                vm_issue()
        self.stamp()
        k = 0
        while vq and not c.get("p1only"):
            if k == c["fC"]:
                flag_item(4, 3)()
            vm_issue()
            k += 1
        assert k > c["fC"] or c.get("p1only")
        self.stamp()

    def phase2_setup(self):
        e = self.e
        c = self.c
        t, L = self.vT, self.vLane
        if not hasattr(self, "sM2"):
            self.sM2, self.sNb, self.sSoP = e.s(), e.s(), e.s()
            self.sU, self.sFo, self.sRow = e.s(4), e.s(4), e.s(4)
            self.vP, self.vHl, self.vFr, self.vFh = e.v(), e.v(), e.v(), e.v()
            self.vRw, self.vRa, self.vRb, self.vOa, self.vOb = (e.v() for _ in range(5))
            self.sSoH = e.s()
            self.sGo = e.s(3)
        if c["map2"] == "8x4":
            e(f"s_and_b32 s{self.sM2}, s{self.sXcd}, 3\ns_lshl_b32 s{self.sM2}, s{self.sM2}, 3\ns_and_b32 s{self.sA}, s{self.sSlot}, 7\ns_add_u32 s{self.sM2}, s{self.sM2}, s{self.sA}")
            e(f"s_lshr_b32 s{self.sNb}, s{self.sXcd}, 2\ns_lshl_b32 s{self.sNb}, s{self.sNb}, 2\ns_lshr_b32 s{self.sA}, s{self.sSlot}, 3\ns_add_u32 s{self.sNb}, s{self.sNb}, s{self.sA}")
        else:
            e(f"s_lshl_b32 s{self.sM2}, s{self.sXcd}, 2\ns_and_b32 s{self.sA}, s{self.sSlot}, 3\ns_add_u32 s{self.sM2}, s{self.sM2}, s{self.sA}")
            e(f"s_lshr_b32 s{self.sNb}, s{self.sSlot}, 2")
        e(f"s_mul_i32 s{self.sA}, s{self.sWave}, 12288\nv_lshlrev_b32 v{t}, 4, v{L}\nv_add_u32 v{self.vHl}, s{self.sA}, v{t}")
        e(f"s_mul_i32 s{self.sB}, s{self.sNb}, {5*49152}\nv_add_u32 v{self.vP}, s{self.sB}, v{self.vHl}")
        e(f"v_min_u32 v{t}, 59, v{L}\nv_lshlrev_b32 v{t}, 4, v{t}\ns_lshl_b32 s{self.sA}, s{self.sWave}, 10\ns_add_u32 s{self.sA}, s{self.sA}, {FR_OFF}\nv_add_u32 v{self.vFr}, s{self.sA}, v{t}")
        e(f"v_min_u32 v{t}, 5, v{L}\nv_lshlrev_b32 v{t}, 7, v{t}\ns_lshl_b32 s{self.sA}, s{self.sWave}, 10\nv_add_u32 v{self.vFh}, s{self.sA}, v{t}")
        for j in range(4):
            e(f"s_add_u32 s{self.sA}, s{self.sM2}, {32*j}")
            e(f"s_mul_i32 s{self.sB}, s{self.sA}, 205\ns_lshr_b32 s{self.sB}, s{self.sB}, 11")
            e(f"s_mul_i32 s{self.sC}, s{self.sB}, 10\ns_sub_u32 s{self.sC}, s{self.sA}, s{self.sC}")
            if j == 3:
                e(f"s_cmp_ge_u32 s{self.sA}, 119\ns_cselect_b32 s{self.sU+3}, 12, 11\ns_cselect_b32 s{self.sRow+3}, 9, 0")
                e(f"s_sub_u32 s{self.sRow+3}, s{self.sA}, s{self.sRow+3}\ns_sub_u32 s{self.sRow+3}, s{self.sRow+3}, 110")
                e(f"s_cmp_ge_u32 s{self.sA}, 110\ns_cselect_b32 s{self.sB}, s{self.sU+3}, s{self.sB}\ns_cselect_b32 s{self.sC}, s{self.sRow+3}, s{self.sC}")
            e(f"s_lshl_b32 s{self.sFo+j}, s{self.sC}, 12")
            if j:
                e(f"s_add_u32 s{self.sFo+j}, s{self.sFo+j}, {j*FSTAGE}")
            e(f"s_mul_i32 s{self.sC}, s{self.sC}, 13\ns_add_u32 s{self.sC}, s{self.sC}, s{self.sB}")
            e(f"s_mul_i32 s{self.sU+j}, s{self.sC}, 49152\ns_mul_i32 s{self.sRow+j}, s{self.sC}, 20480")
        if c["grot"]:
            e(f"s_add_u32 s{self.sA}, s{self.sM2}, s{self.sNb}\ns_mul_i32 s{self.sB}, s{self.sA}, 86\ns_lshr_b32 s{self.sB}, s{self.sB}, 8\ns_mul_i32 s{self.sB}, s{self.sB}, 3\ns_sub_u32 s{self.sA}, s{self.sA}, s{self.sB}")
            e(f"s_lshl_b32 s{self.sGo}, s{self.sA}, 12")
            for g in (1, 2):
                e(f"s_add_u32 s{self.sGo+g}, s{self.sGo+g-1}, 4096\ns_cmp_eq_u32 s{self.sGo+g}, 12288\ns_cselect_b32 s{self.sGo+g}, 0, s{self.sGo+g}")
        else:
            for g in range(3):
                e(f"s_mov_b32 s{self.sGo+g}, {g*4096}")
        e(f"v_lshrrev_b32 v{t}, 4, v{L}\nv_mul_u32_u24 v{t}, 320, v{t}\nv_and_b32 v{t+1}, 15, v{L}\nv_lshl_add_u32 v{t}, v{t+1}, 4, v{t}")
        e(f"s_mul_i32 s{self.sA}, s{self.sWave}, 6400\nv_add_u32 v{self.vRw}, s{self.sA}, v{t}")
        e(f"v_bfe_u32 v{t}, v{L}, 2, 2\nv_mul_u32_u24 v{t+1}, 320, v{t}\nv_and_b32 v{t+2}, 3, v{L}\ns_lshl_b32 s{self.sA}, s{self.sWave}, 2\nv_add_u32 v{t+2}, s{self.sA}, v{t+2}")
        e(f"v_lshl_add_u32 v{t+1}, v{t+2}, 4, v{t+1}\nv_add_u32 v{self.vRb}, 5120, v{t+1}")
        e(f"v_lshrrev_b32 v{t+3}, 4, v{L}\nv_mul_u32_u24 v{self.vRa}, 1280, v{t+3}\nv_add_u32 v{self.vRa}, v{self.vRa}, v{t+1}")
        e(f"v_mul_u32_u24 v{t+2}, 1280, v{t+2}\nv_lshl_add_u32 v{t+2}, v{t}, 3, v{t+2}\ns_mul_i32 s{self.sA}, s{self.sNb}, 160\nv_add_u32 v{self.vOb}, s{self.sA}, v{t+2}")
        e(f"v_lshl_add_u32 v{self.vOa}, v{t+3}, 5, v{self.vOb}")

    def w2p_list(self):
        e = self.e
        out = []
        for g in range(3):
            for tt in range(5):
                for k4 in range(4):
                    ks = g * 4 + k4

                    def w2(tt=tt, ks=ks, g=g, k4=k4):
                        if k4 == 0:
                            e(f"s_add_u32 s{self.sSoP}, s{self.sGo+g}, {tt*49152}")
                        e.vmop(f"buffer_load_dwordx4 {ar((tt*12 + ks)*4, 4)}, v{self.vP}, {sr(self.srdP, 4)}, s{self.sSoP} offen offset:{k4*1024} {self.c['ldf']}", ("p", tt, ks))
                    out.append(w2)
        return out

    def hload(self, i):
        e = self.e
        j, ks = divmod(i, 12)
        if ks % 4 == 0:
            e(f"s_add_u32 s{self.sSoH}, s{self.sU+j}, s{self.sGo + (ks >> 2)}")
        e.vmop(f"buffer_load_dwordx4 {vr(self.hr + (i % self.c['HR'])*4, 4)}, v{self.vHl}, {sr(self.srdH, 4)}, s{self.sSoH} offen offset:{(ks & 3)*1024} {self.c['ldf']}", ("h", i))

    def pollh(self, j):
        self.e.vmop(self.poll_txt(self.vFh, f"s{self.sFo+j}"), ("pollh", j))

    def checkh(self, j, sfx=""):
        self.e.wait(vm=[("pollh", j)])
        self.poll_check(f"L_ph{j}{sfx}", self.vFh, f"s{self.sFo+j}")

    def seam_queue(self, sfx=""):
        e = self.e
        c = self.c
        self.hr = self.acc

        def chk():
            e.wait(vm=["pollr"])
            self.poll_check("L_pr" + sfx, self.vFr, 0)
            self.stamp()
            if sfx and c["l2pf"]:
                t, L = self.vT, self.vLane
                e(f"s_lshr_b32 s{self.sA}, s{self.sXcd}, 2\ns_lshl_b32 s{self.sA}, s{self.sA}, 2\ns_sub_u32 s{self.sB}, s{self.sSlot}, 30\ns_lshl_b32 s{self.sB}, s{self.sB}, 1")
                e(f"s_add_u32 s{self.sA}, s{self.sA}, s{self.sB}\nv_lshrrev_b32 v{t}, 5, v{L}\nv_add_u32 v{t}, s{self.sA}, v{t}\nv_mul_u32_u24 v{t}, {5*49152}, v{t}")
                e(f"v_and_b32 v{t+1}, 31, v{L}\nv_lshl_add_u32 v{t}, v{t+1}, 7, v{t}\ns_mul_i32 s{self.sA}, s{self.sWave}, 12288\nv_add_u32 v{t}, s{self.sA}, v{t}")
                for g in range(3):
                    for tt in range(5):
                        if g * 5 + tt >= c["l2pf"]:
                            continue
                        e(f"s_mov_b32 s{self.sA}, {tt*49152 + g*4096}")
                        e.vmop(f"buffer_load_dword v{t+2}, v{t}, {sr(self.srdP, 4)}, s{self.sA} offen {c['ldf']}", "l2pf")
                self.stamp()
        q = [("event", chk)]
        w2l = self.w2p_list()
        hf = c["hfirst"]
        q += [(None, f) for f in w2l[:hf]]

        def w2():
            self.pollh(0)
        q.append((None, w2))
        pd = c["pd0"]
        q += [(None, f) for f in w2l[hf:hf + pd]]

        def chk0():
            self.checkh(0, sfx)
            if not sfx:
                self.stamp()
        q.append(("event", chk0))
        rest = w2l[hf + pd:]
        for i in range(c["PF"]):
            def w2(i=i):
                self.hload(i)
            q.append((f"hguard{i // 2 + 1}", w2))
            if i + 1 == c["pollks"]:
                def w2():
                    self.pollh(1)
                q.append((None, w2))
            for _ in range(2):
                if rest:
                    q.append((None, rest.pop(0)))
        q += [(None, f) for f in rest]
        return q

    def phase2_main(self):
        e = self.e
        c = self.c
        HR, PF = c["HR"], c["PF"]
        assert PF < 12 and HR <= 16
        hr = self.hr
        acc = self.wf
        ra, rb, obase = self.xr, self.xr + 16, self.acc + 64
        self.vRwH, self.vRaH, self.vRbH = self.xr + 36, self.xr + 37, self.xr + 38
        stores = []
        seq = [(j, ks) for j in range(4) for ks in range(12)]
        hload, pollh, checkh = self.hload, self.pollh, self.checkh
        hn = PF
        side = []

        def reduce_items(j, last):
            buf = RED0 if j % 2 == 0 else 0
            a0 = acc + (j & 1) * 20
            ob = obase + 4 * j
            it = []
            for tt in range(5):
                it.append(lambda tt=tt: e.ldsop(f"ds_write_b128 v{self.vRw}, {vr(a0 + tt*4, 4)} offset:{buf + tt*1280}" if buf < 65536 - 6400 else
                                               f"ds_write_b128 v{self.vRwH}, {vr(a0 + tt*4, 4)} offset:{tt*1280}", ("rw", j)))
                if not last and c["wspace"]:
                    it.append(None)
            if not last:
                it += [None] * 2

            def bar():
                e.wait(lds=[("rw", j)])
                e("s_barrier")
            it.append(bar)
            for src in range(4):
                for nm, base, vb, vh in (("a", ra, self.vRa, self.vRaH), ("b", rb, self.vRb, self.vRbH)):
                    it.append(lambda src=src, nm=nm, base=base, vb=vb, vh=vh: e.ldsop(
                        f"ds_read_b128 {vr(base + src*4, 4)}, v{vh if buf else vb} offset:{src*6400}", ("rr", j, nm, src)))
            if not last:
                it += [None] * 4
            for nm, base in (("a", ra), ("b", rb)):
                for src in range(1, 4):
                    for half in range(2):
                        def ad(nm=nm, base=base, src=src, half=half):
                            e.wait(lds=[("rr", j, nm, src)])
                            for i2 in (2 * half, 2 * half + 1):
                                e(f"v_add_f32 v{base+i2}, v{base+i2}, v{base+src*4+i2}")
                        it.append(ad)
                o = ob + (0 if nm == "a" else 2)

                def sta():
                    e.vmop(f"buffer_store_dwordx2 {vr(ob, 2)}, v{self.vOa}, {sr(self.srdOut, 4)}, s{self.sRow+j} offen {c['outflags']}", ("o", j))

                def stb():
                    e("s_mov_b64 exec, 0xffff")
                    e.vmop(f"buffer_store_dwordx2 {vr(ob+2, 2)}, v{self.vOb}, {sr(self.srdOut, 4)}, s{self.sRow+j} offen offset:128 {c['outflags']}", ("o", j))
                    e("s_mov_b64 exec, -1")

                def cvt(base=base, o=o, nm=nm):
                    e(f"v_cvt_pk_bf16_f32 v{o}, v{base}, v{base+1}\nv_cvt_pk_bf16_f32 v{o+1}, v{base+2}, v{base+3}")
                    stores.append(sta if nm == "a" else stb)
                it.append(cvt)
            return it
        e(f"v_add_u32 v{self.vRwH}, {RED0}, v{self.vRw}\nv_add_u32 v{self.vRaH}, {RED0}, v{self.vRa}\nv_add_u32 v{self.vRbH}, {RED0}, v{self.vRb}")
        e.wait(vm=[("h", 0)] + [("p", tt, 0) for tt in range(5)])
        self.stamp()
        for i, (j, ks) in enumerate(seq):
            for tt in range(5):
                a = acc + (j & 1) * 20 + tt * 4
                cin = "0" if ks == 0 else vr(a, 4)
                e(f"v_mfma_f32_16x16x32_bf16 {vr(a, 4)}, {ar((tt*12 + ks)*4, 4)}, {vr(hr + (i % HR)*4, 4)}, {cin}")
                if tt == 0 and hn < 48:
                    hload(hn)
                    hn += 1
                elif tt == 0 and stores:
                    stores.pop(0)()
                elif tt == 1 and i == c["fD"]:
                    self.publish_h(6, 4)
                elif tt == 2 and hn < 48 and seq[hn][1] >= c['pollks'] and seq[hn][0] < 3 and ("pollh", seq[hn][0] + 1) not in e.vm:
                    pollh(seq[hn][0] + 1)
                elif tt == 3 and hn < 48 and seq[hn][1] == 0:
                    checkh(seq[hn][0])
                else:
                    if tt == 4 and i + 1 < 48:
                        e.wait(vm=[("h", i + 1)] + [("p", t2, seq[i + 1][1]) for t2 in range(5)])
                    if side and ks >= 1:
                        it = side.pop(0)
                        if it:
                            it()
            if ks == 11:
                if c["stamps"] == 3 and j < 3:
                    self.stamp()
                assert not side, len(side)
                side = reduce_items(j, j == 3)
        self.stamp()
        e("s_nop 6")
        for k, it in enumerate(side):
            if it:
                it()
            if stores:
                stores.pop(0)()
        if c["stamps"]:
            self.stamp()
            e.wait(vm_all=True)
            self.stamp()

    def spare_prefetch(self):
        e = self.e
        c = self.c
        t, L = self.vT, self.vLane
        vx, vw, vq2, junk = self.acc, self.acc + 1, self.acc + 2, self.acc + 3
        gw = self.sA
        e(f"s_lshl_b32 s{gw}, s{self.sXcd}, 1\ns_add_u32 s{gw}, s{gw}, s{self.sSlot}\ns_sub_u32 s{gw}, s{gw}, 30\ns_lshl_b32 s{gw}, s{gw}, 2\ns_add_u32 s{gw}, s{gw}, s{self.sWave}")
        e(f"s_lshl_b32 s{self.sB}, s{gw}, 5\nv_lshrrev_b32 v{t}, 1, v{L}\nv_add_u32 v{t}, s{self.sB}, v{t}\nv_mul_u32_u24 v{t}, 1280, v{t}")
        e(f"v_and_b32 v{t+1}, 1, v{L}\nv_lshl_add_u32 v{vx}, v{t+1}, 7, v{t}")
        e(f"s_mul_i32 s{self.sB}, s{gw}, 6144\nv_min_u32 v{t}, 47, v{L}\nv_lshlrev_b32 v{t}, 7, v{t}\nv_add_u32 v{vw}, s{self.sB}, v{t}")
        e(f"s_mul_i32 s{self.sB}, s{gw}, 30720\nv_min_u32 v{t}, 59, v{L}\nv_lshlrev_b32 v{t}, 7, v{t}\nv_add_u32 v{vq2}, s{self.sB}, v{t}")
        self.after_kernarg("s")
        e(f"s_mov_b32 s{self.srdW3+2}, {W_BYTES}")
        self.srd_const(self.srdW2, W_BYTES)
        self.late_srds()
        for it in c["spf"]:
            if it == "w2":
                for i in range(4):
                    e(f"s_mov_b32 s{self.sB}, {i*7680}\nbuffer_load_dword v{junk}, v{vq2}, {sr(self.srdW2, 4)}, s{self.sB} offen")
            else:
                e(f"s_mov_b32 s{self.sB}, {it*393216}")
                e(f"buffer_load_dword v{junk}, v{vw}, {sr(self.srdW1, 4)}, s{self.sB} offen")
                e(f"buffer_load_dword v{junk}, v{vw}, {sr(self.srdW3, 4)}, s{self.sB} offen")
                e(f"buffer_load_dword v{junk}, v{vx}, {sr(self.srdX, 4)}, 0 offen offset:{it*256}")
        self.phase2_setup()

    def build(self):
        e = self.e
        c = self.c
        head = HEADER + f"; @launch grid=(256,1,1) block=(256,1,1) lds={LDS_TOTAL}\n"
        self.prologue()
        mark = len(e.L)
        self.phase2_setup()
        del e.L[mark:]
        vmark, smark = e.vnext, e.snext
        e(f"s_cmp_ge_u32 s{self.sSlot}, 30\ns_cbranch_scc1 L_spare")
        self.phase1_setup()
        self.after_kernarg("w")
        self.srd_adj(self.srdW3, -2048)
        self.phase1_main()
        e("L_join:")
        if not c.get("p1only"):
            self.phase2_main()
            self.write_stamps()
        e(f"L_end_{KN}:\ns_endpgm")
        e("L_spare:")
        e.reset_counts()
        self.spare_prefetch()
        if c.get("p1only"):
            e("s_waitcnt vmcnt(0)\ns_endpgm")
        e(f"s_mov_b32 s{self.sFl}, {FR_OFF + 8192}")
        e.vmop(self.tok_txt(), "tok")
        e("s_waitcnt vmcnt(0)")
        self.tok_check("L_tok2")
        m1 = f"buffer_load_dword v{self.vPoll}, off, {sr(self.srdD, 4)}, 0 offset:128 sc1"
        e(m1 + "\ns_waitcnt vmcnt(0)")
        self.spin("L_m1s", m1, lambda: e(f"v_cmp_ne_u32 vcc, v{self.vPoll}, v{self.vTok}"))
        e.vmop(self.poll_txt(self.vFr, 0), "pollr")
        for _, f in self.seam_queue("s"):
            f()
        e("s_waitcnt vmcnt(0)")
        e("s_branch L_join")
        e("L_codeend:")
        body = "\n".join(e.L)
        kd = f""".section .rodata,"a"
.p2align 6
.amdhsa_kernel {KN}
  .amdhsa_next_free_vgpr 512
  .amdhsa_next_free_sgpr 102
  .amdhsa_accum_offset 256
  .amdhsa_group_segment_fixed_size 0
  .amdhsa_kernarg_size 56
  .amdhsa_user_sgpr_count 2
  .amdhsa_user_sgpr_kernarg_segment_ptr 1
  .amdhsa_system_sgpr_workgroup_id_x 1
  .amdhsa_float_denorm_mode_32 3
.end_amdhsa_kernel
"""
        return head + '.amdgcn_target "amdgcn-amd-amdhsa--gfx950"\n.text\n' + body + "\n" + kd


def about_dma(vq):
    return bool(vq) and getattr(vq[0][1], "__name__", "") != "w2"


def parse_kw(args):
    kw = {}
    for a in args:
        k, v = a.split("=", 1)
        try:
            v = eval(v)
        except Exception:
            pass
        kw[k] = v
    return kw


if __name__ == "__main__":
    out = sys.argv[1]
    open(out, "w").write(Gen(**parse_kw(sys.argv[2:])).build())
```

```python
import sys

NAME = "standalone__glu_gated_swiglu__prompt"
KN = NAME + "_kernel"

X_BYTES = 2048 * 640 * 2
W_BYTES = 640 * 1536 * 2
OUT_BYTES = 2048 * 640 * 2
H_BYTES = 128 * 49152
W2P_OFF = 8 << 20
W2P_BYTES = 40 * 49152
FLAG_OFF = 12 << 20
FLAG_BYTES = 262144
FR_OFF = 196608
FSTAGE = 40960
STAMP_OFF = 16 << 20

NU = 13
XS = NU * 2048
STAGE = XS + 16384
NSTAGE = 3
RED0 = NSTAGE * STAGE
TST = 1344
SST = 5 * TST
REDSZ = 4 * SST
LDS_TOTAL = RED0 + REDSZ

HEADER = """; Kernarg layout for this problem (56 bytes, ptrs only, base s[0:1]):
;   offset  24: d_in[3] w2  shape=(1536, 640) dtype=bfloat16 strides=(1280, 2) contiguous=True
"""


class Em:
    def __init__(self):
        self.L = []
        self.reset_counts()
        self.vnext = 1
        self.snext = 4
        self.skip = lambda kind, tag: False
        self.t = self.tm = self.tv = 0

    def __call__(self, s):
        for line in s.split("\n"):
            line = line.strip()
            if line:
                self.L.append(line if line.endswith(":") else "    " + line)
                self.tick(line)

    def tick(self, line):
        op = line.split(" ")[0]
        if op.startswith("v_mfma"):
            self.t = max(self.t, self.tm + 16)
            self.tm = self.t
            self.t += 4
        elif op.startswith("v_"):
            self.t = max(self.t, self.tm + 8) + (8 if op.startswith(("v_exp", "v_rcp", "v_perm")) else 4)
        elif op.startswith(("buffer", "global")):
            self.t += 12
            self.tv = self.t
        elif op.startswith("ds_write"):
            self.t += 16
        elif op.startswith(("s_waitcnt", "s_nop")) or op.endswith(":"):
            self.t += 1
        else:
            self.t += 4

    def v(self, n=1, align=1):
        b = (self.vnext + align - 1) // align * align
        self.vnext = b + n
        assert self.vnext <= 256, "out of arch VGPRs"
        return b

    def s(self, n=1, align=1):
        b = (self.snext + align - 1) // align * align
        self.snext = b + n
        assert self.snext <= 102, "out of SGPRs"
        return b

    def ldsop(self, txt, tag=None):
        if not self.skip("lds", tag):
            self(txt)
        self.lds.append(tag)

    def vmop(self, txt, tag=None):
        if not self.skip("vm", tag):
            self(txt)
        self.vm.append(tag)

    def _need(self, ops, tags):
        idx = -1
        for t in tags:
            c = [i for i, x in enumerate(ops) if x == t]
            assert c, f"tag {t} never issued"
            idx = max(idx, c[-1])
        return idx + 1

    def wait(self, lds=(), vm=(), lds_all=False, vm_all=False):
        parts = []
        n = len(self.vm) if vm_all else (self._need(self.vm, vm) if vm else 0)
        if n > self.vm_done:
            cnt = min(len(self.vm) - n, 63)
            parts.append(f"vmcnt({cnt})")
            self.vm_done = len(self.vm) - cnt
        n = len(self.lds) if lds_all else (self._need(self.lds, lds) if lds else 0)
        if n > self.lds_done:
            cnt = min(len(self.lds) - n, 15)
            parts.append(f"lgkmcnt({cnt})")
            self.lds_done = len(self.lds) - cnt
        if parts:
            self("s_waitcnt " + " ".join(parts))

    def reset_counts(self):
        self.lds, self.vm, self.lds_done, self.vm_done = [], [], 0, 0


def vr(b, n):
    return f"v[{b}:{b+n-1}]" if n > 1 else f"v{b}"


def ar(b, n):
    return f"a[{b}:{b+n-1}]"


def sr(b, n):
    return f"s[{b}:{b+n-1}]" if n > 1 else f"s{b}"


DEF = dict(D=9, E=3, stamps=False, G=5, lead=1, xm=0, map2="8x4", stf="sc1", ldf="sc1", codepf=True, outflags="sc1",
           npre=18, pre0=8, tail=13, PF=9, HR=12, pollks=6, fA=6, fB=10, fC=-1, fD=1, align=12,
           tback=48, tdma=70, tw2=72, crit=3, rpv=1, rpos=0, rpub=3, rsk=8, l2pf=0, w2at=7, sleep=2, grot=0, wspace=1, ssleep=8, rah=3, rlag=1, rpd=8, cpf=None, fastto=1, spf=(2, 3, 4), hfirst=44, pd0=10, epiA=4, epiB=4)


class Gen:
    def __init__(self, **kw):
        self.c = dict(DEF)
        self.c.update(kw)
        self.e = Em()
        c = self.c

        def skip(kind, tag):
            if kind == "vm" and tag in c.get("skipvm", ()):
                return True
            if not isinstance(tag, tuple):
                return False
            if kind == "vm" and tag[0] in c.get("skipvm", ()):
                return True
            if c.get("nohst") and kind == "vm" and tag[0] == "hst":
                return True
            if c.get("noflag") and kind == "vm" and tag[0] in ("flag", "pollh"):
                return True
            if c.get("no_dma") and kind == "vm" and tag[0] == "d" and tag[1] >= 3:
                return True
            if c.get("no_xread") and kind == "lds" and tag[0] == "x" and tag[1] >= 26:
                return True
            return False
        self.e.skip = skip
        self.nstamp = 0

    def stamp(self):
        e = self.e
        if not self.c["stamps"]:
            return
        i = self.nstamp
        self.nstamp += 1
        assert i < 31
        e(f"s_memtime {sr(self.sT, 2)}\ns_memrealtime {sr(self.sT3, 2)}")
        e("s_waitcnt lgkmcnt(0)")
        e.lds_done = len(e.lds)
        e(f"v_writelane_b32 v{self.vStamp}, s{self.sT}, {i}\nv_writelane_b32 v{self.vStamp}, s{self.sT3}, {32 + i}")

    def write_stamps(self):
        e = self.e
        if not self.c["stamps"]:
            return
        keep = self.nstamp
        self.nstamp = 30
        self.stamp()
        self.nstamp = keep
        e(f"s_lshl_b32 s{self.sT}, s2, 2\ns_add_u32 s{self.sT}, s{self.sT}, s{self.sWave}\ns_lshl_b32 s{self.sT}, s{self.sT}, 8")
        e(f"s_add_u32 s{self.sT}, s{self.sT}, {STAMP_OFF}")
        e(f"v_lshlrev_b32 v{self.vT}, 2, v{self.vLane}\nv_add_u32 v{self.vT}, s{self.sT}, v{self.vT}")
        e(f"s_mov_b32 s{self.srdH+2}, 0x10000000")
        e(f"buffer_store_dword v{self.vStamp}, v{self.vT}, {sr(self.srdH, 4)}, 0 offen")
        e("s_waitcnt vmcnt(0)")

    def srd_adj(self, dst, addoff):
        e = self.e
        if addoff > 0:
            e(f"s_add_u32 s{dst}, s{dst}, {addoff}\ns_addc_u32 s{dst+1}, s{dst+1}, 0")
        else:
            e(f"s_sub_u32 s{dst}, s{dst}, {-addoff}\ns_subb_u32 s{dst+1}, s{dst+1}, 0")

    def srd_const(self, dst, nbytes):
        self.e(f"s_mov_b32 s{dst+2}, {nbytes}\ns_mov_b32 s{dst+3}, 0x20000")

    def tr_lane_addr(self, dst, qstride_hi, qstride_lo, sub):
        e = self.e
        t, L = self.vT, self.vLane
        e(f"v_bfe_u32 v{t}, v{L}, 5, 1\nv_mul_u32_u24 v{dst}, {qstride_hi}, v{t}")
        e(f"v_bfe_u32 v{t}, v{L}, 4, 1\nv_mul_u32_u24 v{t+1}, {qstride_lo}, v{t}\nv_add_u32 v{dst}, v{dst}, v{t+1}")
        e(f"v_lshlrev_b32 v{t+1}, 2, v{t}")
        e(f"v_bfe_u32 v{t}, v{L}, 3, 1\nv_lshl_add_u32 v{t+1}, v{t}, 1, v{t+1}")
        e(f"v_bfe_u32 v{t}, v{L}, 1, 1")
        if sub is not None:
            e(f"s_lshl_b32 s{self.sA}, s{sub}, 1\nv_add_u32 v{t}, s{self.sA}, v{t}")
        e(f"v_xor_b32 v{t}, v{t}, v{t+1}\nv_lshl_add_u32 v{dst}, v{t}, 4, v{dst}")
        e(f"v_bfe_u32 v{t}, v{L}, 2, 2\nv_lshl_add_u32 v{dst}, v{t}, 7, v{dst}")
        e(f"v_and_b32 v{t}, 1, v{L}\nv_lshl_add_u32 v{dst}, v{t}, 3, v{dst}")

    def spin(self, label, load, check):
        e = self.e
        if self.c.get("nocheck"):
            return
        check()
        e(f"s_cbranch_vccz {label}_out")
        e(f"s_mov_b32 s{self.sSpin}, 0x40000")
        e(f"{label}_spin:")
        e(f"s_sleep {self.c['ssleep'] if label.endswith('s') else self.c['sleep']}")
        e(load)
        e("s_waitcnt vmcnt(0)")
        check()
        e(f"s_cbranch_vccz {label}_out")
        e(f"s_sub_u32 s{self.sSpin}, s{self.sSpin}, 1\ns_cbranch_scc0 {label}_spin")
        e(f"{label}_out:")

    def tok_txt(self):
        return f"buffer_load_dword v{self.vTok}, off, {sr(self.srdD, 4)}, 0 sc1"

    def tok_check(self, label):
        self.spin(label, self.tok_txt(), lambda: self.e(f"v_cmp_eq_u32 vcc, 0, v{self.vTok}"))

    def poll_txt(self, vaddr, soff):
        return f"buffer_load_dword v{self.vPoll}, v{vaddr}, {sr(self.srdF, 4)}, {soff} offen sc1"

    def poll_check(self, label, vaddr, soff):
        self.spin(label, self.poll_txt(vaddr, soff), lambda: self.e(f"v_cmp_ne_u32 vcc, v{self.vPoll}, v{self.vTok}"))

    def publish(self, label, sreg, srd=None, cond=None):
        e = self.e
        if self.c.get("noflag"):
            return
        e(f"s_cmp_lg_u32 s{self.sWave if cond is None else cond}, 0\ns_cbranch_scc1 {label}")
        e(f"s_mov_b64 exec, 1\nbuffer_store_dword v{self.vTok}, off, {sr(self.srdF if srd is None else srd, 4)}, s{sreg} sc1\ns_mov_b64 exec, -1")
        e(f"{label}:")

    def publish_h(self, pr, stage):
        e = self.e
        e.wait(vm=[("hst", pr)])
        e("s_barrier")
        self.publish(f"L_pub{stage}", self.sFl)
        if stage < 4:
            e(f"s_add_u32 s{self.sFl}, s{self.sFl}, {FSTAGE}")

    def prologue(self):
        e = self.e
        c = self.c
        e(f".globl {KN}\n.p2align {c['align']}\n.type {KN},@function\n{KN}:")
        self.srdX, self.srdW1, self.srdW3, self.srdW2 = (e.s(4, 4) for _ in range(4))
        self.srdOut, self.srdH, self.srdP, self.srdD, self.srdF = (e.s(4, 4) for _ in range(5))
        self.sT, self.sT2 = e.s(2, 2), e.s(2, 2)
        self.sWave, self.sXcd, self.sSlot = e.s(), e.s(), e.s()
        self.sA, self.sB, self.sC, self.sSpin, self.sFl = (e.s() for _ in range(5))
        if c["stamps"]:
            self.vStamp = e.v()
            self.sT3, self.sT4 = e.s(2, 2), e.s(2, 2)
        self.vLane = e.v()
        self.vT = e.v(4, 4)
        self.vTok, self.vPoll = e.v(), e.v()
        e(f"s_cmp_ge_u32 s2, 256\ns_cbranch_scc1 L_end_{KN}")
        if c["codepf"]:
            e(f"s_getpc_b64 {sr(self.sT, 2)}")
        for srd, off in ((self.srdX, 0), (self.srdW1, 8), (self.srdW3, 16), (self.srdW2, 24), (self.srdOut, 32),
                         (self.srdD, 40), (self.srdH, 48), (self.srdP, 48), (self.srdF, 48)):
            e(f"s_load_dwordx2 {sr(srd, 2)}, s[0:1], {off}")
        e(f"s_memrealtime {sr(self.sT2, 2)}")
        if c["stamps"]:
            e(f"v_mov_b32 v{self.vStamp}, 0")
            e(f"s_memtime {sr(self.sT4, 2)}")
        e(f"v_lshrrev_b32 v{self.vT}, 6, v0")
        e(f"v_and_b32 v{self.vLane}, 63, v0")
        e(f"v_readfirstlane_b32 s{self.sWave}, v{self.vT}")
        if c["codepf"]:
            t = self.vT + 1
            e(f"v_lshlrev_b32 v{t}, 7, v0")
            e(f"s_and_b32 s{self.sT}, s{self.sT}, 0xffffff00")
            e(f"v_min_u32 v{t}, L_codeend - {KN} - 4, v{t}")
            e.vmop(f"global_load_dword v{self.vPoll}, v{t}, {sr(self.sT, 2)}", "codepf")
        e(f"s_and_b32 s{self.sXcd}, s2, 7\ns_lshr_b32 s{self.sSlot}, s2, 3")
        for dst, nbytes in ((self.srdX, X_BYTES), (self.srdW1, W_BYTES), (self.srdW3, W_BYTES + 2048), (self.srdD, 256)):
            self.srd_const(dst, nbytes)

    def after_kernarg(self, tag):
        e = self.e
        e("s_waitcnt lgkmcnt(0)")
        if self.c["stamps"]:
            e(f"v_writelane_b32 v{self.vStamp}, s{self.sT4}, 0\nv_writelane_b32 v{self.vStamp}, s{self.sT2}, 32")
            self.nstamp = 1
            self.stamp()

    def late_srds(self):
        for dst, nbytes in ((self.srdW2, W_BYTES), (self.srdOut, OUT_BYTES), (self.srdH, H_BYTES), (self.srdP, W2P_BYTES),
                            (self.srdF, FLAG_BYTES)):
            self.srd_const(dst, nbytes)
        self.srd_adj(self.srdP, W2P_OFF)
        self.srd_adj(self.srdF, FLAG_OFF)

    def publish_token(self):
        e = self.e
        t = self.vT
        e(f"s_or_b32 s{self.sA}, s2, s{self.sWave}\ns_cmp_lg_u32 s{self.sA}, 0\ns_cbranch_scc1 L_notok")
        e(f"s_max_u32 s{self.sA}, s{self.sT2}, 1\nv_mov_b32 v{t}, s{self.sA}")
        e(f"s_mov_b64 exec, 1\nbuffer_store_dword v{t}, off, {sr(self.srdD, 4)}, 0 sc1\ns_mov_b64 exec, -1")
        e("L_notok:")

    def phase1_setup(self):
        e = self.e
        c = self.c
        t, L = self.vT, self.vLane
        self.sRb, self.sCh = e.s(), e.s()
        self.sSoX, self.sSoW = e.s(10), e.s()
        self.sMx, self.sMw = e.s(), e.s()
        sG, sSig = e.s(), e.s()
        e(f"s_mul_i32 s{self.sA}, s{self.sSlot}, 43\ns_lshr_b32 s{self.sA}, s{self.sA}, 8")
        e(f"s_mul_i32 s{self.sB}, s{self.sA}, 6\ns_sub_u32 s{self.sB}, s{self.sSlot}, s{self.sB}")
        e(f"s_and_b32 s{self.sC}, s{self.sXcd}, 1\ns_mul_i32 s{self.sC}, s{self.sC}, 5\ns_add_u32 s{self.sRb}, s{self.sC}, s{self.sA}")
        e(f"s_lshr_b32 s{self.sC}, s{self.sXcd}, 1\ns_mul_i32 s{self.sC}, s{self.sC}, 6\ns_add_u32 s{self.sCh}, s{self.sC}, s{self.sB}")
        G = c["G"]
        if c["cpf"]:
            self.sRbl, self.sChl = e.s(), e.s()
            e(f"s_mov_b32 s{self.sRbl}, s{self.sA}\ns_mov_b32 s{self.sChl}, s{self.sB}")
        e(f"s_add_u32 s{sG}, s{self.sA}, s{self.sB}")
        if G == 1:
            e(f"s_mov_b32 s{sG}, 0")
        elif G == 2:
            e(f"s_and_b32 s{sG}, s{sG}, 1")
        else:
            e(f"s_mul_i32 s{self.sC}, s{sG}, {-(-256 // G)}\ns_lshr_b32 s{self.sC}, s{self.sC}, 8\ns_mul_i32 s{self.sC}, s{self.sC}, {G}\ns_sub_u32 s{sG}, s{sG}, s{self.sC}")
        e(f"s_lshr_b32 s{self.sC}, s{self.sXcd}, 1\ns_add_u32 s{self.sC}, s{self.sC}, s{self.sXcd}\ns_and_b32 s{sSig}, s{self.sC}, 1")
        self.sG, self.sSig = sG, sSig
        self.slab_off(0)
        self.slab_off(1)
        self.vXo = e.v(7)
        self.vWo = e.v(2)
        e(f"s_mul_i32 s{self.sA}, s{self.sWave}, 52")
        e(f"v_lshrrev_b32 v{t}, 3, v{L}\nv_add_u32 v{t}, s{self.sA}, v{t}")
        e(f"v_bfe_u32 v{t+1}, v{t}, 1, 3\nv_and_b32 v{t+2}, 7, v{L}\nv_xor_b32 v{t+1}, v{t+1}, v{t+2}")
        e(f"s_mul_i32 s{self.sB}, s{self.sRb}, 208\nv_add_u32 v{t}, s{self.sB}, v{t}\nv_mul_u32_u24 v{t}, 1280, v{t}")
        e(f"v_lshl_add_u32 v{self.vXo}, v{t+1}, 4, v{t}")
        e(f"v_xor_b32 v{t+1}, 64, v{self.vXo}")
        for i in range(1, 7):
            src = self.vXo if i % 2 == 0 else t + 1
            e(f"v_add_u32 v{self.vXo+i}, {i*10240 - (i & 3)*1024}, v{src}")
        e(f"s_lshl_b32 s{self.sA}, s{self.sWave}, 4\nv_lshrrev_b32 v{t}, 3, v{L}\nv_add_u32 v{t}, s{self.sA}, v{t}")
        e(f"v_mul_u32_u24 v{t}, 3072, v{t}")
        e(f"v_bfe_u32 v{t+1}, v{L}, 4, 1\nv_lshlrev_b32 v{t+1}, 1, v{t+1}\nv_xor_b32 v{t+1}, v{t+1}, v{t+2}")
        e(f"v_lshl_add_u32 v{t}, v{t+1}, 4, v{t}\ns_lshl_b32 s{self.sA}, s{self.sCh}, 7\nv_add_u32 v{self.vWo}, s{self.sA}, v{t}")
        e(f"v_xor_b32 v{t}, 64, v{self.vWo}\nv_add_u32 v{self.vWo+1}, {8*3072 - 1024}, v{t}")
        if c["cpf"]:
            self.vPx, self.vPw = e.v(), e.v()
            rbl, chl = self.sRbl, self.sChl
            e(f"v_mul_u32_u24 v{t}, 57, v{L}\nv_lshrrev_b32 v{t}, 9, v{t}\nv_mul_u32_u24 v{t+3}, 9, v{t}\nv_sub_u32 v{t+3}, v{L}, v{t+3}")
            e(f"s_lshl_b32 s{self.sA}, s{chl}, 2\ns_add_u32 s{self.sA}, s{self.sA}, s{self.sWave}\ns_mul_i32 s{self.sA}, s{self.sA}, 9\ns_add_u32 s{self.sA}, s{self.sA}, s{self.sB}")
            e(f"v_add_u32 v{t+3}, s{self.sA}, v{t+3}\nv_mul_u32_u24 v{t+3}, 1280, v{t+3}\nv_lshl_add_u32 v{self.vPx}, v{t}, 7, v{t+3}")
            e(f"s_lshl_b32 s{self.sA}, s{rbl}, 2\ns_add_u32 s{self.sA}, s{self.sA}, s{self.sWave}\ns_mul_i32 s{self.sA}, s{self.sA}, 13\ns_lshr_b32 s{self.sA}, s{self.sA}, 2")
            e(f"v_and_b32 v{t+3}, 3, v{L}\nv_add_u32 v{t+3}, s{self.sA}, v{t+3}\nv_lshrrev_b32 v{t}, 2, v{L}\nv_lshl_add_u32 v{t}, v{t}, 6, v{t+3}")
            e(f"v_mul_u32_u24 v{t}, 3072, v{t}\ns_lshl_b32 s{self.sA}, s{self.sCh}, 7\nv_add_u32 v{self.vPw}, s{self.sA}, v{t}")
        e(f"s_mul_i32 s{self.sMx}, s{self.sWave}, 6656")
        e(f"s_lshl_b32 s{self.sMw}, s{self.sWave}, 12\ns_add_u32 s{self.sMw}, s{self.sMw}, {XS}")

    def slab_off(self, s):
        e = self.e
        G, xm = self.c["G"], self.c["xm"]
        base = s // G * G
        d = self.sSoX + s
        if self.c.get("lead"):
            e(f"s_mov_b32 s{d}, {s}")
            if s < 9:
                e(f"s_cmp_eq_u32 s{self.sG}, {s % 5}\ns_cselect_b32 s{d}, {s + 1}, s{d}")
            if s > 0:
                e(f"s_cmp_eq_u32 s{self.sG}, {(s - 1) % 5}\ns_cselect_b32 s{d}, {s - 1}, s{d}")
        elif base + G > 10 or G == 1:
            e(f"s_mov_b32 s{d}, {s}")
        elif G == 2:
            e(f"s_xor_b32 s{d}, s{self.sG}, {s}")
        else:
            e(f"s_add_u32 s{d}, s{self.sG}, {s}\ns_sub_u32 s{self.sC}, s{d}, {G}\ns_cmp_ge_u32 s{d}, {base + G}\ns_cselect_b32 s{d}, s{self.sC}, s{d}")
        if xm == "rev":
            e(f"s_sub_u32 s{self.sC}, 9, s{d}\ns_cmp_eq_u32 s{self.sSig}, 1\ns_cselect_b32 s{d}, s{self.sC}, s{d}")
        elif xm:
            e(f"s_mul_i32 s{self.sC}, s{self.sSig}, {xm}\ns_add_u32 s{d}, s{d}, s{self.sC}\ns_sub_u32 s{self.sC}, s{d}, 10\ns_cmp_ge_u32 s{d}, 10\ns_cselect_b32 s{d}, s{self.sC}, s{d}")
        e(f"s_lshl_b32 s{d}, s{d}, 7")

    def dma_list(self, s):
        e = self.e
        sb = (s % NSTAGE) * STAGE
        out = []
        for m in range(2):
            for j in range(2):
                def f(m=m, j=j):
                    srd = self.srdW1 if m == 0 else self.srdW3
                    e.vmop(f"buffer_load_dwordx4 v{self.vWo+j}, {sr(srd, 4)}, s{self.sSoW} offen offset:{m*2048 + j*1024} lds", ("d", s))
                out.append((f"s_add_u32 m0, s{self.sMw}, {sb}\ns_mul_i32 s{self.sSoW}, s{self.sSoX+s}, 1536" if m + j == 0 else None, f))
        for i in range(7):
            def f(i=i):
                if i == 6:
                    e("s_mov_b32 exec_hi, 0")
                e.vmop(f"buffer_load_dwordx4 v{self.vXo+i}, {sr(self.srdX, 4)}, s{self.sSoX+s} offen offset:{(i & 3)*1024} lds", ("d", s))
                if i == 6:
                    e("s_mov_b32 exec_hi, -1")
            out.append((f"s_add_u32 m0, s{self.sMx}, {sb + (i >> 2)*4096}" if i % 4 == 0 else None, f))
        return out

    def epi_ops(self, u):
        g = self.acc + u * 8
        up = g + 4
        T = self.tmp + (u & 1) * 4
        dst = self.outb + ((u >> 1) & 1) * 4 + (u & 1) * 2
        ops = []
        for i in range(4):
            ops.append((1, f"v_mul_f32 v{T+i}, s{self.sK}, v{g+i}"))
        for i in range(4):
            ops.append((2, f"v_exp_f32 v{T+i}, v{T+i}"))
            ops.append((1, f"v_mul_f32 v{g+i}, v{g+i}, v{up+i}"))
        for i in range(4):
            ops.append((1, f"v_add_f32 v{T+i}, 1.0, v{T+i}"))
        for i in range(4):
            ops.append((2, f"v_rcp_f32 v{T+i}, v{T+i}"))
        for i in range(4):
            ops.append((1, f"v_mul_f32 v{g+i}, v{g+i}, v{T+i}"))
        ops.append((1, f"v_cvt_pk_bf16_f32 v{dst}, v{g}, v{g+1}"))
        ops.append((1, f"v_cvt_pk_bf16_f32 v{dst+1}, v{g+2}, v{g+3}"))
        return ops

    def phase1_main(self):
        e = self.e
        c = self.c
        D, E = c["D"], c["E"]
        R = D + 2
        t, L = self.vT, self.vLane
        first = self.dma_list(0) + self.dma_list(1) + self.dma_list(2)
        def coop(s0, n):
            def f():
                assert not c["xm"]
                e(f"s_mov_b64 exec, {(1 << (4*n)) - 1}\ns_mov_b32 s{self.sA}, {s0*196608}")
                e.vmop(f"buffer_load_dword v{self.vPoll}, v{self.vPw}, {sr(self.srdW1, 4)}, s{self.sA} offen", "cpf")
                e.vmop(f"buffer_load_dword v{self.vPoll}, v{self.vPw}, {sr(self.srdW3, 4)}, s{self.sA} offen offset:2048", "cpf")
                e(f"s_mov_b64 exec, {(1 << (9*n)) - 1}")
                e.vmop(f"buffer_load_dword v{self.vPoll}, v{self.vPx}, {sr(self.srdX, 4)}, 0 offen offset:{s0*128}", "cpf")
                e("s_mov_b64 exec, -1")
            return (None, f)
        for pos, s0, n in reversed(c["cpf"] or ()):
            first.insert(pos, coop(s0, n))
        npre = c["npre"] + len(c["cpf"] or ())
        assert npre <= 26
        def emit_now(items):
            for m0, f in items:
                if m0:
                    e(m0 + "\ns_nop 0")
                f()
        pre0 = c["pre0"]
        emit_now(first[:pre0])
        self.acc = e.v(NU * 8, 4)
        self.xr = e.v(R * 4, 4)
        NW = 5
        self.wf = e.v(8 * NW, 4)
        vXa, vWa = e.v(6), e.v(3)
        self.vHs = e.v()
        self.tmp = e.v(8, 4)
        self.outb = e.v(8, 4)
        self.sK, self.sHo = e.s(), e.s()
        self.publish_token()
        self.slab_off(2)
        e(f"v_and_b32 v{t}, 15, v{L}\nv_bfe_u32 v{t+1}, v{L}, 1, 3\nv_lshrrev_b32 v{t+2}, 4, v{L}\nv_xor_b32 v{t+1}, v{t+1}, v{t+2}")
        e(f"v_lshlrev_b32 v{t}, 7, v{t}\nv_lshl_add_u32 v{vXa}, v{t+1}, 4, v{t}\nv_xor_b32 v{vXa+1}, 64, v{vXa}")
        self.tr_lane_addr(vWa, 4096, 1024, self.sWave)
        e(f"v_add_u32 v{vWa}, {XS}, v{vWa}")
        emit_now(first[pre0:npre])
        vq = list(first[npre:])
        mark = len(e.L)
        tsave = (e.t, e.tm, e.tv)
        self.slab_off(3)
        for st in (1, 2):
            e(f"v_add_u32 v{vXa+2*st}, {st*STAGE}, v{vXa}\nv_add_u32 v{vXa+2*st+1}, {st*STAGE}, v{vXa+1}")
        e(f"v_add_u32 v{vWa+1}, {STAGE}, v{vWa}\nv_add_u32 v{vWa+2}, {2*STAGE}, v{vWa}")
        self.late_srds()
        e("MARK1:")
        self.slab_off(4)
        e("MARK2:")
        for sx in range(5, 10):
            self.slab_off(sx)
        e("MARK3:")
        e(f"s_mov_b32 s{self.sK}, 0xbfb8aa3b")
        e(f"v_bfe_u32 v{t}, v{L}, 4, 1\nv_mul_u32_u24 v{self.vHs}, 49152, v{t}")
        e(f"v_bfe_u32 v{t}, v{L}, 5, 1\nv_lshl_add_u32 v{self.vHs}, v{t}, 8, v{self.vHs}")
        e(f"v_and_b32 v{t}, 15, v{L}\nv_lshl_add_u32 v{self.vHs}, v{t}, 4, v{self.vHs}")
        e(f"s_mul_i32 s{self.sA}, s{self.sRb}, {NU*49152}\ns_lshl_b32 s{self.sB}, s{self.sCh}, 11\ns_add_u32 s{self.sA}, s{self.sA}, s{self.sB}")
        e(f"s_lshl_b32 s{self.sB}, s{self.sWave}, 9\ns_add_u32 s{self.sA}, s{self.sA}, s{self.sB}")
        e(f"v_add_u32 v{self.vHs}, s{self.sA}, v{self.vHs}")
        e(f"s_lshr_b32 s{self.sA}, s{self.sXcd}, 1\ns_mul_i32 s{self.sB}, s{self.sA}, 6\ns_sub_u32 s{self.sB}, s{self.sCh}, s{self.sB}")
        e(f"s_lshl_b32 s{self.sC}, s{self.sRb}, 2\ns_add_u32 s{self.sA}, s{self.sA}, s{self.sC}\ns_lshl_b32 s{self.sA}, s{self.sA}, 10")
        e(f"s_lshl_b32 s{self.sB}, s{self.sB}, 7")
        e(f"s_add_u32 s{self.sFl}, s{self.sA}, s{self.sB}")
        self.phase2_setup()
        e("MARK5:")
        lines = [l.strip() for l in e.L[mark:]]
        del e.L[mark:]
        e.t, e.tm, e.tv = tsave
        setup = []
        for l in lines:
            if l.split()[0] in ("s_cselect_b32", "s_addc_u32", "s_subb_u32"):
                setup[-1] += "\n" + l
            else:
                setup.append(l)

        def setup_upto(m):
            while m in setup:
                it = setup.pop(0)
                if not it.startswith("MARK"):
                    e(it)

        seq = [(u, s, ks) for s in range(8) for ks in range(2) for u in range(NU)]
        k = c["tail"]
        seq += [(u, 8, ks) for ks in range(2) for u in range(k, NU)]
        for u in range(NU):
            if u < k:
                seq += [(u, 8, 0), (u, 8, 1)]
            seq += [(u, 9, 0), (u, 9, 1)]
        N = len(seq)
        first_use = {s: min(n for n in range(N) if seq[n][1] == s) for s in range(10)}
        last_use = {u: max(n for n in range(N) if seq[n][0] == u) for u in range(NU)}
        bpos = {s: first_use[s] - (D - E) for s in range(1, 10)}
        bpos[0] = 0
        if bpos[9] <= bpos[8] + 1:
            bpos[9] = bpos[8]

        def xread(n):
            u, s, ks = seq[n]
            e.ldsop(f"ds_read_b128 {vr(self.xr + (n % R)*4, 4)}, v{vXa + 2*(s % NSTAGE) + ks} offset:{u*2048}", ("x", n))

        def wbuf(s, ks):
            return self.wf + ((2 * s + ks) % NW) * 8

        def wread(s, ks, m, h):
            e.ldsop(f"ds_read_b64_tr_b16 {vr(wbuf(s, ks) + m*4 + h*2, 2)}, v{vWa + s % NSTAGE} offset:{ks*8192 + m*2048 + h*512}", ("w", s, ks))

        wneed, wlast = {}, {}
        for n, (u, s, ks) in enumerate(seq):
            wneed.setdefault((s, ks), n)
            wlast[(s, ks)] = n
        lq = []

        def validate(sx):
            for ks in range(2):
                for m in range(2):
                    for h in range(2):
                        lq.append((wneed[(sx, ks)], 0, ("w", sx, ks, m, h)))
            for n in range(N):
                if seq[n][1] == sx:
                    lq.append((n, 1, ("x", n)))
            lq.sort(key=lambda z: (z[0], z[1]))

        def lds_ok(it, n):
            if it[2][0] == "x":
                return it[0] <= n + R - 2
            if it[2][0] == "r":
                return True
            _, sx, ks, m, h = it[2]
            prev = 2 * sx + ks - NW
            return prev < 0 or wlast[(prev // 2, prev % 2)] < n

        def lds_issue(it):
            lq.remove(it)
            if it[2][0] == "x":
                xread(it[2][1])
            elif it[2][0] == "r":
                _, bb, h = it[2]
                e.ldsop(f"ds_read_b64_tr_b16 {vr(self.outb + 4*bb + 2*h, 2)}, v{vWa+2} offset:{RED0 - XS - 2*STAGE + bb*2048 + h*512}", ("r", bb))
            else:
                wread(*it[2][1:])

        self.stamp()
        e.wait(vm=[("d", 0)])
        e("s_barrier")
        self.stamp()
        validate(0)
        while lq[0][0] < D:
            lds_issue(lq[0])
        epi = []
        st = dict(m0=False, vslot=0, tn=0, tv=32, epi=0)
        done_units = 0

        def run_events():
            while vq and vq[0][0] == "event":
                vq.pop(0)[1]()

        def vm_issue():
            run_events()
            m0, f = vq.pop(0)
            m0 = None if m0 and m0.startswith("hguard") else m0
            if m0 and not st["m0"]:
                e(m0 + "\ns_nop 0")
            f()
            st["m0"] = False
            st["tn"] = max(st["tn"], e.t - 12 - 24) + st["tv"]
            run_events()

        def gap(n, isA):
            used = None
            st["vslot"] += 1
            head = lq[0] if lq and lds_ok(lq[0], n) else None
            backlog = (sum(1 for m0, _ in vq if m0 and m0.startswith("s_")) > 3 and n < 52) or n < bpos[c["fastto"]]
            tv = c["tback"] if backlog else (c["tdma"] if about_dma(vq) else c["tw2"])
            st["tv"] = tv
            vm_ready = vq and (vq[0][0] is None or st["m0"] or (vq[0][0].startswith("hguard") and st["epi"] >= int(vq[0][0][6:]))) and e.t >= st["tn"]
            if head and head[0] - n <= c["crit"]:
                lds_issue(head)
                used = "l"
                if backlog and vm_ready:
                    vm_issue()
                    used = "v"
            elif vm_ready:
                vm_issue()
                used = "v"
            else:
                cand = [it for it in lq[:24] if lds_ok(it, n) and (it[2][0] in "wr" or it[0] - n <= D + (1 if isA else 0))]
                if cand:
                    lds_issue(cand[0])
                    used = "l"
            if used != "v" and vq and vq[0][0] and vq[0][0].startswith("s_") and not st["m0"]:
                e(vq[0][0])
                st["m0"] = True
            elif used != "v" and setup:
                for _ in range(1 if used else 2):
                    if setup:
                        it = setup.pop(0)
                        if not it.startswith("MARK"):
                            e(it)

        def pop_epi(budget):
            while epi and budget > 0:
                it = epi.pop(0)
                if callable(it):
                    it()
                    budget -= 2
                elif it[0] == "mark":
                    st["epi"] = it[1]
                    if c["stamps"] == 3 and it[1] in (3, 6, 9):
                        self.stamp()
                else:
                    e(it[1])
                    budget -= it[0]

        def store_pair(pr):
            def f():
                ob = self.outb + (pr & 1) * 4
                e(f"s_mov_b32 s{self.sHo}, {pr*2*49152}\ns_nop 0")
                e(f"v_permlane16_swap_b32 v{ob}, v{ob+2}\nv_permlane16_swap_b32 v{ob+1}, v{ob+3}")
                if 2 * pr + 1 >= NU:
                    e("s_mov_b32 exec_lo, 0xffff\ns_mov_b32 exec_hi, 0xffff")
                e.vmop(f"buffer_store_dwordx4 {vr(ob, 4)}, v{self.vHs}, {sr(self.srdH, 4)}, s{self.sHo} offen {c['stf']}", ("hst", pr))
                if 2 * pr + 1 >= NU:
                    e("s_mov_b64 exec, -1")
            return f

        def flag_item(pr, stage):
            return lambda: self.publish_h(pr, stage)

        def unit_done(u):
            epi.extend(self.epi_ops(u))
            epi.append(("mark", u + 1))
            if u % 2 == 1 or u == NU - 1:
                epi.append(store_pair(u // 2))
            if u == c["fA"]:
                epi.append(flag_item(1, 1))
            if u == c["fB"]:
                epi.append(flag_item(3, 2))
            if u == NU - 1 and c["fC"] < 0:
                epi.append(flag_item(4, 3))

        def mfma(n, m):
            u, s, ks = seq[n]
            a = self.acc + u * 8 + m * 4
            cin = "0" if (s == 0 and ks == 0) else vr(a, 4)
            if not (c.get("no_mfma") and s >= 1):
                e(f"v_mfma_f32_16x16x32_bf16 {vr(a, 4)}, {vr(wbuf(s, ks) + m*4, 4)}, {vr(self.xr + (n % R)*4, 4)}, {cin}")

        tail0 = last_use[0]
        e.wait(lds=[("x", 0), ("w", 0, 0)])
        for n in range(N):
            u, s, ks = seq[n]
            intail = n > tail0 + 2
            mfma(n, 0)
            bars = [sb for sb in range(1, 10) if bpos[sb] == n]
            if bars:
                sb, s0 = max(bars), min(bars)
                setup_upto(f"MARK{s0}:")
                while len([x for x in e.vm if x == ("d", sb)]) < 11:
                    vm_issue()
                rel = s0 + 2 <= 9
                e.wait(vm=[("d", sb)], lds_all=rel)
                e("s_barrier")
                if c["stamps"] and (c["stamps"] == 2 or sb in (1, 5, 8, 9)):
                    self.stamp()
                for sx in bars:
                    validate(sx)
                held = [it for it in vq if getattr(it[1], "__name__", "") in ("w2", "chk", "chk0", "chk2")]
                vq[:] = [it for it in vq if it not in held]
                if s0 == c["w2at"] and not c.get("p1only"):
                    vq.append((None, lambda: e.vmop(self.tok_txt(), "tok")))
                    vq.append((None, lambda: e.vmop(self.poll_txt(self.vFr, 0), "pollr")))
                    held = self.seam_queue()
                if rel:
                    vq += self.dma_list(s0 + 2)
                vq += held
            else:
                gap(n, False)
                if intail:
                    pop_epi(c.get("epiB", 4))
            mfma(n, 1)
            if n + 1 < N:
                u2, s2, ks2 = seq[n + 1]
                while lq and lq[0][0] <= n + 1:
                    assert lds_ok(lq[0], n + 1)
                    lds_issue(lq[0])
                e.wait(lds=[("x", n + 1), ("w", s2, ks2)])
            gap(n, True)
            while done_units < NU and last_use[done_units] + 2 <= n:
                unit_done(done_units)
                done_units += 1
            if intail:
                pop_epi(c.get("epiA", 4))
        self.stamp()
        if c.get("p1only"):
            self.write_stamps()
            e("s_endpgm")
        e("s_nop 3")
        while done_units < NU:
            unit_done(done_units)
            done_units += 1
        while epi:
            pop_epi(2)
            if vq and e.t - e.tv >= c["tw2"] - 12 and not (vq[0][0] or "").startswith(f"hguard{st['epi'] + 1}"):
                vm_issue()
        self.stamp()
        k = 0
        while vq and not c.get("p1only"):
            if k == c["fC"]:
                flag_item(4, 3)()
            vm_issue()
            k += 1
        assert k > c["fC"] or c.get("p1only")
        self.stamp()

    def phase2_setup(self):
        e = self.e
        c = self.c
        t, L = self.vT, self.vLane
        if not hasattr(self, "sM2"):
            self.sM2, self.sNb, self.sSoP = e.s(), e.s(), e.s()
            self.sU, self.sFo, self.sRow = e.s(4), e.s(4), e.s(4)
            self.vP, self.vHl, self.vFr, self.vFh = e.v(), e.v(), e.v(), e.v()
            self.vRw, self.vRa, self.vOa = (e.v() for _ in range(3))
            self.sSoH = e.s()
            self.sGo = e.s(3)
            self.sR2 = e.s()
        if c["map2"] == "8x4":
            e(f"s_and_b32 s{self.sM2}, s{self.sXcd}, 3\ns_lshl_b32 s{self.sM2}, s{self.sM2}, 3\ns_and_b32 s{self.sA}, s{self.sSlot}, 7\ns_add_u32 s{self.sM2}, s{self.sM2}, s{self.sA}")
            e(f"s_lshr_b32 s{self.sNb}, s{self.sXcd}, 2\ns_lshl_b32 s{self.sNb}, s{self.sNb}, 2\ns_lshr_b32 s{self.sA}, s{self.sSlot}, 3\ns_add_u32 s{self.sNb}, s{self.sNb}, s{self.sA}")
        else:
            e(f"s_lshl_b32 s{self.sM2}, s{self.sXcd}, 2\ns_and_b32 s{self.sA}, s{self.sSlot}, 3\ns_add_u32 s{self.sM2}, s{self.sM2}, s{self.sA}")
            e(f"s_lshr_b32 s{self.sNb}, s{self.sSlot}, 2")
        e(f"s_mul_i32 s{self.sA}, s{self.sWave}, 12288\nv_lshlrev_b32 v{t}, 4, v{L}\nv_add_u32 v{self.vHl}, s{self.sA}, v{t}")
        e(f"s_mul_i32 s{self.sB}, s{self.sNb}, {5*49152}\nv_add_u32 v{self.vP}, s{self.sB}, v{self.vHl}")
        e(f"v_min_u32 v{t}, 3, v{L}\nv_lshlrev_b32 v{t}, 7, v{t}\ns_lshl_b32 s{self.sA}, s{self.sWave}, 9\ns_add_u32 s{self.sA}, s{self.sA}, {FR_OFF}\nv_add_u32 v{self.vFr}, s{self.sA}, v{t}")
        e(f"v_min_u32 v{t}, 5, v{L}\nv_lshlrev_b32 v{t}, 7, v{t}\ns_lshl_b32 s{self.sA}, s{self.sWave}, 10\nv_add_u32 v{self.vFh}, s{self.sA}, v{t}")
        for j in range(4):
            e(f"s_add_u32 s{self.sA}, s{self.sM2}, {32*j}")
            e(f"s_mul_i32 s{self.sB}, s{self.sA}, 205\ns_lshr_b32 s{self.sB}, s{self.sB}, 11")
            e(f"s_mul_i32 s{self.sC}, s{self.sB}, 10\ns_sub_u32 s{self.sC}, s{self.sA}, s{self.sC}")
            if j == 3:
                e(f"s_cmp_ge_u32 s{self.sA}, 119\ns_cselect_b32 s{self.sU+3}, 12, 11\ns_cselect_b32 s{self.sRow+3}, 9, 0")
                e(f"s_sub_u32 s{self.sRow+3}, s{self.sA}, s{self.sRow+3}\ns_sub_u32 s{self.sRow+3}, s{self.sRow+3}, 110")
                e(f"s_cmp_ge_u32 s{self.sA}, 110\ns_cselect_b32 s{self.sB}, s{self.sU+3}, s{self.sB}\ns_cselect_b32 s{self.sC}, s{self.sRow+3}, s{self.sC}")
            e(f"s_lshl_b32 s{self.sFo+j}, s{self.sC}, 12")
            if j:
                e(f"s_add_u32 s{self.sFo+j}, s{self.sFo+j}, {j*FSTAGE}")
            e(f"s_mul_i32 s{self.sC}, s{self.sC}, 13\ns_add_u32 s{self.sC}, s{self.sC}, s{self.sB}")
            e(f"s_mul_i32 s{self.sU+j}, s{self.sC}, {0 if c.get('hsame') else 49152}\ns_mul_i32 s{self.sRow+j}, s{self.sC}, 20480")
        if c["grot"]:
            e(f"s_add_u32 s{self.sA}, s{self.sM2}, s{self.sNb}\ns_mul_i32 s{self.sB}, s{self.sA}, 86\ns_lshr_b32 s{self.sB}, s{self.sB}, 8\ns_mul_i32 s{self.sB}, s{self.sB}, 3\ns_sub_u32 s{self.sA}, s{self.sA}, s{self.sB}")
            e(f"s_lshl_b32 s{self.sGo}, s{self.sA}, 12")
            for g in (1, 2):
                e(f"s_add_u32 s{self.sGo+g}, s{self.sGo+g-1}, 4096\ns_cmp_eq_u32 s{self.sGo+g}, 12288\ns_cselect_b32 s{self.sGo+g}, 0, s{self.sGo+g}")
        else:
            for g in range(3):
                e(f"s_mov_b32 s{self.sGo+g}, {g*4096}")
        e(f"v_lshrrev_b32 v{t}, 4, v{L}\nv_mul_u32_u24 v{t}, 320, v{t}\nv_and_b32 v{t+1}, 15, v{L}\nv_lshl_add_u32 v{t}, v{t+1}, 4, v{t}")
        e(f"s_mul_i32 s{self.sA}, s{self.sWave}, {SST}\nv_add_u32 v{self.vRw}, s{self.sA}, v{t}")
        e(f"v_lshrrev_b32 v{t}, 2, v{L}\nv_min_u32 v{t}, 9, v{t}\ns_movk_i32 s{self.sA}, 0x296\nv_lshrrev_b32 v{t+1}, v{t}, s{self.sA}\nv_and_b32 v{t+1}, 1, v{t+1}\nv_lshrrev_b32 v{t}, 1, v{t}")
        e(f"v_and_b32 v{t+2}, 3, v{L}\ns_lshl_b32 s{self.sA}, s{self.sWave}, 2\nv_add_u32 v{t+2}, s{self.sA}, v{t+2}")
        e(f"v_mul_u32_u24 v{self.vRa}, {TST}, v{t}\nv_mul_u32_u24 v{t+3}, 640, v{t+1}\nv_add_u32 v{self.vRa}, v{self.vRa}, v{t+3}\nv_lshl_add_u32 v{self.vRa}, v{t+2}, 4, v{self.vRa}")
        e(f"v_mul_u32_u24 v{t+2}, 1280, v{t+2}\nv_lshl_add_u32 v{t+2}, v{t}, 5, v{t+2}\nv_lshl_add_u32 v{t+2}, v{t+1}, 4, v{t+2}")
        e(f"s_mul_i32 s{self.sA}, s{self.sNb}, 160\nv_add_u32 v{self.vOa}, s{self.sA}, v{t+2}")

    def w2p_list(self):
        e = self.e
        out = []
        for g in range(3):
            for tt in range(5):
                for k4 in range(4):
                    ks = g * 4 + k4

                    def w2(tt=tt, ks=ks, g=g, k4=k4):
                        if k4 == 0:
                            e(f"s_add_u32 s{self.sSoP}, s{self.sGo+g}, {tt*49152}")
                        e.vmop(f"buffer_load_dwordx4 {ar((tt*12 + ks)*4, 4)}, v{self.vP}, {sr(self.srdP, 4)}, s{self.sSoP} offen offset:{k4*1024} {self.c['ldf']}", ("p", tt, ks))
                    out.append(w2)
        return out

    def hload(self, i):
        e = self.e
        j, ks = divmod(i, 12)
        if ks % 4 == 0:
            e(f"s_add_u32 s{self.sSoH}, s{self.sU+j}, s{self.sGo + (ks >> 2)}")
        e.vmop(f"buffer_load_dwordx4 {vr(self.hr + (i % self.c['HR'])*4, 4)}, v{self.vHl}, {sr(self.srdH, 4)}, s{self.sSoH} offen offset:{(ks & 3)*1024} {self.c['ldf']}", ("h", i))

    def pollh(self, j):
        self.e.vmop(self.poll_txt(self.vFh, f"s{self.sFo+j}"), ("pollh", j))

    def checkh(self, j, sfx=""):
        self.e.wait(vm=[("pollh", j)])
        self.poll_check(f"L_ph{j}{sfx}", self.vFh, f"s{self.sFo+j}")

    def seam_queue(self, sfx=""):
        e = self.e
        c = self.c
        self.hr = self.acc

        def chk():
            e.wait(vm=["pollr"])
            if not sfx:
                self.tok_check("L_tok")
            self.poll_check("L_pr" + sfx, self.vFr, 0)
            self.stamp()
        q = [("event", chk)]
        w2l = [(None, f) for f in self.w2p_list()]
        def rpoll(k):
            txt = self.poll_txt(self.vFr, 0).replace("offen", f"offen offset:{k*2048 - 2048}").replace(f", 0 offen", f", {'s%d' % self.sR2 if k == 3 else 0} offen").replace("offset:4096", "offset:0")

            def w2():
                if k == 3:
                    e(f"s_movk_i32 s{self.sR2}, 4096")
                e.vmop(txt, ("pollr", k))

            def chk2():
                e.wait(vm=[("pollr", k)])
                self.spin(f"L_pr{k}" + sfx, txt, lambda: e(f"v_cmp_ne_u32 vcc, v{self.vPoll}, v{self.vTok}"))
            return (None, w2), ("event", chk2)
        hf = c["hfirst"]
        assert hf >= 40
        p2, c2 = rpoll(2)
        p3, c3 = rpoll(3)
        rd = c["rpd"]
        q += w2l[:20-rd] + [p2] + w2l[20-rd:20] + [c2] + w2l[20:40-rd] + [p3] + w2l[40-rd:40] + [c3] + w2l[40:hf]
        w2l = [f for _, f in w2l]

        def w2():
            self.pollh(0)
        q.append((None, w2))
        pd = c["pd0"]
        q += [(None, f) for f in w2l[hf:hf + pd]]

        def chk0():
            self.checkh(0, sfx)
            if not sfx:
                self.stamp()
        q.append(("event", chk0))
        rest = w2l[hf + pd:]
        for i in range(c["PF"]):
            def w2(i=i):
                self.hload(i)
            q.append((f"hguard{i // 2 + 1}", w2))
            if i + 1 == c["pollks"]:
                def w2():
                    self.pollh(1)
                q.append((None, w2))
            for _ in range(2):
                if rest:
                    q.append((None, rest.pop(0)))
        q += [(None, f) for f in rest]
        return q

    def phase2_main(self):
        e = self.e
        c = self.c
        HR, PF = c["HR"], c["PF"]
        assert PF < 12 and HR <= 16
        hr = self.hr
        acc = self.wf
        ra, rb, obase = self.xr, self.xr + 16, self.acc + 64
        self.vRwH, self.vRaH = self.xr + 36, self.xr + 37
        stores = []
        seq = [(j, ks) for j in range(4) for ks in range(12)]
        hload, pollh, checkh = self.hload, self.pollh, self.checkh
        hn = PF
        side = []

        def red_write(j, tt):
            e.ldsop(f"ds_write_b128 v{self.vRw if j & 1 else self.vRwH}, {vr(acc + (j & 1)*20 + tt*4, 4)} offset:{tt*TST}", ("rw", j))

        def reduce_items(j, last):
            ob = obase + 4 * j
            va = self.vRa if j & 1 else self.vRaH
            it = []
            for tt in range(4 if last else 0, 5):
                it.append(lambda tt=tt: red_write(j, tt))
                if not last and c["wspace"]:
                    it.append(None)
            if not last:
                it += [None] * 2

            def bar():
                e.wait(lds=[("rw", j)])
                e("s_barrier")
            it.append(bar)
            for src in range(4):
                for h, base in enumerate((ra, rb)):
                    it.append(lambda src=src, h=h, base=base: e.ldsop(
                        f"ds_read_b128 {vr(base + src*4, 4)}, v{va} offset:{src*SST + h*320}", ("rr", j, h, src)))
            if not last:
                it += [None] * 4
            for src in range(1, 4):
                for h, base in enumerate((ra, rb)):
                    for half in range(2):
                        def ad(h=h, base=base, src=src, half=half):
                            e.wait(lds=[("rr", j, h, src)])
                            for i2 in (2 * half, 2 * half + 1):
                                e(f"v_add_f32 v{base+i2}, v{base+i2}, v{base+src*4+i2}")
                        it.append(ad)

            def sto():
                e("s_mov_b32 exec_hi, 0xff")
                e.vmop(f"buffer_store_dwordx4 {vr(ob, 4)}, v{self.vOa}, {sr(self.srdOut, 4)}, s{self.sRow+j} offen {c['outflags']}", ("o", j))
                e("s_mov_b32 exec_hi, -1")
            for h, base in enumerate((ra, rb)):
                def cvt(h=h, base=base):
                    e(f"v_cvt_pk_bf16_f32 v{ob+2*h}, v{base}, v{base+1}\nv_cvt_pk_bf16_f32 v{ob+2*h+1}, v{base+2}, v{base+3}")
                    if h:
                        stores.append(sto)
                it.append(cvt)
            return it
        e(f"v_add_u32 v{self.vRwH}, {RED0}, v{self.vRw}\nv_add_u32 v{self.vRaH}, {RED0}, v{self.vRa}")
        e.wait(vm=[("h", 0)] + [("p", tt, 0) for tt in range(5)])
        self.stamp()
        for i, (j, ks) in enumerate(seq[:44]):
            for tt in range(5):
                a = acc + (j & 1) * 20 + tt * 4
                cin = "0" if ks == 0 else vr(a, 4)
                e(f"v_mfma_f32_16x16x32_bf16 {vr(a, 4)}, {ar((tt*12 + ks)*4, 4)}, {vr(hr + (i % HR)*4, 4)}, {cin}")
                if tt == 0 and hn < 48:
                    hload(hn)
                    hn += 1
                elif tt == 0 and stores:
                    stores.pop(0)()
                elif tt == 1 and i == c["fD"]:
                    self.publish_h(6, 4)
                elif tt == 2 and hn < 48 and seq[hn][1] >= c['pollks'] and seq[hn][0] < 3 and ("pollh", seq[hn][0] + 1) not in e.vm:
                    pollh(seq[hn][0] + 1)
                elif tt == 3 and hn < 48 and seq[hn][1] == 0:
                    checkh(seq[hn][0])
                else:
                    if tt == 4 and i + 1 < 48:
                        e.wait(vm=[("h", i + 1)] + [("p", t2, seq[i + 1][1]) for t2 in range(5)])
                    if side and ks >= 1:
                        it = side.pop(0)
                        if it:
                            it()
            if ks == 11:
                if c["stamps"] == 3 and j < 3:
                    self.stamp()
                assert not side, len(side)
                side = reduce_items(j, False)
        for tt in range(5):
            for i in range(44, 48):
                a = acc + 20 + tt * 4
                if tt == 0:
                    e.wait(vm=[("h", i)])
                e(f"v_mfma_f32_16x16x32_bf16 {vr(a, 4)}, {ar((tt*12 + i - 36)*4, 4)}, {vr(hr + (i % HR)*4, 4)}, {vr(a, 4)}")
                if tt >= 2 and i == 46:
                    red_write(3, tt - 2)
                elif side:
                    it = side.pop(0)
                    if it:
                        it()
                elif stores:
                    stores.pop(0)()
        assert not side
        self.stamp()
        e("s_nop 3")
        red_write(3, 3)
        e("s_nop 2")
        side = reduce_items(3, True)
        for k, it in enumerate(side):
            if it:
                it()
            if stores:
                stores.pop(0)()
        if c["stamps"]:
            self.stamp()
            e.wait(vm_all=True)
            self.stamp()

    def repack(self):
        e = self.e
        c = self.c
        t, L = self.vT, self.vLane
        sR, sLo, sSt = e.s(), e.s(8), e.s(8)
        vD, vR, vS = e.v(4), e.v(4), e.v(4)
        F = e.v(32, 4)
        e(f"s_lshl_b32 s{sR}, s{self.sXcd}, 1\ns_add_u32 s{sR}, s{sR}, s{self.sSlot}\ns_sub_u32 s{sR}, s{sR}, 30")
        e(f"s_lshr_b32 s{self.sB}, s{sR}, 2\ns_mul_i32 s{self.sB}, s{self.sB}, 384")
        e(f"v_lshrrev_b32 v{t}, 3, v{L}\nv_add_u32 v{t}, s{self.sB}, v{t}\nv_mul_u32_u24 v{vD}, 1280, v{t}")
        e(f"v_bfe_u32 v{t}, v{L}, 4, 1\nv_lshlrev_b32 v{t}, 1, v{t}")
        e(f"v_and_b32 v{t+1}, 7, v{L}\nv_xor_b32 v{t}, v{t}, v{t+1}\nv_lshl_add_u32 v{vD}, v{t}, 4, v{vD}")
        e(f"v_xor_b32 v{t}, 64, v{vD}")
        for p in range(1, 4):
            e(f"v_add_u32 v{vD+p}, {p*(10240 - 1024)}, v{vD if p % 2 == 0 else t}")
        e(f"s_and_b32 s{self.sFl}, s{sR}, 3\ns_lshl_b32 s{self.sFl}, s{self.sFl}, 2\ns_add_u32 s{self.sFl}, s{self.sFl}, s{self.sWave}")

        def offs(i):
            e(f"s_add_u32 s{self.sA}, s{self.sFl}, {16*i}\ns_mul_i32 s{self.sB}, s{self.sA}, 205\ns_lshr_b32 s{self.sB}, s{self.sB}, 11")
            e(f"s_mul_i32 s{self.sC}, s{self.sB}, 10\ns_sub_u32 s{self.sC}, s{self.sA}, s{self.sC}")
            e(f"s_mul_i32 s{sLo+i}, s{self.sB}, 40960\ns_lshl_b32 s{self.sSpin}, s{self.sC}, 7\ns_add_u32 s{sLo+i}, s{sLo+i}, s{self.sSpin}")
            e(f"s_mul_i32 s{sSt+i}, s{self.sC}, {4*49152}\ns_lshl_b32 s{self.sSpin}, s{self.sB}, 10\ns_add_u32 s{sSt+i}, s{sSt+i}, s{self.sSpin}")
            if i == 7:
                e(f"s_cmp_ge_u32 s{self.sA}, 120\ns_cselect_b32 s{sLo+i}, 0x40000000, s{sLo+i}\ns_cselect_b32 s{sSt+i}, 0x40000000, s{sSt+i}")
        AH = c["rah"]
        for i in range(AH):
            offs(i)
        sM = e.s()
        e(f"s_lshl_b32 s{sM}, s{self.sWave}, 15")
        self.after_kernarg("s")
        self.late_srds()

        def loads(i):
            e(f"s_add_u32 m0, s{sM}, {i*4096}\ns_nop 0")
            for p in range(4):
                e.vmop(f"buffer_load_dwordx4 v{vD+p}, {sr(self.srdW2, 4)}, s{sLo+i} offen offset:{p*1024} lds", ("rp", i))
        for i in range(AH):
            loads(i)
        for i in range(AH, 8):
            offs(i)
        self.tr_lane_addr(vR, 2048, 1024, None)
        e(f"v_add_u32 v{vR}, s{sM}, v{vR}")
        for sub in range(1, 4):
            e(f"v_xor_b32 v{vR+sub}, {sub*32}, v{vR}")
        e(f"s_lshr_b32 s{self.sB}, s{sR}, 2\ns_mul_i32 s{self.sB}, s{self.sB}, 12288\nv_lshlrev_b32 v{vS}, 4, v{L}\nv_add_u32 v{vS}, s{self.sB}, v{vS}")
        for sub in range(1, 4):
            e(f"v_add_u32 v{vS+sub}, {sub*49152}, v{vS}")
        e(f"s_lshl_b32 s{self.sFl}, s{sR}, 7\ns_add_u32 s{self.sFl}, s{self.sFl}, {FR_OFF}")
        for i in range(8):
            fb = F + (i & 1) * 16
            e.wait(vm=[("rp", i)])
            for sub in range(4):
                for h in range(2):
                    e.ldsop(f"ds_read_b64_tr_b16 {vr(fb + 4*sub + 2*h, 2)}, v{vR+sub} offset:{i*4096 + h*512}", ("rr", i, sub))
            if i + AH < 8:
                loads(i + AH)
            if i == 2:
                e.vmop(self.tok_txt(), "tok")
            for sub in range(4):
                e.wait(lds=[("rr", i, sub)])
                e.vmop(f"buffer_store_dwordx4 {vr(fb + 4*sub, 4)}, v{vS+sub}, {sr(self.srdP, 4)}, s{sSt+i} offen {c['stf']}", ("rst", i))
            if i in (2 + c["rlag"], 4 + c["rlag"]):
                e.wait(vm=[("rst", i - c["rlag"])])
                if i == 2 + c["rlag"]:
                    self.tok_check("L_tok2")
                e("s_barrier")
                self.publish(f"L_r{i}", self.sFl)
                e(f"s_add_u32 s{self.sFl}, s{self.sFl}, 2048")
                self.stamp()
        self.phase2_setup()
        e.wait(vm_all=True)
        e("s_barrier")
        self.publish("L_rlast", self.sFl)
        self.stamp()

    def build(self):
        e = self.e
        c = self.c
        head = HEADER + f"; @launch grid=(256,1,1) block=(256,1,1) lds={LDS_TOTAL}\n"
        self.prologue()
        mark = len(e.L)
        self.phase2_setup()
        del e.L[mark:]
        vmark, smark = e.vnext, e.snext
        e(f"s_cmp_ge_u32 s{self.sSlot}, 30\ns_cbranch_scc1 L_spare")
        self.phase1_setup()
        self.after_kernarg("w")
        self.srd_adj(self.srdW3, -2048)
        self.phase1_main()
        e("L_join:")
        if not c.get("p1only"):
            self.phase2_main()
            self.write_stamps()
        e(f"L_end_{KN}:\ns_endpgm")
        e("L_spare:")
        e.reset_counts()
        if c.get("p1only") == 2:
            e("s_endpgm")
        e.vnext, e.snext = vmark, smark
        self.repack()
        if c.get("p1only"):
            e("s_endpgm")
        e(f"s_mov_b32 s{self.sFl}, {FR_OFF + 16384}")
        e.vmop(self.poll_txt(self.vFr, 0), "pollr")
        for _, f in self.seam_queue("s"):
            f()
        e("s_waitcnt vmcnt(0)")
        e("s_branch L_join")
        e("L_codeend:")
        body = "\n".join(e.L)
        kd = f""".section .rodata,"a"
.p2align 6
.amdhsa_kernel {KN}
  .amdhsa_next_free_vgpr 512
  .amdhsa_next_free_sgpr 102
  .amdhsa_accum_offset 256
  .amdhsa_group_segment_fixed_size 0
  .amdhsa_kernarg_size 56
  .amdhsa_user_sgpr_count 2
  .amdhsa_user_sgpr_kernarg_segment_ptr 1
  .amdhsa_system_sgpr_workgroup_id_x 1
  .amdhsa_float_denorm_mode_32 3
.end_amdhsa_kernel
"""
        return head + '.amdgcn_target "amdgcn-amd-amdhsa--gfx950"\n.text\n' + body + "\n" + kd


def about_dma(vq):
    return bool(vq) and getattr(vq[0][1], "__name__", "") != "w2"


def parse_kw(args):
    kw = {}
    for a in args:
        k, v = a.split("=", 1)
        try:
            v = eval(v)
        except Exception:
            pass
        kw[k] = v
    return kw


if __name__ == "__main__":
    out = sys.argv[1]
    open(out, "w").write(Gen(**parse_kw(sys.argv[2:])).build())
```

```python
import sys

NAME = "standalone__glu_gated_swiglu__prompt"
KN = NAME + "_kernel"

X_BYTES = 2048 * 640 * 2
W_BYTES = 640 * 1536 * 2
OUT_BYTES = 2048 * 640 * 2
H_BYTES = 128 * 49152
W2P_OFF = 8 << 20
W2P_BYTES = 40 * 49152
FLAG_OFF = 12 << 20
FLAG_BYTES = 262144
FR_OFF = 196608
FSTAGE = 40960
STAMP_OFF = 16 << 20

NU = 13
XS = NU * 2048
STAGE = XS + 16384
NSTAGE = 3
RED0 = NSTAGE * STAGE
TST = 1344
SST = 5 * TST
REDSZ = 4 * SST
LDS_TOTAL = RED0 + REDSZ

HEADER = """; Kernarg layout for this problem (56 bytes, ptrs only, base s[0:1]):
;   offset  24: d_in[3] w2  shape=(1536, 640) dtype=bfloat16 strides=(1280, 2) contiguous=True
"""


class Em:
    def __init__(self):
        self.L = []
        self.reset_counts()
        self.vnext = 1
        self.snext = 4
        self.skip = lambda kind, tag: False
        self.t = self.tm = self.tv = 0

    def __call__(self, s):
        for line in s.split("\n"):
            line = line.strip()
            if line:
                self.L.append(line if line.endswith(":") else "    " + line)
                self.tick(line)

    def tick(self, line):
        op = line.split(" ")[0]
        if op.startswith("v_mfma"):
            self.t = max(self.t, self.tm + 16)
            self.tm = self.t
            self.t += 4
        elif op.startswith("v_"):
            self.t = max(self.t, self.tm + 8) + (8 if op.startswith(("v_exp", "v_rcp", "v_perm")) else 4)
        elif op.startswith(("buffer", "global")):
            self.t += 12
            self.tv = self.t
        elif op.startswith("ds_write"):
            self.t += 16
        elif op.startswith(("s_waitcnt", "s_nop")) or op.endswith(":"):
            self.t += 1
        else:
            self.t += 4

    def v(self, n=1, align=1):
        b = (self.vnext + align - 1) // align * align
        self.vnext = b + n
        assert self.vnext <= 256, "out of arch VGPRs"
        return b

    def s(self, n=1, align=1):
        b = (self.snext + align - 1) // align * align
        self.snext = b + n
        assert self.snext <= 102, "out of SGPRs"
        return b

    def ldsop(self, txt, tag=None):
        if not self.skip("lds", tag):
            self(txt)
        self.lds.append(tag)

    def vmop(self, txt, tag=None):
        if not self.skip("vm", tag):
            self(txt)
        self.vm.append(tag)

    def _need(self, ops, tags):
        idx = -1
        for t in tags:
            c = [i for i, x in enumerate(ops) if x == t]
            assert c, f"tag {t} never issued"
            idx = max(idx, c[-1])
        return idx + 1

    def wait(self, lds=(), vm=(), lds_all=False, vm_all=False):
        parts = []
        n = len(self.vm) if vm_all else (self._need(self.vm, vm) if vm else 0)
        if n > self.vm_done:
            cnt = min(len(self.vm) - n, 63)
            parts.append(f"vmcnt({cnt})")
            self.vm_done = len(self.vm) - cnt
        n = len(self.lds) if lds_all else (self._need(self.lds, lds) if lds else 0)
        if n > self.lds_done:
            cnt = min(len(self.lds) - n, 15)
            parts.append(f"lgkmcnt({cnt})")
            self.lds_done = len(self.lds) - cnt
        if parts:
            self("s_waitcnt " + " ".join(parts))

    def reset_counts(self):
        self.lds, self.vm, self.lds_done, self.vm_done = [], [], 0, 0


def vr(b, n):
    return f"v[{b}:{b+n-1}]" if n > 1 else f"v{b}"


def ar(b, n):
    return f"a[{b}:{b+n-1}]"


def sr(b, n):
    return f"s[{b}:{b+n-1}]" if n > 1 else f"s{b}"


DEF = dict(D=9, E=3, stamps=False, G=5, lead=1, xm=0, map2="8x4", stf="sc1", ldf="sc1", codepf=True, outflags="sc1",
           npre=18, pre0=8, tail=13, PF=9, HR=12, pollks=6, fA=6, fB=10, fC=-1, fD=1, align=12,
           tback=48, tdma=70, tw2=72, crit=3, rpv=1, rpos=0, rpub=3, rsk=8, l2pf=0, w2at=7, sleep=2, grot=0, wspace=1, ssleep=8, rah=3, rlag=1, rpd=8, cpf=None, fastto=1, spf=(2, 3, 4), hfirst=44, pd0=10, epiA=4, epiB=4)


class Gen:
    def __init__(self, **kw):
        self.c = dict(DEF)
        self.c.update(kw)
        self.e = Em()
        c = self.c

        def skip(kind, tag):
            if kind == "vm" and tag in c.get("skipvm", ()):
                return True
            if not isinstance(tag, tuple):
                return False
            if kind == "vm" and tag[0] in c.get("skipvm", ()):
                return True
            if c.get("nohst") and kind == "vm" and tag[0] == "hst":
                return True
            if c.get("noflag") and kind == "vm" and tag[0] in ("flag", "pollh"):
                return True
            if c.get("no_dma") and kind == "vm" and tag[0] == "d" and tag[1] >= 3:
                return True
            if c.get("no_xread") and kind == "lds" and tag[0] == "x" and tag[1] >= 26:
                return True
            return False
        self.e.skip = skip
        self.nstamp = 0

    def stamp(self):
        e = self.e
        if self.c.get("ms") is not None:
            if self.nstamp + (100 if getattr(self, "in_spare", False) else 0) == self.c["ms"]:
                e("s_memrealtime s[98:99]")
            self.nstamp += 1
            return
        if not self.c["stamps"]:
            return
        i = self.nstamp
        self.nstamp += 1
        assert i < 31
        e(f"s_memtime {sr(self.sT, 2)}\ns_memrealtime {sr(self.sT3, 2)}")
        e("s_waitcnt lgkmcnt(0)")
        e.lds_done = len(e.lds)
        e(f"v_writelane_b32 v{self.vStamp}, s{self.sT}, {i}\nv_writelane_b32 v{self.vStamp}, s{self.sT3}, {32 + i}")

    def write_stamps(self):
        e = self.e
        if self.c.get("ms") is not None:
            e("s_waitcnt lgkmcnt(0)\nL_dly:\ns_memrealtime s[100:101]\ns_waitcnt lgkmcnt(0)\ns_sub_u32 s100, s100, s98\ns_cmp_lt_u32 s100, 3000\ns_cbranch_scc1 L_dly")
            return
        if not self.c["stamps"]:
            return
        keep = self.nstamp
        self.nstamp = 30
        self.stamp()
        self.nstamp = keep
        e(f"s_lshl_b32 s{self.sT}, s2, 2\ns_add_u32 s{self.sT}, s{self.sT}, s{self.sWave}\ns_lshl_b32 s{self.sT}, s{self.sT}, 8")
        e(f"s_add_u32 s{self.sT}, s{self.sT}, {STAMP_OFF}")
        e(f"v_lshlrev_b32 v{self.vT}, 2, v{self.vLane}\nv_add_u32 v{self.vT}, s{self.sT}, v{self.vT}")
        e(f"s_mov_b32 s{self.srdH+2}, 0x10000000")
        e(f"buffer_store_dword v{self.vStamp}, v{self.vT}, {sr(self.srdH, 4)}, 0 offen")
        e("s_waitcnt vmcnt(0)")

    def srd_adj(self, dst, addoff):
        e = self.e
        if addoff > 0:
            e(f"s_add_u32 s{dst}, s{dst}, {addoff}\ns_addc_u32 s{dst+1}, s{dst+1}, 0")
        else:
            e(f"s_sub_u32 s{dst}, s{dst}, {-addoff}\ns_subb_u32 s{dst+1}, s{dst+1}, 0")

    def srd_const(self, dst, nbytes):
        self.e(f"s_mov_b32 s{dst+2}, {nbytes}\ns_mov_b32 s{dst+3}, 0x20000")

    def tr_lane_addr(self, dst, qstride_hi, qstride_lo, sub):
        e = self.e
        t, L = self.vT, self.vLane
        e(f"v_bfe_u32 v{t}, v{L}, 5, 1\nv_mul_u32_u24 v{dst}, {qstride_hi}, v{t}")
        e(f"v_bfe_u32 v{t}, v{L}, 4, 1\nv_mul_u32_u24 v{t+1}, {qstride_lo}, v{t}\nv_add_u32 v{dst}, v{dst}, v{t+1}")
        e(f"v_lshlrev_b32 v{t+1}, 2, v{t}")
        e(f"v_bfe_u32 v{t}, v{L}, 3, 1\nv_lshl_add_u32 v{t+1}, v{t}, 1, v{t+1}")
        e(f"v_bfe_u32 v{t}, v{L}, 1, 1")
        if sub is not None:
            e(f"s_lshl_b32 s{self.sA}, s{sub}, 1\nv_add_u32 v{t}, s{self.sA}, v{t}")
        e(f"v_xor_b32 v{t}, v{t}, v{t+1}\nv_lshl_add_u32 v{dst}, v{t}, 4, v{dst}")
        e(f"v_bfe_u32 v{t}, v{L}, 2, 2\nv_lshl_add_u32 v{dst}, v{t}, 7, v{dst}")
        e(f"v_and_b32 v{t}, 1, v{L}\nv_lshl_add_u32 v{dst}, v{t}, 3, v{dst}")

    def spin(self, label, load, check):
        e = self.e
        if self.c.get("nocheck"):
            return
        check()
        e(f"s_cbranch_vccz {label}_out")
        e(f"s_mov_b32 s{self.sSpin}, 0x40000")
        e(f"{label}_spin:")
        e(f"s_sleep {self.c['ssleep'] if label.endswith('s') else self.c['sleep']}")
        e(load)
        e("s_waitcnt vmcnt(0)")
        check()
        e(f"s_cbranch_vccz {label}_out")
        e(f"s_sub_u32 s{self.sSpin}, s{self.sSpin}, 1\ns_cbranch_scc0 {label}_spin")
        e(f"{label}_out:")

    def tok_txt(self):
        return f"buffer_load_dword v{self.vTok}, off, {sr(self.srdD, 4)}, 0 sc1"

    def tok_check(self, label):
        self.spin(label, self.tok_txt(), lambda: self.e(f"v_cmp_eq_u32 vcc, 0, v{self.vTok}"))

    def poll_txt(self, vaddr, soff):
        return f"buffer_load_dword v{self.vPoll}, v{vaddr}, {sr(self.srdF, 4)}, {soff} offen sc1"

    def poll_check(self, label, vaddr, soff):
        self.spin(label, self.poll_txt(vaddr, soff), lambda: self.e(f"v_cmp_ne_u32 vcc, v{self.vPoll}, v{self.vTok}"))

    def publish(self, label, sreg, srd=None, cond=None):
        e = self.e
        if self.c.get("noflag"):
            return
        e(f"s_cmp_lg_u32 s{self.sWave if cond is None else cond}, 0\ns_cbranch_scc1 {label}")
        e(f"s_mov_b64 exec, 1\nbuffer_store_dword v{self.vTok}, off, {sr(self.srdF if srd is None else srd, 4)}, s{sreg} sc1\ns_mov_b64 exec, -1")
        e(f"{label}:")

    def publish_h(self, pr, stage):
        e = self.e
        e.wait(vm=[("hst", pr)])
        e("s_barrier")
        self.publish(f"L_pub{stage}", self.sFl)
        if stage < 4:
            e(f"s_add_u32 s{self.sFl}, s{self.sFl}, {FSTAGE}")

    def prologue(self):
        e = self.e
        c = self.c
        e(f".globl {KN}\n.p2align {c['align']}\n.type {KN},@function\n{KN}:")
        self.srdX, self.srdW1, self.srdW3, self.srdW2 = (e.s(4, 4) for _ in range(4))
        self.srdOut, self.srdH, self.srdP, self.srdD, self.srdF = (e.s(4, 4) for _ in range(5))
        self.sT, self.sT2 = e.s(2, 2), e.s(2, 2)
        self.sWave, self.sXcd, self.sSlot = e.s(), e.s(), e.s()
        self.sA, self.sB, self.sC, self.sSpin, self.sFl = (e.s() for _ in range(5))
        if c["stamps"]:
            self.vStamp = e.v()
            self.sT3, self.sT4 = e.s(2, 2), e.s(2, 2)
        self.vLane = e.v()
        self.vT = e.v(4, 4)
        self.vTok, self.vPoll = e.v(), e.v()
        e(f"s_cmp_ge_u32 s2, 256\ns_cbranch_scc1 L_end_{KN}")
        if c["codepf"]:
            e(f"s_getpc_b64 {sr(self.sT, 2)}")
        for srd, off in ((self.srdX, 0), (self.srdW1, 8), (self.srdW3, 16), (self.srdW2, 24), (self.srdOut, 32),
                         (self.srdD, 40), (self.srdH, 48), (self.srdP, 48), (self.srdF, 48)):
            e(f"s_load_dwordx2 {sr(srd, 2)}, s[0:1], {off}")
        e(f"s_memrealtime {sr(self.sT2, 2)}")
        if c.get("ms") is not None:
            e("s_memrealtime s[98:99]")
        if c["stamps"]:
            e(f"v_mov_b32 v{self.vStamp}, 0")
            e(f"s_memtime {sr(self.sT4, 2)}")
        e(f"v_lshrrev_b32 v{self.vT}, 6, v0")
        e(f"v_and_b32 v{self.vLane}, 63, v0")
        e(f"v_readfirstlane_b32 s{self.sWave}, v{self.vT}")
        if c["codepf"]:
            t = self.vT + 1
            e(f"v_lshlrev_b32 v{t}, 7, v0")
            e(f"s_and_b32 s{self.sT}, s{self.sT}, 0xffffff00")
            e(f"v_min_u32 v{t}, L_codeend - {KN} - 4, v{t}")
            e.vmop(f"global_load_dword v{self.vPoll}, v{t}, {sr(self.sT, 2)}", "codepf")
        e(f"s_and_b32 s{self.sXcd}, s2, 7\ns_lshr_b32 s{self.sSlot}, s2, 3")
        for dst, nbytes in ((self.srdX, X_BYTES), (self.srdW1, W_BYTES), (self.srdW3, W_BYTES + 2048), (self.srdD, 256)):
            self.srd_const(dst, nbytes)

    def after_kernarg(self, tag):
        e = self.e
        e("s_waitcnt lgkmcnt(0)")
        if self.c.get("ms") is not None:
            self.nstamp = 1
            self.stamp()
        if self.c["stamps"]:
            e(f"v_writelane_b32 v{self.vStamp}, s{self.sT4}, 0\nv_writelane_b32 v{self.vStamp}, s{self.sT2}, 32")
            self.nstamp = 1
            self.stamp()

    def late_srds(self):
        for dst, nbytes in ((self.srdW2, W_BYTES), (self.srdOut, OUT_BYTES), (self.srdH, H_BYTES), (self.srdP, W2P_BYTES),
                            (self.srdF, FLAG_BYTES)):
            self.srd_const(dst, nbytes)
        self.srd_adj(self.srdP, W2P_OFF)
        self.srd_adj(self.srdF, FLAG_OFF)

    def publish_token(self):
        e = self.e
        t = self.vT
        e(f"s_or_b32 s{self.sA}, s2, s{self.sWave}\ns_cmp_lg_u32 s{self.sA}, 0\ns_cbranch_scc1 L_notok")
        e(f"s_max_u32 s{self.sA}, s{self.sT2}, 1\nv_mov_b32 v{t}, s{self.sA}")
        e(f"s_mov_b64 exec, 1\nbuffer_store_dword v{t}, off, {sr(self.srdD, 4)}, 0 sc1\ns_mov_b64 exec, -1")
        e("L_notok:")

    def phase1_setup(self):
        e = self.e
        c = self.c
        t, L = self.vT, self.vLane
        self.sRb, self.sCh = e.s(), e.s()
        self.sSoX, self.sSoW = e.s(10), e.s()
        self.sMx, self.sMw = e.s(), e.s()
        sG, sSig = e.s(), e.s()
        e(f"s_mul_i32 s{self.sA}, s{self.sSlot}, 43\ns_lshr_b32 s{self.sA}, s{self.sA}, 8")
        e(f"s_mul_i32 s{self.sB}, s{self.sA}, 6\ns_sub_u32 s{self.sB}, s{self.sSlot}, s{self.sB}")
        e(f"s_and_b32 s{self.sC}, s{self.sXcd}, 1\ns_mul_i32 s{self.sC}, s{self.sC}, 5\ns_add_u32 s{self.sRb}, s{self.sC}, s{self.sA}")
        e(f"s_lshr_b32 s{self.sC}, s{self.sXcd}, 1\ns_mul_i32 s{self.sC}, s{self.sC}, 6\ns_add_u32 s{self.sCh}, s{self.sC}, s{self.sB}")
        G = c["G"]
        if c["cpf"]:
            self.sRbl, self.sChl = e.s(), e.s()
            e(f"s_mov_b32 s{self.sRbl}, s{self.sA}\ns_mov_b32 s{self.sChl}, s{self.sB}")
        e(f"s_add_u32 s{sG}, s{self.sA}, s{self.sB}")
        if G == 1:
            e(f"s_mov_b32 s{sG}, 0")
        elif G == 2:
            e(f"s_and_b32 s{sG}, s{sG}, 1")
        else:
            e(f"s_mul_i32 s{self.sC}, s{sG}, {-(-256 // G)}\ns_lshr_b32 s{self.sC}, s{self.sC}, 8\ns_mul_i32 s{self.sC}, s{self.sC}, {G}\ns_sub_u32 s{sG}, s{sG}, s{self.sC}")
        e(f"s_lshr_b32 s{self.sC}, s{self.sXcd}, 1\ns_add_u32 s{self.sC}, s{self.sC}, s{self.sXcd}\ns_and_b32 s{sSig}, s{self.sC}, 1")
        self.sG, self.sSig = sG, sSig
        self.slab_off(0)
        self.slab_off(1)
        self.vXo = e.v(7)
        self.vWo = e.v(2)
        e(f"s_mul_i32 s{self.sA}, s{self.sWave}, 52")
        e(f"v_lshrrev_b32 v{t}, 3, v{L}\nv_add_u32 v{t}, s{self.sA}, v{t}")
        e(f"v_bfe_u32 v{t+1}, v{t}, 1, 3\nv_and_b32 v{t+2}, 7, v{L}\nv_xor_b32 v{t+1}, v{t+1}, v{t+2}")
        e(f"s_mul_i32 s{self.sB}, s{self.sRb}, 208\nv_add_u32 v{t}, s{self.sB}, v{t}\nv_mul_u32_u24 v{t}, 1280, v{t}")
        e(f"v_lshl_add_u32 v{self.vXo}, v{t+1}, 4, v{t}")
        e(f"v_xor_b32 v{t+1}, 64, v{self.vXo}")
        for i in range(1, 7):
            src = self.vXo if i % 2 == 0 else t + 1
            e(f"v_add_u32 v{self.vXo+i}, {i*10240 - (i & 3)*1024}, v{src}")
        e(f"s_lshl_b32 s{self.sA}, s{self.sWave}, 4\nv_lshrrev_b32 v{t}, 3, v{L}\nv_add_u32 v{t}, s{self.sA}, v{t}")
        e(f"v_mul_u32_u24 v{t}, 3072, v{t}")
        e(f"v_bfe_u32 v{t+1}, v{L}, 4, 1\nv_lshlrev_b32 v{t+1}, 1, v{t+1}\nv_xor_b32 v{t+1}, v{t+1}, v{t+2}")
        e(f"v_lshl_add_u32 v{t}, v{t+1}, 4, v{t}\ns_lshl_b32 s{self.sA}, s{self.sCh}, 7\nv_add_u32 v{self.vWo}, s{self.sA}, v{t}")
        e(f"v_xor_b32 v{t}, 64, v{self.vWo}\nv_add_u32 v{self.vWo+1}, {8*3072 - 1024}, v{t}")
        if c["cpf"]:
            self.vPx, self.vPw = e.v(), e.v()
            rbl, chl = self.sRbl, self.sChl
            e(f"v_mul_u32_u24 v{t}, 57, v{L}\nv_lshrrev_b32 v{t}, 9, v{t}\nv_mul_u32_u24 v{t+3}, 9, v{t}\nv_sub_u32 v{t+3}, v{L}, v{t+3}")
            e(f"s_lshl_b32 s{self.sA}, s{chl}, 2\ns_add_u32 s{self.sA}, s{self.sA}, s{self.sWave}\ns_mul_i32 s{self.sA}, s{self.sA}, 9\ns_add_u32 s{self.sA}, s{self.sA}, s{self.sB}")
            e(f"v_add_u32 v{t+3}, s{self.sA}, v{t+3}\nv_mul_u32_u24 v{t+3}, 1280, v{t+3}\nv_lshl_add_u32 v{self.vPx}, v{t}, 7, v{t+3}")
            e(f"s_lshl_b32 s{self.sA}, s{rbl}, 2\ns_add_u32 s{self.sA}, s{self.sA}, s{self.sWave}\ns_mul_i32 s{self.sA}, s{self.sA}, 13\ns_lshr_b32 s{self.sA}, s{self.sA}, 2")
            e(f"v_and_b32 v{t+3}, 3, v{L}\nv_add_u32 v{t+3}, s{self.sA}, v{t+3}\nv_lshrrev_b32 v{t}, 2, v{L}\nv_lshl_add_u32 v{t}, v{t}, 6, v{t+3}")
            e(f"v_mul_u32_u24 v{t}, 3072, v{t}\ns_lshl_b32 s{self.sA}, s{self.sCh}, 7\nv_add_u32 v{self.vPw}, s{self.sA}, v{t}")
        e(f"s_mul_i32 s{self.sMx}, s{self.sWave}, 6656")
        e(f"s_lshl_b32 s{self.sMw}, s{self.sWave}, 12\ns_add_u32 s{self.sMw}, s{self.sMw}, {XS}")

    def slab_off(self, s):
        e = self.e
        G, xm = self.c["G"], self.c["xm"]
        base = s // G * G
        d = self.sSoX + s
        if self.c.get("lead"):
            e(f"s_mov_b32 s{d}, {s}")
            if s < 9:
                e(f"s_cmp_eq_u32 s{self.sG}, {s % 5}\ns_cselect_b32 s{d}, {s + 1}, s{d}")
            if s > 0:
                e(f"s_cmp_eq_u32 s{self.sG}, {(s - 1) % 5}\ns_cselect_b32 s{d}, {s - 1}, s{d}")
        elif base + G > 10 or G == 1:
            e(f"s_mov_b32 s{d}, {s}")
        elif G == 2:
            e(f"s_xor_b32 s{d}, s{self.sG}, {s}")
        else:
            e(f"s_add_u32 s{d}, s{self.sG}, {s}\ns_sub_u32 s{self.sC}, s{d}, {G}\ns_cmp_ge_u32 s{d}, {base + G}\ns_cselect_b32 s{d}, s{self.sC}, s{d}")
        if xm == "rev":
            e(f"s_sub_u32 s{self.sC}, 9, s{d}\ns_cmp_eq_u32 s{self.sSig}, 1\ns_cselect_b32 s{d}, s{self.sC}, s{d}")
        elif xm:
            e(f"s_mul_i32 s{self.sC}, s{self.sSig}, {xm}\ns_add_u32 s{d}, s{d}, s{self.sC}\ns_sub_u32 s{self.sC}, s{d}, 10\ns_cmp_ge_u32 s{d}, 10\ns_cselect_b32 s{d}, s{self.sC}, s{d}")
        e(f"s_lshl_b32 s{d}, s{d}, 7")

    def dma_list(self, s):
        e = self.e
        sb = (s % NSTAGE) * STAGE
        out = []
        for m in range(2):
            for j in range(2):
                def f(m=m, j=j):
                    srd = self.srdW1 if m == 0 else self.srdW3
                    e.vmop(f"buffer_load_dwordx4 v{self.vWo+j}, {sr(srd, 4)}, s{self.sSoW} offen offset:{m*2048 + j*1024} lds", ("d", s))
                out.append((f"s_add_u32 m0, s{self.sMw}, {sb}\ns_mul_i32 s{self.sSoW}, s{self.sSoX+s}, 1536" if m + j == 0 else None, f))
        for i in range(7):
            def f(i=i):
                if i == 6:
                    e("s_mov_b32 exec_hi, 0")
                e.vmop(f"buffer_load_dwordx4 v{self.vXo+i}, {sr(self.srdX, 4)}, s{self.sSoX+s} offen offset:{(i & 3)*1024} lds", ("d", s))
                if i == 6:
                    e("s_mov_b32 exec_hi, -1")
            out.append((f"s_add_u32 m0, s{self.sMx}, {sb + (i >> 2)*4096}" if i % 4 == 0 else None, f))
        return out

    def epi_ops(self, u):
        g = self.acc + u * 8
        up = g + 4
        T = self.tmp + (u & 1) * 4
        dst = self.outb + ((u >> 1) & 1) * 4 + (u & 1) * 2
        ops = []
        for i in range(4):
            ops.append((1, f"v_mul_f32 v{T+i}, s{self.sK}, v{g+i}"))
        for i in range(4):
            ops.append((2, f"v_exp_f32 v{T+i}, v{T+i}"))
            ops.append((1, f"v_mul_f32 v{g+i}, v{g+i}, v{up+i}"))
        for i in range(4):
            ops.append((1, f"v_add_f32 v{T+i}, 1.0, v{T+i}"))
        for i in range(4):
            ops.append((2, f"v_rcp_f32 v{T+i}, v{T+i}"))
        for i in range(4):
            ops.append((1, f"v_mul_f32 v{g+i}, v{g+i}, v{T+i}"))
        ops.append((1, f"v_cvt_pk_bf16_f32 v{dst}, v{g}, v{g+1}"))
        ops.append((1, f"v_cvt_pk_bf16_f32 v{dst+1}, v{g+2}, v{g+3}"))
        return ops

    def phase1_main(self):
        e = self.e
        c = self.c
        D, E = c["D"], c["E"]
        R = D + 2
        t, L = self.vT, self.vLane
        first = self.dma_list(0) + self.dma_list(1) + self.dma_list(2)
        def coop(s0, n):
            def f():
                assert not c["xm"]
                e(f"s_mov_b64 exec, {(1 << (4*n)) - 1}\ns_mov_b32 s{self.sA}, {s0*196608}")
                e.vmop(f"buffer_load_dword v{self.vPoll}, v{self.vPw}, {sr(self.srdW1, 4)}, s{self.sA} offen", "cpf")
                e.vmop(f"buffer_load_dword v{self.vPoll}, v{self.vPw}, {sr(self.srdW3, 4)}, s{self.sA} offen offset:2048", "cpf")
                e(f"s_mov_b64 exec, {(1 << (9*n)) - 1}")
                e.vmop(f"buffer_load_dword v{self.vPoll}, v{self.vPx}, {sr(self.srdX, 4)}, 0 offen offset:{s0*128}", "cpf")
                e("s_mov_b64 exec, -1")
            return (None, f)
        for pos, s0, n in reversed(c["cpf"] or ()):
            first.insert(pos, coop(s0, n))
        npre = c["npre"] + len(c["cpf"] or ())
        assert npre <= 26
        def emit_now(items):
            for m0, f in items:
                if m0:
                    e(m0 + "\ns_nop 0")
                f()
        pre0 = c["pre0"]
        emit_now(first[:pre0])
        self.acc = e.v(NU * 8, 4)
        self.xr = e.v(R * 4, 4)
        NW = 5
        self.wf = e.v(8 * NW, 4)
        vXa, vWa = e.v(6), e.v(3)
        self.vHs = e.v()
        self.tmp = e.v(8, 4)
        self.outb = e.v(8, 4)
        self.sK, self.sHo = e.s(), e.s()
        self.publish_token()
        self.slab_off(2)
        e(f"v_and_b32 v{t}, 15, v{L}\nv_bfe_u32 v{t+1}, v{L}, 1, 3\nv_lshrrev_b32 v{t+2}, 4, v{L}\nv_xor_b32 v{t+1}, v{t+1}, v{t+2}")
        e(f"v_lshlrev_b32 v{t}, 7, v{t}\nv_lshl_add_u32 v{vXa}, v{t+1}, 4, v{t}\nv_xor_b32 v{vXa+1}, 64, v{vXa}")
        self.tr_lane_addr(vWa, 4096, 1024, self.sWave)
        e(f"v_add_u32 v{vWa}, {XS}, v{vWa}")
        emit_now(first[pre0:npre])
        vq = list(first[npre:])
        mark = len(e.L)
        tsave = (e.t, e.tm, e.tv)
        self.slab_off(3)
        for st in (1, 2):
            e(f"v_add_u32 v{vXa+2*st}, {st*STAGE}, v{vXa}\nv_add_u32 v{vXa+2*st+1}, {st*STAGE}, v{vXa+1}")
        e(f"v_add_u32 v{vWa+1}, {STAGE}, v{vWa}\nv_add_u32 v{vWa+2}, {2*STAGE}, v{vWa}")
        self.late_srds()
        e("MARK1:")
        self.slab_off(4)
        e("MARK2:")
        for sx in range(5, 10):
            self.slab_off(sx)
        e("MARK3:")
        e(f"s_mov_b32 s{self.sK}, 0xbfb8aa3b")
        e(f"v_bfe_u32 v{t}, v{L}, 4, 1\nv_mul_u32_u24 v{self.vHs}, 49152, v{t}")
        e(f"v_bfe_u32 v{t}, v{L}, 5, 1\nv_lshl_add_u32 v{self.vHs}, v{t}, 8, v{self.vHs}")
        e(f"v_and_b32 v{t}, 15, v{L}\nv_lshl_add_u32 v{self.vHs}, v{t}, 4, v{self.vHs}")
        e(f"s_mul_i32 s{self.sA}, s{self.sRb}, {NU*49152}\ns_lshl_b32 s{self.sB}, s{self.sCh}, 11\ns_add_u32 s{self.sA}, s{self.sA}, s{self.sB}")
        e(f"s_lshl_b32 s{self.sB}, s{self.sWave}, 9\ns_add_u32 s{self.sA}, s{self.sA}, s{self.sB}")
        e(f"v_add_u32 v{self.vHs}, s{self.sA}, v{self.vHs}")
        e(f"s_lshr_b32 s{self.sA}, s{self.sXcd}, 1\ns_mul_i32 s{self.sB}, s{self.sA}, 6\ns_sub_u32 s{self.sB}, s{self.sCh}, s{self.sB}")
        e(f"s_lshl_b32 s{self.sC}, s{self.sRb}, 2\ns_add_u32 s{self.sA}, s{self.sA}, s{self.sC}\ns_lshl_b32 s{self.sA}, s{self.sA}, 10")
        e(f"s_lshl_b32 s{self.sB}, s{self.sB}, 7")
        e(f"s_add_u32 s{self.sFl}, s{self.sA}, s{self.sB}")
        self.phase2_setup()
        e("MARK5:")
        lines = [l.strip() for l in e.L[mark:]]
        del e.L[mark:]
        e.t, e.tm, e.tv = tsave
        setup = []
        for l in lines:
            if l.split()[0] in ("s_cselect_b32", "s_addc_u32", "s_subb_u32"):
                setup[-1] += "\n" + l
            else:
                setup.append(l)

        def setup_upto(m):
            while m in setup:
                it = setup.pop(0)
                if not it.startswith("MARK"):
                    e(it)

        seq = [(u, s, ks) for s in range(8) for ks in range(2) for u in range(NU)]
        k = c["tail"]
        seq += [(u, 8, ks) for ks in range(2) for u in range(k, NU)]
        for u in range(NU):
            if u < k:
                seq += [(u, 8, 0), (u, 8, 1)]
            seq += [(u, 9, 0), (u, 9, 1)]
        N = len(seq)
        first_use = {s: min(n for n in range(N) if seq[n][1] == s) for s in range(10)}
        last_use = {u: max(n for n in range(N) if seq[n][0] == u) for u in range(NU)}
        bpos = {s: first_use[s] - (D - E) for s in range(1, 10)}
        bpos[0] = 0
        if bpos[9] <= bpos[8] + 1:
            bpos[9] = bpos[8]

        def xread(n):
            u, s, ks = seq[n]
            e.ldsop(f"ds_read_b128 {vr(self.xr + (n % R)*4, 4)}, v{vXa + 2*(s % NSTAGE) + ks} offset:{u*2048}", ("x", n))

        def wbuf(s, ks):
            return self.wf + ((2 * s + ks) % NW) * 8

        def wread(s, ks, m, h):
            e.ldsop(f"ds_read_b64_tr_b16 {vr(wbuf(s, ks) + m*4 + h*2, 2)}, v{vWa + s % NSTAGE} offset:{ks*8192 + m*2048 + h*512}", ("w", s, ks))

        wneed, wlast = {}, {}
        for n, (u, s, ks) in enumerate(seq):
            wneed.setdefault((s, ks), n)
            wlast[(s, ks)] = n
        lq = []

        def validate(sx):
            for ks in range(2):
                for m in range(2):
                    for h in range(2):
                        lq.append((wneed[(sx, ks)], 0, ("w", sx, ks, m, h)))
            for n in range(N):
                if seq[n][1] == sx:
                    lq.append((n, 1, ("x", n)))
            lq.sort(key=lambda z: (z[0], z[1]))

        def lds_ok(it, n):
            if it[2][0] == "x":
                return it[0] <= n + R - 2
            if it[2][0] == "r":
                return True
            _, sx, ks, m, h = it[2]
            prev = 2 * sx + ks - NW
            return prev < 0 or wlast[(prev // 2, prev % 2)] < n

        def lds_issue(it):
            lq.remove(it)
            if it[2][0] == "x":
                xread(it[2][1])
            elif it[2][0] == "r":
                _, bb, h = it[2]
                e.ldsop(f"ds_read_b64_tr_b16 {vr(self.outb + 4*bb + 2*h, 2)}, v{vWa+2} offset:{RED0 - XS - 2*STAGE + bb*2048 + h*512}", ("r", bb))
            else:
                wread(*it[2][1:])

        self.stamp()
        e.wait(vm=[("d", 0)])
        e("s_barrier")
        self.stamp()
        validate(0)
        while lq[0][0] < D:
            lds_issue(lq[0])
        epi = []
        st = dict(m0=False, vslot=0, tn=0, tv=32, epi=0)
        done_units = 0

        def run_events():
            while vq and vq[0][0] == "event":
                vq.pop(0)[1]()

        def vm_issue():
            run_events()
            m0, f = vq.pop(0)
            m0 = None if m0 and m0.startswith("hguard") else m0
            if m0 and not st["m0"]:
                e(m0 + "\ns_nop 0")
            f()
            st["m0"] = False
            st["tn"] = max(st["tn"], e.t - 12 - 24) + st["tv"]
            run_events()

        def gap(n, isA):
            used = None
            st["vslot"] += 1
            head = lq[0] if lq and lds_ok(lq[0], n) else None
            backlog = (sum(1 for m0, _ in vq if m0 and m0.startswith("s_")) > 3 and n < 52) or n < bpos[c["fastto"]]
            tv = c["tback"] if backlog else (c["tdma"] if about_dma(vq) else c["tw2"])
            st["tv"] = tv
            vm_ready = vq and (vq[0][0] is None or st["m0"] or (vq[0][0].startswith("hguard") and st["epi"] >= int(vq[0][0][6:]))) and e.t >= st["tn"]
            if head and head[0] - n <= c["crit"]:
                lds_issue(head)
                used = "l"
                if backlog and vm_ready:
                    vm_issue()
                    used = "v"
            elif vm_ready:
                vm_issue()
                used = "v"
            else:
                cand = [it for it in lq[:24] if lds_ok(it, n) and (it[2][0] in "wr" or it[0] - n <= D + (1 if isA else 0))]
                if cand:
                    lds_issue(cand[0])
                    used = "l"
            if used != "v" and vq and vq[0][0] and vq[0][0].startswith("s_") and not st["m0"]:
                e(vq[0][0])
                st["m0"] = True
            elif used != "v" and setup:
                for _ in range(1 if used else 2):
                    if setup:
                        it = setup.pop(0)
                        if not it.startswith("MARK"):
                            e(it)

        def pop_epi(budget):
            while epi and budget > 0:
                it = epi.pop(0)
                if callable(it):
                    it()
                    budget -= 2
                elif it[0] == "mark":
                    st["epi"] = it[1]
                    if c["stamps"] == 3 and it[1] in (3, 6, 9):
                        self.stamp()
                else:
                    e(it[1])
                    budget -= it[0]

        def store_pair(pr):
            def f():
                ob = self.outb + (pr & 1) * 4
                e(f"s_mov_b32 s{self.sHo}, {pr*2*49152}\ns_nop 0")
                e(f"v_permlane16_swap_b32 v{ob}, v{ob+2}\nv_permlane16_swap_b32 v{ob+1}, v{ob+3}")
                if 2 * pr + 1 >= NU:
                    e("s_mov_b32 exec_lo, 0xffff\ns_mov_b32 exec_hi, 0xffff")
                e.vmop(f"buffer_store_dwordx4 {vr(ob, 4)}, v{self.vHs}, {sr(self.srdH, 4)}, s{self.sHo} offen {c['stf']}", ("hst", pr))
                if 2 * pr + 1 >= NU:
                    e("s_mov_b64 exec, -1")
            return f

        def flag_item(pr, stage):
            return lambda: self.publish_h(pr, stage)

        def unit_done(u):
            epi.extend(self.epi_ops(u))
            epi.append(("mark", u + 1))
            if u % 2 == 1 or u == NU - 1:
                epi.append(store_pair(u // 2))
            if u == c["fA"]:
                epi.append(flag_item(1, 1))
            if u == c["fB"]:
                epi.append(flag_item(3, 2))
            if u == NU - 1 and c["fC"] < 0:
                epi.append(flag_item(4, 3))

        def mfma(n, m):
            u, s, ks = seq[n]
            a = self.acc + u * 8 + m * 4
            cin = "0" if (s == 0 and ks == 0) else vr(a, 4)
            if not (c.get("no_mfma") and s >= 1):
                e(f"v_mfma_f32_16x16x32_bf16 {vr(a, 4)}, {vr(wbuf(s, ks) + m*4, 4)}, {vr(self.xr + (n % R)*4, 4)}, {cin}")

        tail0 = last_use[0]
        e.wait(lds=[("x", 0), ("w", 0, 0)])
        for n in range(N):
            u, s, ks = seq[n]
            intail = n > tail0 + 2
            mfma(n, 0)
            bars = [sb for sb in range(1, 10) if bpos[sb] == n]
            if bars:
                sb, s0 = max(bars), min(bars)
                setup_upto(f"MARK{s0}:")
                while len([x for x in e.vm if x == ("d", sb)]) < 11:
                    vm_issue()
                rel = s0 + 2 <= 9
                e.wait(vm=[("d", sb)], lds_all=rel)
                e("s_barrier")
                if c["stamps"] == 2 or sb in (1, 5, 8, 9):
                    self.stamp()
                for sx in bars:
                    validate(sx)
                held = [it for it in vq if getattr(it[1], "__name__", "") in ("w2", "chk", "chk0", "chk2")]
                vq[:] = [it for it in vq if it not in held]
                if s0 == c["w2at"] and not c.get("p1only"):
                    vq.append((None, lambda: e.vmop(self.tok_txt(), "tok")))
                    vq.append((None, lambda: e.vmop(self.poll_txt(self.vFr, 0), "pollr")))
                    held = self.seam_queue()
                if rel:
                    vq += self.dma_list(s0 + 2)
                vq += held
            else:
                gap(n, False)
                if intail:
                    pop_epi(c.get("epiB", 4))
            mfma(n, 1)
            if n + 1 < N:
                u2, s2, ks2 = seq[n + 1]
                while lq and lq[0][0] <= n + 1:
                    assert lds_ok(lq[0], n + 1)
                    lds_issue(lq[0])
                e.wait(lds=[("x", n + 1), ("w", s2, ks2)])
            gap(n, True)
            while done_units < NU and last_use[done_units] + 2 <= n:
                unit_done(done_units)
                done_units += 1
            if intail:
                pop_epi(c.get("epiA", 4))
        self.stamp()
        if c.get("p1only"):
            self.write_stamps()
            e("s_endpgm")
        e("s_nop 3")
        while done_units < NU:
            unit_done(done_units)
            done_units += 1
        while epi:
            pop_epi(2)
            if vq and e.t - e.tv >= c["tw2"] - 12 and not (vq[0][0] or "").startswith(f"hguard{st['epi'] + 1}"):
                vm_issue()
        self.stamp()
        k = 0
        while vq and not c.get("p1only"):
            if k == c["fC"]:
                flag_item(4, 3)()
            vm_issue()
            k += 1
        assert k > c["fC"] or c.get("p1only")
        self.stamp()

    def phase2_setup(self):
        e = self.e
        c = self.c
        t, L = self.vT, self.vLane
        if not hasattr(self, "sM2"):
            self.sM2, self.sNb, self.sSoP = e.s(), e.s(), e.s()
            self.sU, self.sFo, self.sRow = e.s(4), e.s(4), e.s(4)
            self.vP, self.vHl, self.vFr, self.vFh = e.v(), e.v(), e.v(), e.v()
            self.vRw, self.vRa, self.vOa = (e.v() for _ in range(3))
            self.sSoH = e.s()
            self.sGo = e.s(3)
            self.sR2 = e.s()
        if c["map2"] == "8x4":
            e(f"s_and_b32 s{self.sM2}, s{self.sXcd}, 3\ns_lshl_b32 s{self.sM2}, s{self.sM2}, 3\ns_and_b32 s{self.sA}, s{self.sSlot}, 7\ns_add_u32 s{self.sM2}, s{self.sM2}, s{self.sA}")
            e(f"s_lshr_b32 s{self.sNb}, s{self.sXcd}, 2\ns_lshl_b32 s{self.sNb}, s{self.sNb}, 2\ns_lshr_b32 s{self.sA}, s{self.sSlot}, 3\ns_add_u32 s{self.sNb}, s{self.sNb}, s{self.sA}")
        else:
            e(f"s_lshl_b32 s{self.sM2}, s{self.sXcd}, 2\ns_and_b32 s{self.sA}, s{self.sSlot}, 3\ns_add_u32 s{self.sM2}, s{self.sM2}, s{self.sA}")
            e(f"s_lshr_b32 s{self.sNb}, s{self.sSlot}, 2")
        e(f"s_mul_i32 s{self.sA}, s{self.sWave}, 12288\nv_lshlrev_b32 v{t}, 4, v{L}\nv_add_u32 v{self.vHl}, s{self.sA}, v{t}")
        e(f"s_mul_i32 s{self.sB}, s{self.sNb}, {5*49152}\nv_add_u32 v{self.vP}, s{self.sB}, v{self.vHl}")
        e(f"v_min_u32 v{t}, 3, v{L}\nv_lshlrev_b32 v{t}, 7, v{t}\ns_lshl_b32 s{self.sA}, s{self.sWave}, 9\ns_add_u32 s{self.sA}, s{self.sA}, {FR_OFF}\nv_add_u32 v{self.vFr}, s{self.sA}, v{t}")
        e(f"v_min_u32 v{t}, 5, v{L}\nv_lshlrev_b32 v{t}, 7, v{t}\ns_lshl_b32 s{self.sA}, s{self.sWave}, 10\nv_add_u32 v{self.vFh}, s{self.sA}, v{t}")
        for j in range(4):
            e(f"s_add_u32 s{self.sA}, s{self.sM2}, {32*j}")
            e(f"s_mul_i32 s{self.sB}, s{self.sA}, 205\ns_lshr_b32 s{self.sB}, s{self.sB}, 11")
            e(f"s_mul_i32 s{self.sC}, s{self.sB}, 10\ns_sub_u32 s{self.sC}, s{self.sA}, s{self.sC}")
            if j == 3:
                e(f"s_cmp_ge_u32 s{self.sA}, 119\ns_cselect_b32 s{self.sU+3}, 12, 11\ns_cselect_b32 s{self.sRow+3}, 9, 0")
                e(f"s_sub_u32 s{self.sRow+3}, s{self.sA}, s{self.sRow+3}\ns_sub_u32 s{self.sRow+3}, s{self.sRow+3}, 110")
                e(f"s_cmp_ge_u32 s{self.sA}, 110\ns_cselect_b32 s{self.sB}, s{self.sU+3}, s{self.sB}\ns_cselect_b32 s{self.sC}, s{self.sRow+3}, s{self.sC}")
            e(f"s_lshl_b32 s{self.sFo+j}, s{self.sC}, 12")
            if j:
                e(f"s_add_u32 s{self.sFo+j}, s{self.sFo+j}, {j*FSTAGE}")
            e(f"s_mul_i32 s{self.sC}, s{self.sC}, 13\ns_add_u32 s{self.sC}, s{self.sC}, s{self.sB}")
            e(f"s_mul_i32 s{self.sU+j}, s{self.sC}, {0 if c.get('hsame') else 49152}\ns_mul_i32 s{self.sRow+j}, s{self.sC}, 20480")
        if c["grot"]:
            e(f"s_add_u32 s{self.sA}, s{self.sM2}, s{self.sNb}\ns_mul_i32 s{self.sB}, s{self.sA}, 86\ns_lshr_b32 s{self.sB}, s{self.sB}, 8\ns_mul_i32 s{self.sB}, s{self.sB}, 3\ns_sub_u32 s{self.sA}, s{self.sA}, s{self.sB}")
            e(f"s_lshl_b32 s{self.sGo}, s{self.sA}, 12")
            for g in (1, 2):
                e(f"s_add_u32 s{self.sGo+g}, s{self.sGo+g-1}, 4096\ns_cmp_eq_u32 s{self.sGo+g}, 12288\ns_cselect_b32 s{self.sGo+g}, 0, s{self.sGo+g}")
        else:
            for g in range(3):
                e(f"s_mov_b32 s{self.sGo+g}, {g*4096}")
        e(f"v_lshrrev_b32 v{t}, 4, v{L}\nv_mul_u32_u24 v{t}, 320, v{t}\nv_and_b32 v{t+1}, 15, v{L}\nv_lshl_add_u32 v{t}, v{t+1}, 4, v{t}")
        e(f"s_mul_i32 s{self.sA}, s{self.sWave}, {SST}\nv_add_u32 v{self.vRw}, s{self.sA}, v{t}")
        e(f"v_lshrrev_b32 v{t}, 2, v{L}\nv_min_u32 v{t}, 9, v{t}\ns_movk_i32 s{self.sA}, 0x296\nv_lshrrev_b32 v{t+1}, v{t}, s{self.sA}\nv_and_b32 v{t+1}, 1, v{t+1}\nv_lshrrev_b32 v{t}, 1, v{t}")
        e(f"v_and_b32 v{t+2}, 3, v{L}\ns_lshl_b32 s{self.sA}, s{self.sWave}, 2\nv_add_u32 v{t+2}, s{self.sA}, v{t+2}")
        e(f"v_mul_u32_u24 v{self.vRa}, {TST}, v{t}\nv_mul_u32_u24 v{t+3}, 640, v{t+1}\nv_add_u32 v{self.vRa}, v{self.vRa}, v{t+3}\nv_lshl_add_u32 v{self.vRa}, v{t+2}, 4, v{self.vRa}")
        e(f"v_mul_u32_u24 v{t+2}, 1280, v{t+2}\nv_lshl_add_u32 v{t+2}, v{t}, 5, v{t+2}\nv_lshl_add_u32 v{t+2}, v{t+1}, 4, v{t+2}")
        e(f"s_mul_i32 s{self.sA}, s{self.sNb}, 160\nv_add_u32 v{self.vOa}, s{self.sA}, v{t+2}")

    def w2p_list(self):
        e = self.e
        out = []
        for g in range(3):
            for tt in range(5):
                for k4 in range(4):
                    ks = g * 4 + k4

                    def w2(tt=tt, ks=ks, g=g, k4=k4):
                        if k4 == 0:
                            e(f"s_add_u32 s{self.sSoP}, s{self.sGo+g}, {tt*49152}")
                        e.vmop(f"buffer_load_dwordx4 {ar((tt*12 + ks)*4, 4)}, v{self.vP}, {sr(self.srdP, 4)}, s{self.sSoP} offen offset:{k4*1024} {self.c['ldf']}", ("p", tt, ks))
                    out.append(w2)
        return out

    def hload(self, i):
        e = self.e
        j, ks = divmod(i, 12)
        if ks % 4 == 0:
            e(f"s_add_u32 s{self.sSoH}, s{self.sU+j}, s{self.sGo + (ks >> 2)}")
        e.vmop(f"buffer_load_dwordx4 {vr(self.hr + (i % self.c['HR'])*4, 4)}, v{self.vHl}, {sr(self.srdH, 4)}, s{self.sSoH} offen offset:{(ks & 3)*1024} {self.c['ldf']}", ("h", i))

    def pollh(self, j):
        self.e.vmop(self.poll_txt(self.vFh, f"s{self.sFo+j}"), ("pollh", j))

    def checkh(self, j, sfx=""):
        self.e.wait(vm=[("pollh", j)])
        self.poll_check(f"L_ph{j}{sfx}", self.vFh, f"s{self.sFo+j}")

    def seam_queue(self, sfx=""):
        e = self.e
        c = self.c
        self.hr = self.acc

        def chk():
            e.wait(vm=["pollr"])
            if not sfx:
                self.tok_check("L_tok")
            self.poll_check("L_pr" + sfx, self.vFr, 0)
            self.stamp()
        q = [("event", chk)]
        w2l = [(None, f) for f in self.w2p_list()]
        def rpoll(k):
            txt = self.poll_txt(self.vFr, 0).replace("offen", f"offen offset:{k*2048 - 2048}").replace(f", 0 offen", f", {'s%d' % self.sR2 if k == 3 else 0} offen").replace("offset:4096", "offset:0")

            def w2():
                if k == 3:
                    e(f"s_movk_i32 s{self.sR2}, 4096")
                e.vmop(txt, ("pollr", k))

            def chk2():
                e.wait(vm=[("pollr", k)])
                self.spin(f"L_pr{k}" + sfx, txt, lambda: e(f"v_cmp_ne_u32 vcc, v{self.vPoll}, v{self.vTok}"))
            return (None, w2), ("event", chk2)
        hf = c["hfirst"]
        assert hf >= 40
        p2, c2 = rpoll(2)
        p3, c3 = rpoll(3)
        rd = c["rpd"]
        q += w2l[:20-rd] + [p2] + w2l[20-rd:20] + [c2] + w2l[20:40-rd] + [p3] + w2l[40-rd:40] + [c3] + w2l[40:hf]
        w2l = [f for _, f in w2l]

        def w2():
            self.pollh(0)
        q.append((None, w2))
        pd = c["pd0"]
        q += [(None, f) for f in w2l[hf:hf + pd]]

        def chk0():
            self.checkh(0, sfx)
            if not sfx:
                self.stamp()
        q.append(("event", chk0))
        rest = w2l[hf + pd:]
        for i in range(c["PF"]):
            def w2(i=i):
                self.hload(i)
            q.append((f"hguard{i // 2 + 1}", w2))
            if i + 1 == c["pollks"]:
                def w2():
                    self.pollh(1)
                q.append((None, w2))
            for _ in range(2):
                if rest:
                    q.append((None, rest.pop(0)))
        q += [(None, f) for f in rest]
        return q

    def phase2_main(self):
        e = self.e
        c = self.c
        HR, PF = c["HR"], c["PF"]
        assert PF < 12 and HR <= 16
        hr = self.hr
        acc = self.wf
        ra, rb, obase = self.xr, self.xr + 16, self.acc + 64
        self.vRwH, self.vRaH = self.xr + 36, self.xr + 37
        stores = []
        seq = [(j, ks) for j in range(4) for ks in range(12)]
        hload, pollh, checkh = self.hload, self.pollh, self.checkh
        hn = PF
        side = []

        def red_write(j, tt):
            e.ldsop(f"ds_write_b128 v{self.vRw if j & 1 else self.vRwH}, {vr(acc + (j & 1)*20 + tt*4, 4)} offset:{tt*TST}", ("rw", j))

        def reduce_items(j, last):
            ob = obase + 4 * j
            va = self.vRa if j & 1 else self.vRaH
            it = []
            for tt in range(4 if last else 0, 5):
                it.append(lambda tt=tt: red_write(j, tt))
                if not last and c["wspace"]:
                    it.append(None)
            if not last:
                it += [None] * 2

            def bar():
                e.wait(lds=[("rw", j)])
                e("s_barrier")
            it.append(bar)
            for src in range(4):
                for h, base in enumerate((ra, rb)):
                    it.append(lambda src=src, h=h, base=base: e.ldsop(
                        f"ds_read_b128 {vr(base + src*4, 4)}, v{va} offset:{src*SST + h*320}", ("rr", j, h, src)))
            if not last:
                it += [None] * 4
            for src in range(1, 4):
                for h, base in enumerate((ra, rb)):
                    for half in range(2):
                        def ad(h=h, base=base, src=src, half=half):
                            e.wait(lds=[("rr", j, h, src)])
                            for i2 in (2 * half, 2 * half + 1):
                                e(f"v_add_f32 v{base+i2}, v{base+i2}, v{base+src*4+i2}")
                        it.append(ad)

            def sto():
                e("s_mov_b32 exec_hi, 0xff")
                e.vmop(f"buffer_store_dwordx4 {vr(ob, 4)}, v{self.vOa}, {sr(self.srdOut, 4)}, s{self.sRow+j} offen {c['outflags']}", ("o", j))
                e("s_mov_b32 exec_hi, -1")
            for h, base in enumerate((ra, rb)):
                def cvt(h=h, base=base):
                    e(f"v_cvt_pk_bf16_f32 v{ob+2*h}, v{base}, v{base+1}\nv_cvt_pk_bf16_f32 v{ob+2*h+1}, v{base+2}, v{base+3}")
                    if h:
                        stores.append(sto)
                it.append(cvt)
            return it
        e(f"v_add_u32 v{self.vRwH}, {RED0}, v{self.vRw}\nv_add_u32 v{self.vRaH}, {RED0}, v{self.vRa}")
        e.wait(vm=[("h", 0)] + [("p", tt, 0) for tt in range(5)])
        self.stamp()
        for i, (j, ks) in enumerate(seq[:44]):
            for tt in range(5):
                a = acc + (j & 1) * 20 + tt * 4
                cin = "0" if ks == 0 else vr(a, 4)
                e(f"v_mfma_f32_16x16x32_bf16 {vr(a, 4)}, {ar((tt*12 + ks)*4, 4)}, {vr(hr + (i % HR)*4, 4)}, {cin}")
                if tt == 0 and hn < 48:
                    hload(hn)
                    hn += 1
                elif tt == 0 and stores:
                    stores.pop(0)()
                elif tt == 1 and i == c["fD"]:
                    self.publish_h(6, 4)
                elif tt == 2 and hn < 48 and seq[hn][1] >= c['pollks'] and seq[hn][0] < 3 and ("pollh", seq[hn][0] + 1) not in e.vm:
                    pollh(seq[hn][0] + 1)
                elif tt == 3 and hn < 48 and seq[hn][1] == 0:
                    checkh(seq[hn][0])
                else:
                    if tt == 4 and i + 1 < 48:
                        e.wait(vm=[("h", i + 1)] + [("p", t2, seq[i + 1][1]) for t2 in range(5)])
                    if side and ks >= 1:
                        it = side.pop(0)
                        if it:
                            it()
            if ks == 11:
                if c["stamps"] == 3 and j < 3:
                    self.stamp()
                assert not side, len(side)
                side = reduce_items(j, False)
        for tt in range(5):
            for i in range(44, 48):
                a = acc + 20 + tt * 4
                if tt == 0:
                    e.wait(vm=[("h", i)])
                e(f"v_mfma_f32_16x16x32_bf16 {vr(a, 4)}, {ar((tt*12 + i - 36)*4, 4)}, {vr(hr + (i % HR)*4, 4)}, {vr(a, 4)}")
                if tt >= 2 and i == 46:
                    red_write(3, tt - 2)
                elif side:
                    it = side.pop(0)
                    if it:
                        it()
                elif stores:
                    stores.pop(0)()
        assert not side
        self.stamp()
        e("s_nop 3")
        red_write(3, 3)
        e("s_nop 2")
        side = reduce_items(3, True)
        for k, it in enumerate(side):
            if it:
                it()
            if stores:
                stores.pop(0)()
        if c["stamps"] or c.get("ms") is not None:
            self.stamp()
            e.wait(vm_all=True)
            self.stamp()

    def repack(self):
        e = self.e
        c = self.c
        t, L = self.vT, self.vLane
        sR, sLo, sSt = e.s(), e.s(8), e.s(8)
        vD, vR, vS = e.v(4), e.v(4), e.v(4)
        F = e.v(32, 4)
        e(f"s_lshl_b32 s{sR}, s{self.sXcd}, 1\ns_add_u32 s{sR}, s{sR}, s{self.sSlot}\ns_sub_u32 s{sR}, s{sR}, 30")
        e(f"s_lshr_b32 s{self.sB}, s{sR}, 2\ns_mul_i32 s{self.sB}, s{self.sB}, 384")
        e(f"v_lshrrev_b32 v{t}, 3, v{L}\nv_add_u32 v{t}, s{self.sB}, v{t}\nv_mul_u32_u24 v{vD}, 1280, v{t}")
        e(f"v_bfe_u32 v{t}, v{L}, 4, 1\nv_lshlrev_b32 v{t}, 1, v{t}")
        e(f"v_and_b32 v{t+1}, 7, v{L}\nv_xor_b32 v{t}, v{t}, v{t+1}\nv_lshl_add_u32 v{vD}, v{t}, 4, v{vD}")
        e(f"v_xor_b32 v{t}, 64, v{vD}")
        for p in range(1, 4):
            e(f"v_add_u32 v{vD+p}, {p*(10240 - 1024)}, v{vD if p % 2 == 0 else t}")
        e(f"s_and_b32 s{self.sFl}, s{sR}, 3\ns_lshl_b32 s{self.sFl}, s{self.sFl}, 2\ns_add_u32 s{self.sFl}, s{self.sFl}, s{self.sWave}")

        def offs(i):
            e(f"s_add_u32 s{self.sA}, s{self.sFl}, {16*i}\ns_mul_i32 s{self.sB}, s{self.sA}, 205\ns_lshr_b32 s{self.sB}, s{self.sB}, 11")
            e(f"s_mul_i32 s{self.sC}, s{self.sB}, 10\ns_sub_u32 s{self.sC}, s{self.sA}, s{self.sC}")
            e(f"s_mul_i32 s{sLo+i}, s{self.sB}, 40960\ns_lshl_b32 s{self.sSpin}, s{self.sC}, 7\ns_add_u32 s{sLo+i}, s{sLo+i}, s{self.sSpin}")
            e(f"s_mul_i32 s{sSt+i}, s{self.sC}, {4*49152}\ns_lshl_b32 s{self.sSpin}, s{self.sB}, 10\ns_add_u32 s{sSt+i}, s{sSt+i}, s{self.sSpin}")
            if i == 7:
                e(f"s_cmp_ge_u32 s{self.sA}, 120\ns_cselect_b32 s{sLo+i}, 0x40000000, s{sLo+i}\ns_cselect_b32 s{sSt+i}, 0x40000000, s{sSt+i}")
        AH = c["rah"]
        for i in range(AH):
            offs(i)
        sM = e.s()
        e(f"s_lshl_b32 s{sM}, s{self.sWave}, 15")
        self.after_kernarg("s")
        self.late_srds()

        def loads(i):
            e(f"s_add_u32 m0, s{sM}, {i*4096}\ns_nop 0")
            for p in range(4):
                e.vmop(f"buffer_load_dwordx4 v{vD+p}, {sr(self.srdW2, 4)}, s{sLo+i} offen offset:{p*1024} lds", ("rp", i))
        for i in range(AH):
            loads(i)
        for i in range(AH, 8):
            offs(i)
        self.tr_lane_addr(vR, 2048, 1024, None)
        e(f"v_add_u32 v{vR}, s{sM}, v{vR}")
        for sub in range(1, 4):
            e(f"v_xor_b32 v{vR+sub}, {sub*32}, v{vR}")
        e(f"s_lshr_b32 s{self.sB}, s{sR}, 2\ns_mul_i32 s{self.sB}, s{self.sB}, 12288\nv_lshlrev_b32 v{vS}, 4, v{L}\nv_add_u32 v{vS}, s{self.sB}, v{vS}")
        for sub in range(1, 4):
            e(f"v_add_u32 v{vS+sub}, {sub*49152}, v{vS}")
        e(f"s_lshl_b32 s{self.sFl}, s{sR}, 7\ns_add_u32 s{self.sFl}, s{self.sFl}, {FR_OFF}")
        for i in range(8):
            fb = F + (i & 1) * 16
            e.wait(vm=[("rp", i)])
            for sub in range(4):
                for h in range(2):
                    e.ldsop(f"ds_read_b64_tr_b16 {vr(fb + 4*sub + 2*h, 2)}, v{vR+sub} offset:{i*4096 + h*512}", ("rr", i, sub))
            if i + AH < 8:
                loads(i + AH)
            if i == 2:
                e.vmop(self.tok_txt(), "tok")
            for sub in range(4):
                e.wait(lds=[("rr", i, sub)])
                e.vmop(f"buffer_store_dwordx4 {vr(fb + 4*sub, 4)}, v{vS+sub}, {sr(self.srdP, 4)}, s{sSt+i} offen {c['stf']}", ("rst", i))
            if i in (2 + c["rlag"], 4 + c["rlag"]):
                e.wait(vm=[("rst", i - c["rlag"])])
                if i == 2 + c["rlag"]:
                    self.tok_check("L_tok2")
                e("s_barrier")
                self.publish(f"L_r{i}", self.sFl)
                e(f"s_add_u32 s{self.sFl}, s{self.sFl}, 2048")
                self.stamp()
        self.phase2_setup()
        e.wait(vm_all=True)
        e("s_barrier")
        self.publish("L_rlast", self.sFl)
        self.stamp()

    def build(self):
        e = self.e
        c = self.c
        head = HEADER + f"; @launch grid=(256,1,1) block=(256,1,1) lds={LDS_TOTAL}\n"
        self.prologue()
        mark = len(e.L)
        self.phase2_setup()
        del e.L[mark:]
        vmark, smark = e.vnext, e.snext
        e(f"s_cmp_ge_u32 s{self.sSlot}, 30\ns_cbranch_scc1 L_spare")
        self.phase1_setup()
        self.after_kernarg("w")
        self.srd_adj(self.srdW3, -2048)
        self.phase1_main()
        e("L_join:")
        if not c.get("p1only"):
            self.phase2_main()
            self.write_stamps()
        e(f"L_end_{KN}:\ns_endpgm")
        e("L_spare:")
        self.in_spare = True
        e.reset_counts()
        if c.get("p1only") == 2:
            e("s_endpgm")
        e.vnext, e.snext = vmark, smark
        self.repack()
        if c.get("p1only"):
            e("s_endpgm")
        e(f"s_mov_b32 s{self.sFl}, {FR_OFF + 16384}")
        e.vmop(self.poll_txt(self.vFr, 0), "pollr")
        for _, f in self.seam_queue("s"):
            f()
        e("s_waitcnt vmcnt(0)")
        e("s_branch L_join")
        e("L_codeend:")
        body = "\n".join(e.L)
        kd = f""".section .rodata,"a"
.p2align 6
.amdhsa_kernel {KN}
  .amdhsa_next_free_vgpr 512
  .amdhsa_next_free_sgpr 102
  .amdhsa_accum_offset 256
  .amdhsa_group_segment_fixed_size 0
  .amdhsa_kernarg_size 56
  .amdhsa_user_sgpr_count 2
  .amdhsa_user_sgpr_kernarg_segment_ptr 1
  .amdhsa_system_sgpr_workgroup_id_x 1
  .amdhsa_float_denorm_mode_32 3
.end_amdhsa_kernel
"""
        return head + '.amdgcn_target "amdgcn-amd-amdhsa--gfx950"\n.text\n' + body + "\n" + kd


def about_dma(vq):
    return bool(vq) and getattr(vq[0][1], "__name__", "") != "w2"


def parse_kw(args):
    kw = {}
    for a in args:
        k, v = a.split("=", 1)
        try:
            v = eval(v)
        except Exception:
            pass
        kw[k] = v
    return kw


if __name__ == "__main__":
    out = sys.argv[1]
    open(out, "w").write(Gen(**parse_kw(sys.argv[2:])).build())
```

```python
import sys

NAME = "standalone__glu_gated_swiglu__prompt"
KN = NAME + "_kernel"

X_BYTES = 2048 * 640 * 2
W_BYTES = 640 * 1536 * 2
OUT_BYTES = 2048 * 640 * 2
H_BYTES = 128 * 49152
W2P_OFF = 8 << 20
W2P_BYTES = 40 * 49152
FLAG_OFF = 12 << 20
FLAG_BYTES = 262144
FR_OFF = 196608
FSTAGE = 40960
STAMP_OFF = 16 << 20

NU = 13
XS = NU * 2048
STAGE = XS + 16384
NSTAGE = 3
RED0 = NSTAGE * STAGE
TST = 1344
SST = 5 * TST
REDSZ = 4 * SST
LDS_TOTAL = RED0 + REDSZ

HEADER = """; Kernarg layout for this problem (56 bytes, ptrs only, base s[0:1]):
;   offset  24: d_in[3] w2  shape=(1536, 640) dtype=bfloat16 strides=(1280, 2) contiguous=True
"""


class Em:
    def __init__(self):
        self.L = []
        self.reset_counts()
        self.vnext = 1
        self.snext = 4
        self.skip = lambda kind, tag: False
        self.t = self.tm = self.tv = 0

    def __call__(self, s):
        for line in s.split("\n"):
            line = line.strip()
            if line:
                self.L.append(line if line.endswith(":") else "    " + line)
                self.tick(line)

    def tick(self, line):
        op = line.split(" ")[0]
        if op.startswith("v_mfma"):
            self.t = max(self.t, self.tm + 16)
            self.tm = self.t
            self.t += 4
        elif op.startswith("v_"):
            self.t = max(self.t, self.tm + 8) + (8 if op.startswith(("v_exp", "v_rcp", "v_perm")) else 4)
        elif op.startswith(("buffer", "global")):
            self.t += 12
            self.tv = self.t
        elif op.startswith("ds_write"):
            self.t += 16
        elif op.startswith(("s_waitcnt", "s_nop")) or op.endswith(":"):
            self.t += 1
        else:
            self.t += 4

    def v(self, n=1, align=1):
        b = (self.vnext + align - 1) // align * align
        self.vnext = b + n
        assert self.vnext <= 256, "out of arch VGPRs"
        return b

    def s(self, n=1, align=1):
        b = (self.snext + align - 1) // align * align
        self.snext = b + n
        assert self.snext <= 102, "out of SGPRs"
        return b

    def ldsop(self, txt, tag=None):
        if not self.skip("lds", tag):
            self(txt)
        self.lds.append(tag)

    def vmop(self, txt, tag=None):
        if not self.skip("vm", tag):
            self(txt)
        self.vm.append(tag)

    def _need(self, ops, tags):
        idx = -1
        for t in tags:
            c = [i for i, x in enumerate(ops) if x == t]
            assert c, f"tag {t} never issued"
            idx = max(idx, c[-1])
        return idx + 1

    def wait(self, lds=(), vm=(), lds_all=False, vm_all=False):
        parts = []
        n = len(self.vm) if vm_all else (self._need(self.vm, vm) if vm else 0)
        if n > self.vm_done:
            cnt = min(len(self.vm) - n, 63)
            parts.append(f"vmcnt({cnt})")
            self.vm_done = len(self.vm) - cnt
        n = len(self.lds) if lds_all else (self._need(self.lds, lds) if lds else 0)
        if n > self.lds_done:
            cnt = min(len(self.lds) - n, 15)
            parts.append(f"lgkmcnt({cnt})")
            self.lds_done = len(self.lds) - cnt
        if parts:
            self("s_waitcnt " + " ".join(parts))

    def reset_counts(self):
        self.lds, self.vm, self.lds_done, self.vm_done = [], [], 0, 0


def vr(b, n):
    return f"v[{b}:{b+n-1}]" if n > 1 else f"v{b}"


def ar(b, n):
    return f"a[{b}:{b+n-1}]"


def sr(b, n):
    return f"s[{b}:{b+n-1}]" if n > 1 else f"s{b}"


DEF = dict(D=9, E=3, stamps=False, G=5, lead=1, xm=0, map2="8x4", stf="sc1", ldf="sc1", codepf=True, outflags="sc1",
           npre=18, pre0=8, tail=13, PF=9, HR=12, pollks=5, fA=6, fB=10, fC=-1, fD=1, align=12,
           tback=48, tdma=70, tw2=72, crit=3, rpv=1, rpos=0, rpub=3, rsk=8, l2pf=0, w2at=7, sleep=8, grot=0, wspace=1, ssleep=8, rah=3, rlag=1, rpd=8, r1d=7, fstr=4, tw2a=72, ua=0, g2late=0, bpos=12, chain=2, g0=1, lead0=1, lsh=0, inp2=0, wper=2, cpf=None, fastto=1, spf=(2, 3, 4), hfirst=48, pd0=8, epiA=4, epiB=4)


class Gen:
    def __init__(self, **kw):
        self.c = dict(DEF)
        self.c.update(kw)
        self.e = Em()
        c = self.c

        def skip(kind, tag):
            if kind == "vm" and tag in c.get("skipvm", ()):
                return True
            if not isinstance(tag, tuple):
                return False
            if kind == "vm" and tag[0] in c.get("skipvm", ()):
                return True
            if c.get("nohst") and kind == "vm" and tag[0] == "hst":
                return True
            if c.get("no_dma") and kind == "vm" and tag[0] == "d" and tag[1] >= 3:
                return True
            if c.get("no_xread") and kind == "lds" and tag[0] == "x" and tag[1] >= 26:
                return True
            return False
        self.e.skip = skip
        self.nstamp = 0
        self.cold = []

    def stamp(self):
        e = self.e
        if self.c.get("ms") is not None:
            if self.nstamp + (100 if getattr(self, "in_spare", False) else 0) == self.c["ms"]:
                e("s_memrealtime s[98:99]")
            self.nstamp += 1
            return
        if not self.c["stamps"]:
            return
        i = self.nstamp
        self.nstamp += 1
        if self.c["stamps"] == 9 and i != 30:
            return
        assert i < 31
        e(f"s_memtime {sr(self.sT, 2)}\ns_memrealtime {sr(self.sT3, 2)}")
        e("s_waitcnt lgkmcnt(0)")
        e.lds_done = len(e.lds)
        e(f"v_writelane_b32 v{self.vStamp}, s{self.sT}, {i}\nv_writelane_b32 v{self.vStamp}, s{self.sT3}, {32 + i}")

    def write_stamps(self):
        e = self.e
        if self.c.get("ms") is not None:
            e("s_waitcnt lgkmcnt(0)\nL_dly:\ns_memrealtime s[100:101]\ns_waitcnt lgkmcnt(0)\ns_sub_u32 s100, s100, s98\ns_cmp_lt_u32 s100, 3000\ns_cbranch_scc1 L_dly")
            return
        if not self.c["stamps"]:
            return
        keep = self.nstamp
        self.nstamp = 30
        self.stamp()
        self.nstamp = keep
        e(f"s_lshl_b32 s{self.sT}, s2, 2\ns_add_u32 s{self.sT}, s{self.sT}, s{self.sWave}\ns_lshl_b32 s{self.sT}, s{self.sT}, 8")
        e(f"s_add_u32 s{self.sT}, s{self.sT}, {STAMP_OFF}")
        e(f"v_lshlrev_b32 v{self.vT}, 2, v{self.vLane}\nv_add_u32 v{self.vT}, s{self.sT}, v{self.vT}")
        e(f"s_mov_b32 s{self.srdH+2}, 0x10000000")
        e(f"buffer_store_dword v{self.vStamp}, v{self.vT}, {sr(self.srdH, 4)}, 0 offen")
        e("s_waitcnt vmcnt(0)")

    def srd_adj(self, dst, addoff):
        e = self.e
        if addoff > 0:
            e(f"s_add_u32 s{dst}, s{dst}, {addoff}\ns_addc_u32 s{dst+1}, s{dst+1}, 0")
        else:
            e(f"s_sub_u32 s{dst}, s{dst}, {-addoff}\ns_subb_u32 s{dst+1}, s{dst+1}, 0")

    def srd_const(self, dst, nbytes):
        self.e(f"s_mov_b32 s{dst+2}, {nbytes}\ns_mov_b32 s{dst+3}, 0x20000")

    def tr_lane_addr(self, dst, qstride_hi, qstride_lo, sub):
        e = self.e
        t, L = self.vT, self.vLane
        e(f"v_bfe_u32 v{t}, v{L}, 5, 1\nv_mul_u32_u24 v{dst}, {qstride_hi}, v{t}")
        e(f"v_bfe_u32 v{t}, v{L}, 4, 1\nv_mul_u32_u24 v{t+1}, {qstride_lo}, v{t}\nv_add_u32 v{dst}, v{dst}, v{t+1}")
        e(f"v_lshlrev_b32 v{t+1}, 2, v{t}")
        e(f"v_bfe_u32 v{t}, v{L}, 3, 1\nv_lshl_add_u32 v{t+1}, v{t}, 1, v{t+1}")
        e(f"v_bfe_u32 v{t}, v{L}, 1, 1")
        if sub is not None:
            e(f"s_lshl_b32 s{self.sA}, s{sub}, 1\nv_add_u32 v{t}, s{self.sA}, v{t}")
        e(f"v_xor_b32 v{t}, v{t}, v{t+1}\nv_lshl_add_u32 v{dst}, v{t}, 4, v{dst}")
        e(f"v_bfe_u32 v{t}, v{L}, 2, 2\nv_lshl_add_u32 v{dst}, v{t}, 7, v{dst}")
        e(f"v_and_b32 v{t}, 1, v{L}\nv_lshl_add_u32 v{dst}, v{t}, 3, v{dst}")

    def spin(self, label, load, check):
        e = self.e
        if self.c.get("nocheck"):
            return
        check()
        e(f"s_cbranch_vccz {label}_out")
        e(f"s_mov_b32 s{self.sSpin}, 0x40000")
        e(f"{label}_spin:")
        e(f"s_sleep {self.c['ssleep'] if label.endswith('s') else self.c['sleep']}")
        e(load)
        e("s_waitcnt vmcnt(0)")
        check()
        e(f"s_cbranch_vccz {label}_out")
        e(f"s_sub_u32 s{self.sSpin}, s{self.sSpin}, 1\ns_cbranch_scc0 {label}_spin")
        e(f"{label}_out:")

    def tok_probe(self):
        self.e(f"s_buffer_load_dword s{self.sTok}, {sr(self.srdD, 4)}, 0")

    def tok_check(self, label):
        e = self.e
        e(f"s_cmp_eq_u32 s{self.sTok}, 0\ns_cbranch_scc1 {label}_slow\n{label}_ok:")
        e(f"v_mov_b32 v{self.vTok}, s{self.sTok}\ns_mov_b32 s{self.sTok+1}, s{self.sTok}")
        self.cold += [f"{label}_slow:", f"s_mov_b32 s{self.sSpin}, 0x40000", f"{label}_spin:",
                      f"buffer_load_dword v{self.vTok}, off, {sr(self.srdD, 4)}, 0 sc1", "s_waitcnt vmcnt(0)",
                      f"v_readfirstlane_b32 s{self.sTok}, v{self.vTok}", "s_nop 3", f"s_cmp_lg_u32 s{self.sTok}, 0", f"s_cbranch_scc1 {label}_ok",
                      "s_sleep 2", f"s_sub_u32 s{self.sSpin}, s{self.sSpin}, 1", f"s_cbranch_scc0 {label}_spin", f"s_branch {label}_ok"]

    def probe(self, soff, imm, n):
        e = self.e
        if ("probe",)[0] in self.c.get("skipvm", ()):
            return
        for i in range(0, n, 2):
            e(f"s_mov_b64 {sr(self.sPr+i, 2)}, 0")
        if self.c["fstr"] == 4:
            w = 8 if n > 4 else 4
            e(f"s_buffer_load_dwordx{w} {sr(self.sPr, w)}, {sr(self.srdF, 4)}, s{soff} offset:{imm}")
            return
        for i in range(n):
            e(f"s_buffer_load_dword s{self.sPr+i}, {sr(self.srdF, 4)}, s{soff} offset:{imm + self.c['fstr']*i}")

    def probe_check(self, label, vaddr, soff, imm, n):
        e = self.e
        if self.c.get("nocheck"):
            return

        for i in range(0, n, 2):
            e(f"s_cmp_eq_u64 {sr(self.sPr+i, 2)}, {sr(self.sTok, 2)}\ns_cbranch_scc0 {label}_slow")
        e(f"{label}_out:")
        k = [f"{label}_slow:", "s_waitcnt lgkmcnt(0)"]
        ident = ["L_pr1", "L_pr2", "L_pr3", "L_ph0", "L_ph1", "L_ph2", "L_ph3"].index(label.rstrip("s"))
        if self.c["stamps"] == 9:
            k.append(f"v_writelane_b32 v{self.vStamp}, 1, {2*ident + 1}")
        for i in range(0, n, 2):
            k += [f"s_cmp_eq_u64 {sr(self.sPr+i, 2)}, {sr(self.sTok, 2)}", f"s_cbranch_scc0 {label}_vec" if i + 2 < n else f"s_cbranch_scc1 {label}_out"]
        k += [f"{label}_vec:"] + ([f"v_writelane_b32 v{self.vStamp}, 1, {2*ident + 2}"] if self.c["stamps"] == 9 else [])
        k += [f"s_add_u32 s{self.sA}, s{soff}, {imm}", f"s_mov_b32 s{self.sSpin}, 0x40000", f"{label}_spin:",
              f"buffer_load_dword v{self.vPoll}, v{vaddr}, {sr(self.srdF, 4)}, s{self.sA} offen sc1", "s_waitcnt vmcnt(0)",
              f"v_cmp_ne_u32 vcc, v{self.vPoll}, v{self.vTok}", f"s_cbranch_vccz {label}_out",
              f"s_sleep {self.c['ssleep'] if label.endswith('s') else self.c['sleep']}",
              f"s_sub_u32 s{self.sSpin}, s{self.sSpin}, 1", f"s_cbranch_scc0 {label}_spin", f"s_branch {label}_out"]
        self.cold += k

    def publish(self, label, sreg, srd=None, cond=None):
        e = self.e
        if self.c.get("noflag"):
            return
        e(f"s_cmp_lg_u32 s{self.sWave if cond is None else cond}, 0\ns_cbranch_scc1 {label}")
        e(f"s_mov_b64 exec, 1\nbuffer_store_dword v{self.vTok}, off, {sr(self.srdF if srd is None else srd, 4)}, s{sreg} sc1\ns_mov_b64 exec, -1")
        e(f"{label}:")

    def publish_h(self, pr, stage):
        e = self.e
        e.wait(vm=[("hst", pr)])
        e("s_barrier")
        self.publish(f"L_pub{stage}", self.sFl)
        if stage < 4:
            e(f"s_add_u32 s{self.sFl}, s{self.sFl}, {FSTAGE}")

    def prologue(self):
        e = self.e
        c = self.c
        e(f".globl {KN}\n.p2align {c['align']}\n.type {KN},@function\n{KN}:")
        self.srdX, self.srdW1, self.srdW3, self.srdW2 = (e.s(4, 4) for _ in range(4))
        self.srdOut, self.srdH, self.srdP, self.srdD, self.srdF = (e.s(4, 4) for _ in range(5))
        self.sT, self.sT2 = e.s(2, 2), e.s(2, 2)
        self.sWave, self.sXcd, self.sSlot = e.s(), e.s(), e.s()
        self.sA, self.sB, self.sC, self.sSpin, self.sFl = (e.s() for _ in range(5))
        if c["stamps"]:
            self.vStamp = e.v()
            self.sT3, self.sT4 = e.s(2, 2), e.s(2, 2)
        self.vLane = e.v()
        self.vT = e.v(4, 4)
        self.vTok, self.vPoll = e.v(), e.v()
        self.sTok = e.s(2, 2)
        e(f"s_cmp_ge_u32 s2, 256\ns_cbranch_scc1 L_end_{KN}")
        if c["codepf"]:
            e(f"s_getpc_b64 {sr(self.sT, 2)}")
        for srd, off in ((self.srdX, 0), (self.srdW1, 8), (self.srdW3, 16), (self.srdW2, 24), (self.srdOut, 32),
                         (self.srdD, 40), (self.srdH, 48), (self.srdP, 48), (self.srdF, 48)):
            e(f"s_load_dwordx2 {sr(srd, 2)}, s[0:1], {off}")
        e(f"s_memrealtime {sr(self.sT2, 2)}")
        if c.get("ms") is not None:
            e("s_memrealtime s[98:99]")
        if c["stamps"]:
            e(f"v_mov_b32 v{self.vStamp}, 0")
            e(f"s_memtime {sr(self.sT4, 2)}")
        e(f"v_lshrrev_b32 v{self.vT}, 6, v0")
        e(f"v_and_b32 v{self.vLane}, 63, v0")
        e(f"v_readfirstlane_b32 s{self.sWave}, v{self.vT}")
        if c["codepf"]:
            t = self.vT + 1
            e(f"v_lshlrev_b32 v{t}, 7, v0")
            e(f"s_and_b32 s{self.sT}, s{self.sT}, 0xffffff00")
            e(f"v_min_u32 v{t}, L_codeend - {KN} - 4, v{t}")
            e.vmop(f"global_load_dword v{self.vPoll}, v{t}, {sr(self.sT, 2)}", "codepf")
        e(f"s_and_b32 s{self.sXcd}, s2, 7\ns_lshr_b32 s{self.sSlot}, s2, 3")
        for dst, nbytes in ((self.srdX, X_BYTES), (self.srdW1, W_BYTES), (self.srdW3, W_BYTES + 2048), (self.srdD, 256)):
            self.srd_const(dst, nbytes)

    def after_kernarg(self, tag):
        e = self.e
        e("s_waitcnt lgkmcnt(0)")
        if self.c.get("ms") is not None:
            self.nstamp = 1
            self.stamp()
        if self.c["stamps"]:
            e(f"v_writelane_b32 v{self.vStamp}, s{self.sT4}, 0\nv_writelane_b32 v{self.vStamp}, s{self.sT2}, 32")
            self.nstamp = 1
            self.stamp()

    def late_srds(self):
        for dst, nbytes in ((self.srdW2, W_BYTES), (self.srdOut, OUT_BYTES), (self.srdH, H_BYTES), (self.srdP, W2P_BYTES),
                            (self.srdF, FLAG_BYTES)):
            self.srd_const(dst, nbytes)
        self.srd_adj(self.srdP, W2P_OFF)
        self.srd_adj(self.srdF, FLAG_OFF)

    def publish_token(self):
        e = self.e
        t = self.vT
        e(f"s_or_b32 s{self.sA}, s2, s{self.sWave}\ns_cmp_lg_u32 s{self.sA}, 0\ns_cbranch_scc1 L_notok")
        e(f"s_max_u32 s{self.sA}, s{self.sT2}, 1\nv_mov_b32 v{t}, s{self.sA}")
        e(f"s_mov_b64 exec, 1\nbuffer_store_dword v{t}, off, {sr(self.srdD, 4)}, 0 sc1\ns_mov_b64 exec, -1")
        e("L_notok:")

    def phase1_setup(self):
        e = self.e
        c = self.c
        t, L = self.vT, self.vLane
        self.sRb, self.sCh = e.s(), e.s()
        self.sSoX, self.sSoW = e.s(10), e.s()
        self.sMx, self.sMw = e.s(), e.s()
        sG, sSig = e.s(), e.s()
        e(f"s_mul_i32 s{self.sA}, s{self.sSlot}, 43\ns_lshr_b32 s{self.sA}, s{self.sA}, 8")
        e(f"s_mul_i32 s{self.sB}, s{self.sA}, 6\ns_sub_u32 s{self.sB}, s{self.sSlot}, s{self.sB}")
        e(f"s_and_b32 s{self.sC}, s{self.sXcd}, 1\ns_mul_i32 s{self.sC}, s{self.sC}, 5\ns_add_u32 s{self.sRb}, s{self.sC}, s{self.sA}")
        e(f"s_lshr_b32 s{self.sC}, s{self.sXcd}, 1\ns_mul_i32 s{self.sC}, s{self.sC}, 6\ns_add_u32 s{self.sCh}, s{self.sC}, s{self.sB}")
        G = c["G"]
        if c["cpf"]:
            self.sRbl, self.sChl = e.s(), e.s()
            e(f"s_mov_b32 s{self.sRbl}, s{self.sA}\ns_mov_b32 s{self.sChl}, s{self.sB}")
        e(f"s_add_u32 s{sG}, s{self.sA}, s{self.sB}")
        if G == 1:
            e(f"s_mov_b32 s{sG}, 0")
        elif G == 2:
            e(f"s_and_b32 s{sG}, s{sG}, 1")
        else:
            e(f"s_mul_i32 s{self.sC}, s{sG}, {-(-256 // G)}\ns_lshr_b32 s{self.sC}, s{self.sC}, 8\ns_mul_i32 s{self.sC}, s{self.sC}, {G}\ns_sub_u32 s{sG}, s{sG}, s{self.sC}")
        e(f"s_lshr_b32 s{self.sC}, s{self.sXcd}, 1\ns_add_u32 s{self.sC}, s{self.sC}, s{self.sXcd}\ns_and_b32 s{sSig}, s{self.sC}, 1")
        self.sG, self.sSig = sG, sSig
        self.slab_off(0)
        self.slab_off(1)
        self.vXo = e.v(7)
        self.vWo = e.v(2)
        e(f"s_mul_i32 s{self.sA}, s{self.sWave}, 52")
        e(f"v_lshrrev_b32 v{t}, 3, v{L}\nv_add_u32 v{t}, s{self.sA}, v{t}")
        e(f"v_bfe_u32 v{t+1}, v{t}, 1, 3\nv_and_b32 v{t+2}, 7, v{L}\nv_xor_b32 v{t+1}, v{t+1}, v{t+2}")
        e(f"s_mul_i32 s{self.sB}, s{self.sRb}, 208\nv_add_u32 v{t}, s{self.sB}, v{t}\nv_mul_u32_u24 v{t}, 1280, v{t}")
        e(f"v_lshl_add_u32 v{self.vXo}, v{t+1}, 4, v{t}")
        e(f"v_xor_b32 v{t+1}, 64, v{self.vXo}")
        for i in range(1, 7):
            src = self.vXo if i % 2 == 0 else t + 1
            e(f"v_add_u32 v{self.vXo+i}, {i*10240 - (i & 3)*1024}, v{src}")
        e(f"s_lshl_b32 s{self.sA}, s{self.sWave}, 4\nv_lshrrev_b32 v{t}, 3, v{L}\nv_add_u32 v{t}, s{self.sA}, v{t}")
        e(f"v_mul_u32_u24 v{t}, 3072, v{t}")
        e(f"v_bfe_u32 v{t+1}, v{L}, 4, 1\nv_lshlrev_b32 v{t+1}, 1, v{t+1}\nv_xor_b32 v{t+1}, v{t+1}, v{t+2}")
        e(f"v_lshl_add_u32 v{t}, v{t+1}, 4, v{t}\ns_lshl_b32 s{self.sA}, s{self.sCh}, 7\nv_add_u32 v{self.vWo}, s{self.sA}, v{t}")
        e(f"v_xor_b32 v{t}, 64, v{self.vWo}\nv_add_u32 v{self.vWo+1}, {8*3072 - 1024}, v{t}")
        if c["cpf"]:
            self.vPx, self.vPw = e.v(), e.v()
            rbl, chl = self.sRbl, self.sChl
            e(f"v_mul_u32_u24 v{t}, 57, v{L}\nv_lshrrev_b32 v{t}, 9, v{t}\nv_mul_u32_u24 v{t+3}, 9, v{t}\nv_sub_u32 v{t+3}, v{L}, v{t+3}")
            e(f"s_lshl_b32 s{self.sA}, s{chl}, 2\ns_add_u32 s{self.sA}, s{self.sA}, s{self.sWave}\ns_mul_i32 s{self.sA}, s{self.sA}, 9\ns_add_u32 s{self.sA}, s{self.sA}, s{self.sB}")
            e(f"v_add_u32 v{t+3}, s{self.sA}, v{t+3}\nv_mul_u32_u24 v{t+3}, 1280, v{t+3}\nv_lshl_add_u32 v{self.vPx}, v{t}, 7, v{t+3}")
            e(f"s_lshl_b32 s{self.sA}, s{rbl}, 2\ns_add_u32 s{self.sA}, s{self.sA}, s{self.sWave}\ns_mul_i32 s{self.sA}, s{self.sA}, 13\ns_lshr_b32 s{self.sA}, s{self.sA}, 2")
            e(f"v_and_b32 v{t+3}, 3, v{L}\nv_add_u32 v{t+3}, s{self.sA}, v{t+3}\nv_lshrrev_b32 v{t}, 2, v{L}\nv_lshl_add_u32 v{t}, v{t}, 6, v{t+3}")
            e(f"v_mul_u32_u24 v{t}, 3072, v{t}\ns_lshl_b32 s{self.sA}, s{self.sCh}, 7\nv_add_u32 v{self.vPw}, s{self.sA}, v{t}")
        e(f"s_mul_i32 s{self.sMx}, s{self.sWave}, 6656")
        e(f"s_lshl_b32 s{self.sMw}, s{self.sWave}, 12\ns_add_u32 s{self.sMw}, s{self.sMw}, {XS}")

    def slab_off(self, s):
        e = self.e
        G, xm = self.c["G"], self.c["xm"]
        base = s // G * G
        d = self.sSoX + s
        if self.c.get("lead"):
            ld = self.c["lead"]
            e(f"s_mov_b32 s{d}, {s}")
            for cl in range(5):
                o = list(range(10))
                g0 = self.c["g0"]
                o[:g0] = [(i + cl) % g0 for i in range(g0)]
                for a in range(max(g0, self.c["lead0"]), 10):
                    if (a - ld) % 5 == (cl + self.c["lsh"]) % 5:
                        o.remove(a)
                        o.insert(a - ld, a)
                if o[s] != s:
                    e(f"s_cmp_eq_u32 s{self.sG}, {cl}\ns_cselect_b32 s{d}, {o[s]}, s{d}")
        elif base + G > 10 or G == 1:
            e(f"s_mov_b32 s{d}, {s}")
        elif G == 2:
            e(f"s_xor_b32 s{d}, s{self.sG}, {s}")
        else:
            e(f"s_add_u32 s{d}, s{self.sG}, {s}\ns_sub_u32 s{self.sC}, s{d}, {G}\ns_cmp_ge_u32 s{d}, {base + G}\ns_cselect_b32 s{d}, s{self.sC}, s{d}")
        if xm == "rev":
            e(f"s_sub_u32 s{self.sC}, 9, s{d}\ns_cmp_eq_u32 s{self.sSig}, 1\ns_cselect_b32 s{d}, s{self.sC}, s{d}")
        elif xm:
            e(f"s_mul_i32 s{self.sC}, s{self.sSig}, {xm}\ns_add_u32 s{d}, s{d}, s{self.sC}\ns_sub_u32 s{self.sC}, s{d}, 10\ns_cmp_ge_u32 s{d}, 10\ns_cselect_b32 s{d}, s{self.sC}, s{d}")
        e(f"s_lshl_b32 s{d}, s{d}, 7")

    def dma_list(self, s):
        e = self.e
        sb = (s % NSTAGE) * STAGE
        out = []
        for m in range(2):
            for j in range(2):
                def f(m=m, j=j):
                    srd = self.srdW1 if m == 0 else self.srdW3
                    e.vmop(f"buffer_load_dwordx4 v{self.vWo+j}, {sr(srd, 4)}, s{self.sSoW} offen offset:{m*2048 + j*1024} lds", ("d", s))
                out.append((f"s_add_u32 m0, s{self.sMw}, {sb}\ns_mul_i32 s{self.sSoW}, s{self.sSoX+s}, 1536" if m + j == 0 else None, f))
        for i in range(7):
            def f(i=i):
                if i == 6:
                    e("s_mov_b32 exec_hi, 0")
                e.vmop(f"buffer_load_dwordx4 v{self.vXo+i}, {sr(self.srdX, 4)}, s{self.sSoX+s} offen offset:{(i & 3)*1024} lds", ("d", s))
                if i == 6:
                    e("s_mov_b32 exec_hi, -1")
            out.append((f"s_add_u32 m0, s{self.sMx}, {sb + (i >> 2)*4096}" if i % 4 == 0 else None, f))
        return out

    def epi_ops(self, u):
        g = self.acc + u * 8
        up = g + 4
        T = self.tmp + (u & 1) * 4
        dst = self.outb + ((u >> 1) & 1) * 4 + (u & 1) * 2
        ops = []
        for i in range(4):
            ops.append((1, f"v_mul_f32 v{T+i}, s{self.sK}, v{g+i}"))
        for i in range(4):
            ops.append((2, f"v_exp_f32 v{T+i}, v{T+i}"))
            ops.append((1, f"v_mul_f32 v{g+i}, v{g+i}, v{up+i}"))
        for i in range(4):
            ops.append((1, f"v_add_f32 v{T+i}, 1.0, v{T+i}"))
        for i in range(4):
            ops.append((2, f"v_rcp_f32 v{T+i}, v{T+i}"))
        for i in range(4):
            ops.append((1, f"v_mul_f32 v{g+i}, v{g+i}, v{T+i}"))
        ops.append((1, f"v_cvt_pk_bf16_f32 v{dst}, v{g}, v{g+1}"))
        ops.append((1, f"v_cvt_pk_bf16_f32 v{dst+1}, v{g+2}, v{g+3}"))
        return ops

    def phase1_main(self):
        e = self.e
        c = self.c
        D, E = c["D"], c["E"]
        R = D + 2
        t, L = self.vT, self.vLane
        first = self.dma_list(0) + self.dma_list(1) + self.dma_list(2)
        def coop(s0, n):
            def f():
                assert not c["xm"]
                e(f"s_mov_b64 exec, {(1 << (4*n)) - 1}\ns_mov_b32 s{self.sA}, {s0*196608}")
                e.vmop(f"buffer_load_dword v{self.vPoll}, v{self.vPw}, {sr(self.srdW1, 4)}, s{self.sA} offen", "cpf")
                e.vmop(f"buffer_load_dword v{self.vPoll}, v{self.vPw}, {sr(self.srdW3, 4)}, s{self.sA} offen offset:2048", "cpf")
                e(f"s_mov_b64 exec, {(1 << (9*n)) - 1}")
                e.vmop(f"buffer_load_dword v{self.vPoll}, v{self.vPx}, {sr(self.srdX, 4)}, 0 offen offset:{s0*128}", "cpf")
                e("s_mov_b64 exec, -1")
            return (None, f)
        for pos, s0, n in reversed(c["cpf"] or ()):
            first.insert(pos, coop(s0, n))
        npre = c["npre"] + len(c["cpf"] or ())
        assert npre <= 26
        def emit_now(items):
            for m0, f in items:
                if m0:
                    e(m0 + "\ns_nop 0")
                f()
        pre0 = c["pre0"]
        emit_now(first[:pre0])
        self.acc = e.v(NU * 8, 4)
        self.xr = e.v(R * 4, 4)
        NW = 5
        self.wf = e.v(8 * NW, 4)
        vXa, vWa = e.v(6), e.v(3)
        self.vHs = e.v()
        self.tmp = e.v(8, 4)
        self.outb = e.v(8, 4)
        self.sK, self.sHo = e.s(), e.s()
        self.publish_token()
        self.slab_off(2)
        e(f"v_and_b32 v{t}, 15, v{L}\nv_bfe_u32 v{t+1}, v{L}, 1, 3\nv_lshrrev_b32 v{t+2}, 4, v{L}\nv_xor_b32 v{t+1}, v{t+1}, v{t+2}")
        e(f"v_lshlrev_b32 v{t}, 7, v{t}\nv_lshl_add_u32 v{vXa}, v{t+1}, 4, v{t}\nv_xor_b32 v{vXa+1}, 64, v{vXa}")
        self.tr_lane_addr(vWa, 4096, 1024, self.sWave)
        e(f"v_add_u32 v{vWa}, {XS}, v{vWa}")
        emit_now(first[pre0:npre])
        vq = list(first[npre:])
        mark = len(e.L)
        tsave = (e.t, e.tm, e.tv)
        self.slab_off(3)
        for st in (1, 2):
            e(f"v_add_u32 v{vXa+2*st}, {st*STAGE}, v{vXa}\nv_add_u32 v{vXa+2*st+1}, {st*STAGE}, v{vXa+1}")
        e(f"v_add_u32 v{vWa+1}, {STAGE}, v{vWa}\nv_add_u32 v{vWa+2}, {2*STAGE}, v{vWa}")
        self.late_srds()
        e("MARK1:")
        self.slab_off(4)
        e("MARK2:")
        for sx in range(5, 10):
            self.slab_off(sx)
        e("MARK3:")
        e(f"s_mov_b32 s{self.sK}, 0xbfb8aa3b")
        e(f"v_bfe_u32 v{t}, v{L}, 4, 1\nv_mul_u32_u24 v{self.vHs}, 49152, v{t}")
        e(f"v_bfe_u32 v{t}, v{L}, 5, 1\nv_lshl_add_u32 v{self.vHs}, v{t}, 8, v{self.vHs}")
        e(f"v_and_b32 v{t}, 15, v{L}\nv_lshl_add_u32 v{self.vHs}, v{t}, 4, v{self.vHs}")
        e(f"s_mul_i32 s{self.sA}, s{self.sRb}, {NU*49152}\ns_lshl_b32 s{self.sB}, s{self.sCh}, 11\ns_add_u32 s{self.sA}, s{self.sA}, s{self.sB}")
        e(f"s_lshl_b32 s{self.sB}, s{self.sWave}, 9\ns_add_u32 s{self.sA}, s{self.sA}, s{self.sB}")
        e(f"v_add_u32 v{self.vHs}, s{self.sA}, v{self.vHs}")
        e(f"s_lshr_b32 s{self.sA}, s{self.sXcd}, 1\ns_mul_i32 s{self.sB}, s{self.sA}, 6\ns_sub_u32 s{self.sB}, s{self.sCh}, s{self.sB}")
        e(f"s_lshl_b32 s{self.sC}, s{self.sRb}, 2\ns_add_u32 s{self.sA}, s{self.sA}, s{self.sC}\ns_lshl_b32 s{self.sA}, s{self.sA}, 10")
        e(f"s_mul_i32 s{self.sB}, s{self.sB}, {c['fstr']}")
        e(f"s_add_u32 s{self.sFl}, s{self.sA}, s{self.sB}")
        self.phase2_setup()
        e("MARK5:")
        lines = [l.strip() for l in e.L[mark:]]
        del e.L[mark:]
        e.t, e.tm, e.tv = tsave
        setup = []
        for l in lines:
            if l.split()[0] in ("s_cselect_b32", "s_addc_u32", "s_subb_u32"):
                setup[-1] += "\n" + l
            else:
                setup.append(l)

        def setup_upto(m):
            while m in setup:
                it = setup.pop(0)
                if not it.startswith("MARK"):
                    e(it)

        seq = [(u, s, ks) for s in range(8) for ks in range(2) for u in range(NU)]
        k = c["tail"]
        seq += [(u, 8, ks) for ks in range(2) for u in range(k, NU)]
        for u in range(NU):
            if u < k:
                seq += [(u, 8, 0), (u, 8, 1)]
            seq += [(u, 9, 0), (u, 9, 1)]
        N = len(seq)
        first_use = {s: min(n for n in range(N) if seq[n][1] == s) for s in range(10)}
        last_use = {u: max(n for n in range(N) if seq[n][0] == u) for u in range(NU)}
        bpos = {s: first_use[s] - (D - E) for s in range(1, 10)}
        bpos[0] = 0
        if bpos[9] <= bpos[8] + 1:
            bpos[9] = bpos[8]

        def xread(n):
            u, s, ks = seq[n]
            e.ldsop(f"ds_read_b128 {vr(self.xr + (n % R)*4, 4)}, v{vXa + 2*(s % NSTAGE) + ks} offset:{u*2048}", ("x", n))

        def wbuf(s, ks):
            return self.wf + ((2 * s + ks) % NW) * 8

        def wread(s, ks, m, h):
            e.ldsop(f"ds_read_b64_tr_b16 {vr(wbuf(s, ks) + m*4 + h*2, 2)}, v{vWa + s % NSTAGE} offset:{ks*8192 + m*2048 + h*512}", ("w", s, ks))

        wneed, wlast = {}, {}
        for n, (u, s, ks) in enumerate(seq):
            wneed.setdefault((s, ks), n)
            wlast[(s, ks)] = n
        lq = []

        def validate(sx):
            for ks in range(2):
                for m in range(2):
                    for h in range(2):
                        lq.append((wneed[(sx, ks)], 0, ("w", sx, ks, m, h)))
            for n in range(N):
                if seq[n][1] == sx:
                    lq.append((n, 1, ("x", n)))
            lq.sort(key=lambda z: (z[0], z[1]))

        def lds_ok(it, n):
            if it[2][0] == "x":
                return it[0] <= n + R - 2
            if it[2][0] == "r":
                return True
            _, sx, ks, m, h = it[2]
            prev = 2 * sx + ks - NW
            return prev < 0 or wlast[(prev // 2, prev % 2)] < n

        def lds_issue(it):
            lq.remove(it)
            if it[2][0] == "x":
                xread(it[2][1])
            elif it[2][0] == "r":
                _, bb, h = it[2]
                e.ldsop(f"ds_read_b64_tr_b16 {vr(self.outb + 4*bb + 2*h, 2)}, v{vWa+2} offset:{RED0 - XS - 2*STAGE + bb*2048 + h*512}", ("r", bb))
            else:
                wread(*it[2][1:])

        self.stamp()
        e.wait(vm=[("d", 0)])
        e("s_barrier")
        self.stamp()
        validate(0)
        while lq[0][0] < D:
            lds_issue(lq[0])
        epi = []
        st = dict(m0=False, vslot=0, tn=0, tv=32, epi=0)
        done_units = 0

        def run_events():
            while vq and vq[0][0] == "event":
                vq.pop(0)[1]()

        def vm_issue():
            run_events()
            m0, f = vq.pop(0)
            m0 = None if m0 and m0.startswith("hguard") else m0
            if m0 and not st["m0"]:
                e(m0 + "\ns_nop 0")
            f()
            st["m0"] = False
            st["tn"] = max(st["tn"], e.t - 12 - 24) + st["tv"]
            run_events()

        def gap(n, isA):
            used = None
            st["vslot"] += 1
            head = lq[0] if lq and lds_ok(lq[0], n) else None
            backlog = (sum(1 for m0, _ in vq if m0 and m0.startswith("s_")) > 3 and n < 52) or n < bpos[c["fastto"]]
            tv = c["tback"] if backlog else (c["tdma"] if about_dma(vq) else (c["tw2a"] if st["epi"] < c["ua"] else c["tw2"]))
            st["tv"] = tv
            vm_ready = vq and (vq[0][0] is None or st["m0"] or (vq[0][0].startswith("hguard") and st["epi"] >= int(vq[0][0][6:]))) and e.t >= st["tn"]
            if head and head[0] - n <= c["crit"]:
                lds_issue(head)
                used = "l"
                if backlog and vm_ready:
                    vm_issue()
                    used = "v"
            elif vm_ready:
                vm_issue()
                used = "v"
            else:
                cand = [it for it in lq[:24] if lds_ok(it, n) and (it[2][0] in "wr" or it[0] - n <= D + (1 if isA else 0))]
                if cand:
                    lds_issue(cand[0])
                    used = "l"
            if used != "v" and vq and vq[0][0] and vq[0][0].startswith("s_") and not st["m0"]:
                e(vq[0][0])
                st["m0"] = True
            elif used != "v" and setup:
                for _ in range(1 if used else 2):
                    if setup:
                        it = setup.pop(0)
                        if not it.startswith("MARK"):
                            e(it)

        def pop_epi(budget):
            while epi and budget > 0:
                it = epi.pop(0)
                if callable(it):
                    it()
                    budget -= 2
                elif it[0] == "mark":
                    st["epi"] = it[1]
                    if c["stamps"] == 3 and it[1] in (3, 6, 9):
                        self.stamp()
                else:
                    e(it[1])
                    budget -= it[0]

        def store_pair(pr):
            def f():
                ob = self.outb + (pr & 1) * 4
                e(f"s_mov_b32 s{self.sHo}, {pr*2*49152}\ns_nop 0")
                e(f"v_permlane16_swap_b32 v{ob}, v{ob+2}\nv_permlane16_swap_b32 v{ob+1}, v{ob+3}")
                if 2 * pr + 1 >= NU:
                    e("s_mov_b32 exec_lo, 0xffff\ns_mov_b32 exec_hi, 0xffff")
                e.vmop(f"buffer_store_dwordx4 {vr(ob, 4)}, v{self.vHs}, {sr(self.srdH, 4)}, s{self.sHo} offen {c['stf']}", ("hst", pr))
                if 2 * pr + 1 >= NU:
                    e("s_mov_b64 exec, -1")
            return f

        def flag_item(pr, stage):
            return lambda: self.publish_h(pr, stage)

        def unit_done(u):
            epi.extend(self.epi_ops(u))
            epi.append(("mark", u + 1))
            if u % 2 == 1 or u == NU - 1:
                epi.append(store_pair(u // 2))
            if u == c["fA"]:
                epi.append(flag_item(1, 1))
            if u == c["fB"]:
                epi.append(flag_item(3, 2))
            if u == NU - 1 and c["fC"] < 0:
                epi.append(flag_item(4, 3))

        def mfma(n, m):
            u, s, ks = seq[n]
            a = self.acc + u * 8 + m * 4
            cin = "0" if (s == 0 and ks == 0) else vr(a, 4)
            if not (c.get("no_mfma") and s >= 1):
                e(f"v_mfma_f32_16x16x32_bf16 {vr(a, 4)}, {vr(wbuf(s, ks) + m*4, 4)}, {vr(self.xr + (n % R)*4, 4)}, {cin}")

        tail0 = last_use[0]
        e.wait(lds=[("x", 0), ("w", 0, 0)])
        for n in range(N):
            u, s, ks = seq[n]
            intail = n > tail0 + 2
            mfma(n, 0)
            bars = [sb for sb in range(1, 10) if bpos[sb] == n]
            if bars:
                sb, s0 = max(bars), min(bars)
                setup_upto(f"MARK{s0}:")
                while len([x for x in e.vm if x == ("d", sb)]) < 11:
                    vm_issue()
                rel = s0 + 2 <= 9
                e.wait(vm=[("d", sb)], lds_all=rel)
                e("s_barrier")
                if c["stamps"] == 2 or sb in (1, 5, 8, 9):
                    self.stamp()
                for sx in bars:
                    validate(sx)
                held = [it for it in vq if getattr(it[1], "__name__", "") in ("w2", "chkp", "chk0", "chk2")]
                vq[:] = [it for it in vq if it not in held]
                if s0 == c["w2at"] and not c.get("p1only"):
                    held = self.seam_queue()
                if s0 == 5:
                    self.tok_probe()
                if s0 == 6:
                    self.tok_check("L_tok")
                if rel:
                    dl = self.dma_list(s0 + 2)
                    if s0 == c["w2at"] and not c.get("p1only"):
                        dl.insert(11 - c["r1d"], ("event", lambda: self.r1probe[1]()))
                    vq += dl
                vq += held
            else:
                gap(n, False)
                if intail:
                    pop_epi(c.get("epiB", 4))
            mfma(n, 1)
            if n + 1 < N:
                u2, s2, ks2 = seq[n + 1]
                while lq and lq[0][0] <= n + 1:
                    assert lds_ok(lq[0], n + 1)
                    lds_issue(lq[0])
                e.wait(lds=[("x", n + 1), ("w", s2, ks2)])
            gap(n, True)
            while done_units < NU and last_use[done_units] + 2 <= n:
                unit_done(done_units)
                done_units += 1
            if intail:
                pop_epi(c.get("epiA", 4))
        self.stamp()
        if c.get("p1only"):
            self.write_stamps()
            e("s_endpgm")
        e("s_nop 3")
        while done_units < NU:
            unit_done(done_units)
            done_units += 1
        while epi:
            pop_epi(2)
            if vq and e.t - e.tv >= c["tw2"] - 12 and not (vq[0][0] or "").startswith(f"hguard{st['epi'] + 1}"):
                vm_issue()
        self.stamp()
        k = 0
        while vq and not c.get("p1only"):
            if k == c["fC"]:
                flag_item(4, 3)()
            vm_issue()
            k += 1
        assert k > c["fC"] or c.get("p1only")
        self.stamp()

    def phase2_setup(self):
        e = self.e
        c = self.c
        t, L = self.vT, self.vLane
        if not hasattr(self, "sM2"):
            self.sM2, self.sNb, self.sSoP = e.s(), e.s(), e.s()
            self.sU, self.sFo, self.sRow = e.s(4), e.s(4), e.s(4)
            self.vP, self.vHl, self.vFr, self.vFh = e.v(), e.v(), e.v(), e.v()
            self.vRw, self.vRa, self.vOa = (e.v() for _ in range(3))
            self.sSoH = e.s()
            self.sGo = e.s(3)
            self.sFr = e.s()
        if c["map2"] == "8x4":
            e(f"s_and_b32 s{self.sM2}, s{self.sXcd}, 3\ns_lshl_b32 s{self.sM2}, s{self.sM2}, 3\ns_and_b32 s{self.sA}, s{self.sSlot}, 7\ns_add_u32 s{self.sM2}, s{self.sM2}, s{self.sA}")
            e(f"s_lshr_b32 s{self.sNb}, s{self.sXcd}, 2\ns_lshl_b32 s{self.sNb}, s{self.sNb}, 2\ns_lshr_b32 s{self.sA}, s{self.sSlot}, 3\ns_add_u32 s{self.sNb}, s{self.sNb}, s{self.sA}")
        else:
            e(f"s_lshl_b32 s{self.sM2}, s{self.sXcd}, 2\ns_and_b32 s{self.sA}, s{self.sSlot}, 3\ns_add_u32 s{self.sM2}, s{self.sM2}, s{self.sA}")
            e(f"s_lshr_b32 s{self.sNb}, s{self.sSlot}, 2")
        e(f"s_mul_i32 s{self.sA}, s{self.sWave}, 12288\nv_lshlrev_b32 v{t}, 4, v{L}\nv_add_u32 v{self.vHl}, s{self.sA}, v{t}")
        e(f"s_mul_i32 s{self.sB}, s{self.sNb}, {5*49152}\nv_add_u32 v{self.vP}, s{self.sB}, v{self.vHl}")
        e(f"v_min_u32 v{t}, 3, v{L}\nv_mul_u32_u24 v{self.vFr}, {c['fstr']}, v{t}\ns_lshl_b32 s{self.sFr}, s{self.sWave}, 9\ns_add_u32 s{self.sFr}, s{self.sFr}, {FR_OFF}")
        e(f"v_min_u32 v{t}, 5, v{L}\nv_mul_u32_u24 v{self.vFh}, {c['fstr']}, v{t}")
        for j in range(4):
            e(f"s_add_u32 s{self.sA}, s{self.sM2}, {32*j}")
            e(f"s_mul_i32 s{self.sB}, s{self.sA}, 205\ns_lshr_b32 s{self.sB}, s{self.sB}, 11")
            e(f"s_mul_i32 s{self.sC}, s{self.sB}, 10\ns_sub_u32 s{self.sC}, s{self.sA}, s{self.sC}")
            if j == 3:
                e(f"s_cmp_ge_u32 s{self.sA}, 119\ns_cselect_b32 s{self.sU+3}, 12, 11\ns_cselect_b32 s{self.sRow+3}, 9, 0")
                e(f"s_sub_u32 s{self.sRow+3}, s{self.sA}, s{self.sRow+3}\ns_sub_u32 s{self.sRow+3}, s{self.sRow+3}, 110")
                e(f"s_cmp_ge_u32 s{self.sA}, 110\ns_cselect_b32 s{self.sB}, s{self.sU+3}, s{self.sB}\ns_cselect_b32 s{self.sC}, s{self.sRow+3}, s{self.sC}")
            e(f"s_lshl_b32 s{self.sFo+j}, s{self.sC}, 2\ns_add_u32 s{self.sFo+j}, s{self.sFo+j}, s{self.sWave}\ns_lshl_b32 s{self.sFo+j}, s{self.sFo+j}, 10")
            e(f"s_mul_i32 s{self.sC}, s{self.sC}, 13\ns_add_u32 s{self.sC}, s{self.sC}, s{self.sB}")
            e(f"s_mul_i32 s{self.sU+j}, s{self.sC}, {0 if c.get('hsame') else 49152}\ns_mul_i32 s{self.sRow+j}, s{self.sC}, 20480")
        if c["grot"]:
            e(f"s_add_u32 s{self.sA}, s{self.sM2}, s{self.sNb}\ns_mul_i32 s{self.sB}, s{self.sA}, 86\ns_lshr_b32 s{self.sB}, s{self.sB}, 8\ns_mul_i32 s{self.sB}, s{self.sB}, 3\ns_sub_u32 s{self.sA}, s{self.sA}, s{self.sB}")
            e(f"s_lshl_b32 s{self.sGo}, s{self.sA}, 12")
            for g in (1, 2):
                e(f"s_add_u32 s{self.sGo+g}, s{self.sGo+g-1}, 4096\ns_cmp_eq_u32 s{self.sGo+g}, 12288\ns_cselect_b32 s{self.sGo+g}, 0, s{self.sGo+g}")
        else:
            for g in range(3):
                e(f"s_mov_b32 s{self.sGo+g}, {g*4096}")
        e(f"v_lshrrev_b32 v{t}, 4, v{L}\nv_mul_u32_u24 v{t}, 320, v{t}\nv_and_b32 v{t+1}, 15, v{L}\nv_lshl_add_u32 v{t}, v{t+1}, 4, v{t}")
        e(f"s_mul_i32 s{self.sA}, s{self.sWave}, {SST}\nv_add_u32 v{self.vRw}, s{self.sA}, v{t}")
        e(f"v_lshrrev_b32 v{t}, 2, v{L}\nv_min_u32 v{t}, 9, v{t}\ns_movk_i32 s{self.sA}, 0x296\nv_lshrrev_b32 v{t+1}, v{t}, s{self.sA}\nv_and_b32 v{t+1}, 1, v{t+1}\nv_lshrrev_b32 v{t}, 1, v{t}")
        e(f"v_and_b32 v{t+2}, 3, v{L}\ns_lshl_b32 s{self.sA}, s{self.sWave}, 2\nv_add_u32 v{t+2}, s{self.sA}, v{t+2}")
        e(f"v_mul_u32_u24 v{self.vRa}, {TST}, v{t}\nv_mul_u32_u24 v{t+3}, 640, v{t+1}\nv_add_u32 v{self.vRa}, v{self.vRa}, v{t+3}\nv_lshl_add_u32 v{self.vRa}, v{t+2}, 4, v{self.vRa}")
        e(f"v_mul_u32_u24 v{t+2}, 1280, v{t+2}\nv_lshl_add_u32 v{t+2}, v{t}, 5, v{t+2}\nv_lshl_add_u32 v{t+2}, v{t+1}, 4, v{t+2}")
        e(f"s_mul_i32 s{self.sA}, s{self.sNb}, 160\nv_add_u32 v{self.vOa}, s{self.sA}, v{t+2}")

    def w2p_list(self):
        e = self.e
        out = []
        for g in range(3):
            for tt in range(5):
                for k4 in range(4):
                    ks = g * 4 + k4

                    def w2(tt=tt, ks=ks, g=g, k4=k4):
                        if k4 == 0:
                            e(f"s_add_u32 s{self.sSoP}, s{self.sGo+g}, {tt*49152}")
                        e.vmop(f"buffer_load_dwordx4 {ar((tt*12 + ks)*4, 4)}, v{self.vP}, {sr(self.srdP, 4)}, s{self.sSoP} offen offset:{k4*1024} {self.c['ldf']}", ("p", tt, ks))
                    out.append(w2)
        return out

    def hload(self, i):
        e = self.e
        j, ks = divmod(i, 12)
        if ks % 4 == 0:
            e(f"s_add_u32 s{self.sSoH}, s{self.sU+j}, s{self.sGo + (ks >> 2)}")
        e.vmop(f"buffer_load_dwordx4 {vr(self.hr + (i % self.c['HR'])*4, 4)}, v{self.vHl}, {sr(self.srdH, 4)}, s{self.sSoH} offen offset:{(ks & 3)*1024} {self.c['ldf']}", ("h", i))

    def pollh(self, j):
        self.polled.add(j)
        self.probe(self.sFo + j, j * FSTAGE, 6)

    def checkh(self, j, sfx=""):
        self.probe_check(f"L_ph{j}{sfx}", self.vFh, self.sFo + j, j * FSTAGE, 6)

    def seam_queue(self, sfx=""):
        e = self.e
        c = self.c
        self.hr = self.acc

        self.polled = set()
        self.post = []

        def rpoll(k):
            def chkp():
                self.probe(self.sFr, (k - 1) * 2048, 4)

            def chk2():
                self.probe_check(f"L_pr{k}" + sfx, self.vFr, self.sFr, (k - 1) * 2048, 4)
                if k == 1:
                    self.stamp()
            return ("event", chkp), ("event", chk2)
        self.r1probe, c1 = rpoll(1)
        q = [c1]
        w2l = [(None, f) for f in self.w2p_list()]
        p2, c2 = rpoll(2)
        p3, c3 = rpoll(3)
        rd, hf, pd = c["rpd"], c["hfirst"], c["pd0"]

        def chkp():
            self.pollh(0)
        ph0 = ("event", chkp)

        def chk0():
            self.checkh(0, sfx)
            if not sfx:
                self.stamp()
        hl = []
        for i in range(c["PF"]):
            def w2(i=i):
                self.hload(i)
            hl.append((f"hguard{i // 2 + 1}", w2))
            if i + 1 == c["pollks"]:
                def chkp():
                    self.pollh(1)
                hl.append(("event", chkp))
        q += w2l[:20-rd] + [p2] + w2l[20-rd:20] + [c2]
        if c["g2late"]:
            hl = [it for it in hl if it[0] != "event"]
            q += w2l[20:40-pd] + [ph0] + w2l[40-pd:40] + [("event", chk0), p3] + hl[:c["g2late"]] + [c3]
            hl, rest = hl[c["g2late"]:], w2l[40:]

            def chkp():
                self.pollh(1)
            k = len(rest) - c["inp2"]
            self.post = [f for _, f in rest[k:]]
            rest = rest[:k]
            rest.insert(min(c["bpos"], len(rest)), ("event", chkp))
        else:
            assert hf >= 40
            q += w2l[20:40-rd] + [p3] + w2l[40-rd:40] + [c3] + w2l[40:hf] + [ph0] + w2l[hf:hf+pd] + [("event", chk0)]
            rest = w2l[hf+pd:]
        for it in hl:
            q.append(it)
            q += rest[:c["wper"]]
            rest = rest[c["wper"]:]
        return q + rest

    def phase2_main(self):
        e = self.e
        c = self.c
        HR, PF = c["HR"], c["PF"]
        assert PF < 12 and HR <= 16
        hr = self.hr
        acc = self.wf
        ra, rb, obase = self.xr, self.xr + 16, self.acc + 64
        self.vRwH, self.vRaH = self.xr + 36, self.xr + 37
        stores = []
        seq = [(j, ks) for j in range(4) for ks in range(12)]
        hload, pollh, checkh = self.hload, self.pollh, self.checkh
        hn = PF
        post = list(self.post)
        side = []

        def red_write(j, tt):
            e.ldsop(f"ds_write_b128 v{self.vRw if j & 1 else self.vRwH}, {vr(acc + (j & 1)*20 + tt*4, 4)} offset:{tt*TST}", ("rw", j))

        def reduce_items(j, last):
            ob = obase + 4 * j
            va = self.vRa if j & 1 else self.vRaH
            it = []
            for tt in range(4 if last else 0, 5):
                it.append(lambda tt=tt: red_write(j, tt))
                if not last and c["wspace"]:
                    it.append(None)
            if not last:
                it += [None] * 2

            def bar():
                e.wait(lds=[("rw", j)])
                e("s_barrier")
            it.append(bar)
            for src in range(4):
                for h, base in enumerate((ra, rb)):
                    it.append(lambda src=src, h=h, base=base: e.ldsop(
                        f"ds_read_b128 {vr(base + src*4, 4)}, v{va} offset:{src*SST + h*320}", ("rr", j, h, src)))
            if not last:
                it += [None] * 4
            for src in range(1, 4):
                for h, base in enumerate((ra, rb)):
                    for half in range(2):
                        def ad(h=h, base=base, src=src, half=half):
                            e.wait(lds=[("rr", j, h, src)])
                            for i2 in (2 * half, 2 * half + 1):
                                e(f"v_add_f32 v{base+i2}, v{base+i2}, v{base+src*4+i2}")
                        it.append(ad)

            def sto():
                e("s_mov_b32 exec_hi, 0xff")
                e.vmop(f"buffer_store_dwordx4 {vr(ob, 4)}, v{self.vOa}, {sr(self.srdOut, 4)}, s{self.sRow+j} offen {c['outflags']}", ("o", j))
                e("s_mov_b32 exec_hi, -1")
            for h, base in enumerate((ra, rb)):
                def cvt(h=h, base=base):
                    e(f"v_cvt_pk_bf16_f32 v{ob+2*h}, v{base}, v{base+1}\nv_cvt_pk_bf16_f32 v{ob+2*h+1}, v{base+2}, v{base+3}")
                    if h:
                        stores.append(sto)
                it.append(cvt)
            return it
        e(f"v_add_u32 v{self.vRwH}, {RED0}, v{self.vRw}\nv_add_u32 v{self.vRaH}, {RED0}, v{self.vRa}")
        e.wait(vm=[("h", 0)] + [("p", tt, 0) for tt in range(5)])
        self.stamp()
        CH = c["chain"]
        order = [(i0 + k, tt) for i0 in range(0, 44, CH) for tt in range(5) for k in range(CH)]
        for pos, (im, tm) in enumerate(order):
            i, tt = divmod(pos, 5)
            j, ks = seq[i]
            jm, km = seq[im]
            a = acc + (jm & 1) * 20 + tm * 4
            e.wait(vm=[("h", im), ("p", tm, km)])
            e(f"v_mfma_f32_16x16x32_bf16 {vr(a, 4)}, {ar((tm*12 + km)*4, 4)}, {vr(hr + (im % HR)*4, 4)}, {'0' if km == 0 else vr(a, 4)}")
            if tt == 0 and hn < 48:
                hload(hn)
                hn += 1
            elif tt in (2, 3) and post:
                post.pop(0)()
            elif tt == 0 and stores:
                stores.pop(0)()
            elif tt == 1 and i == c["fD"]:
                self.publish_h(6, 4)
            elif tt == 2 and hn < 48 and seq[hn][1] >= c['pollks'] and seq[hn][0] < 3 and seq[hn][0] + 1 not in self.polled:
                pollh(seq[hn][0] + 1)
            elif tt == 1 and hn < 48 and seq[hn][1] == 0:
                checkh(seq[hn][0])
            elif side and ks >= 1:
                it = side.pop(0)
                if it:
                    it()
            if ks == 11 and tt == 4:
                if c["stamps"] == 3 and j < 3:
                    self.stamp()
                assert not side, len(side)
                side = reduce_items(j, False)
        assert HR >= PF + CH + 1
        for tt in range(5):
            for i in range(44, 48):
                a = acc + 20 + tt * 4
                if tt == 0:
                    e.wait(vm=[("h", i)])
                e(f"v_mfma_f32_16x16x32_bf16 {vr(a, 4)}, {ar((tt*12 + i - 36)*4, 4)}, {vr(hr + (i % HR)*4, 4)}, {vr(a, 4)}")
                if tt >= 2 and i == 46:
                    red_write(3, tt - 2)
                elif side:
                    it = side.pop(0)
                    if it:
                        it()
                elif stores:
                    stores.pop(0)()
        assert not side
        self.stamp()
        e("s_nop 3")
        red_write(3, 3)
        e("s_nop 2")
        side = reduce_items(3, True)
        for k, it in enumerate(side):
            if it:
                it()
            if stores:
                stores.pop(0)()
        if c["stamps"] or c.get("ms") is not None:
            self.stamp()
            e.wait(vm_all=True)
            self.stamp()

    def repack(self):
        e = self.e
        c = self.c
        t, L = self.vT, self.vLane
        sR, sLo, sSt = e.s(), e.s(8), e.s(8)
        vD, vR, vS = e.v(4), e.v(4), e.v(4)
        F = e.v(32, 4)
        e(f"s_lshl_b32 s{sR}, s{self.sXcd}, 1\ns_add_u32 s{sR}, s{sR}, s{self.sSlot}\ns_sub_u32 s{sR}, s{sR}, 30")
        e(f"s_lshr_b32 s{self.sB}, s{sR}, 2\ns_mul_i32 s{self.sB}, s{self.sB}, 384")
        e(f"v_lshrrev_b32 v{t}, 3, v{L}\nv_add_u32 v{t}, s{self.sB}, v{t}\nv_mul_u32_u24 v{vD}, 1280, v{t}")
        e(f"v_bfe_u32 v{t}, v{L}, 4, 1\nv_lshlrev_b32 v{t}, 1, v{t}")
        e(f"v_and_b32 v{t+1}, 7, v{L}\nv_xor_b32 v{t}, v{t}, v{t+1}\nv_lshl_add_u32 v{vD}, v{t}, 4, v{vD}")
        e(f"v_xor_b32 v{t}, 64, v{vD}")
        for p in range(1, 4):
            e(f"v_add_u32 v{vD+p}, {p*(10240 - 1024)}, v{vD if p % 2 == 0 else t}")
        e(f"s_and_b32 s{self.sFl}, s{sR}, 3\ns_lshl_b32 s{self.sFl}, s{self.sFl}, 2\ns_add_u32 s{self.sFl}, s{self.sFl}, s{self.sWave}")

        def offs(i):
            e(f"s_add_u32 s{self.sA}, s{self.sFl}, {16*i}\ns_mul_i32 s{self.sB}, s{self.sA}, 205\ns_lshr_b32 s{self.sB}, s{self.sB}, 11")
            e(f"s_mul_i32 s{self.sC}, s{self.sB}, 10\ns_sub_u32 s{self.sC}, s{self.sA}, s{self.sC}")
            e(f"s_mul_i32 s{sLo+i}, s{self.sB}, 40960\ns_lshl_b32 s{self.sSpin}, s{self.sC}, 7\ns_add_u32 s{sLo+i}, s{sLo+i}, s{self.sSpin}")
            e(f"s_mul_i32 s{sSt+i}, s{self.sC}, {4*49152}\ns_lshl_b32 s{self.sSpin}, s{self.sB}, 10\ns_add_u32 s{sSt+i}, s{sSt+i}, s{self.sSpin}")
            if i == 7:
                e(f"s_cmp_ge_u32 s{self.sA}, 120\ns_cselect_b32 s{sLo+i}, 0x40000000, s{sLo+i}\ns_cselect_b32 s{sSt+i}, 0x40000000, s{sSt+i}")
        AH = c["rah"]
        for i in range(AH):
            offs(i)
        sM = e.s()
        e(f"s_lshl_b32 s{sM}, s{self.sWave}, 15")
        self.after_kernarg("s")
        self.late_srds()

        def loads(i):
            e(f"s_add_u32 m0, s{sM}, {i*4096}\ns_nop 0")
            for p in range(4):
                e.vmop(f"buffer_load_dwordx4 v{vD+p}, {sr(self.srdW2, 4)}, s{sLo+i} offen offset:{p*1024} lds", ("rp", i))
        for i in range(AH):
            loads(i)
        for i in range(AH, 8):
            offs(i)
        self.tr_lane_addr(vR, 2048, 1024, None)
        e(f"v_add_u32 v{vR}, s{sM}, v{vR}")
        for sub in range(1, 4):
            e(f"v_xor_b32 v{vR+sub}, {sub*32}, v{vR}")
        e(f"s_lshr_b32 s{self.sB}, s{sR}, 2\ns_mul_i32 s{self.sB}, s{self.sB}, 12288\nv_lshlrev_b32 v{vS}, 4, v{L}\nv_add_u32 v{vS}, s{self.sB}, v{vS}")
        for sub in range(1, 4):
            e(f"v_add_u32 v{vS+sub}, {sub*49152}, v{vS}")
        e(f"s_lshr_b32 s{self.sA}, s{sR}, 2\ns_lshl_b32 s{self.sA}, s{self.sA}, 9\ns_and_b32 s{self.sFl}, s{sR}, 3\ns_mul_i32 s{self.sFl}, s{self.sFl}, {c['fstr']}")
        e(f"s_add_u32 s{self.sFl}, s{self.sFl}, s{self.sA}\ns_add_u32 s{self.sFl}, s{self.sFl}, {FR_OFF}")
        for i in range(8):
            fb = F + (i & 1) * 16
            e.wait(vm=[("rp", i)])
            for sub in range(4):
                for h in range(2):
                    e.ldsop(f"ds_read_b64_tr_b16 {vr(fb + 4*sub + 2*h, 2)}, v{vR+sub} offset:{i*4096 + h*512}", ("rr", i, sub))
            if i + AH < 8:
                loads(i + AH)
            if i == 1:
                self.tok_probe()
            for sub in range(4):
                e.wait(lds=[("rr", i, sub)])
                e.vmop(f"buffer_store_dwordx4 {vr(fb + 4*sub, 4)}, v{vS+sub}, {sr(self.srdP, 4)}, s{sSt+i} offen {c['stf']}", ("rst", i))
            if i in (2 + c["rlag"], 4 + c["rlag"]):
                e.wait(vm=[("rst", i - c["rlag"])])
                if i == 2 + c["rlag"]:
                    e("s_waitcnt lgkmcnt(0)")
                    self.tok_check("L_tok2")
                e("s_barrier")
                self.publish(f"L_r{i}", self.sFl)
                e(f"s_add_u32 s{self.sFl}, s{self.sFl}, 2048")
                self.stamp()
        self.phase2_setup()
        e.wait(vm_all=True)
        e("s_barrier")
        self.publish("L_rlast", self.sFl)
        self.stamp()

    def build(self):
        e = self.e
        c = self.c
        head = HEADER + f"; @launch grid=(256,1,1) block=(256,1,1) lds={LDS_TOTAL}\n"
        self.prologue()
        mark = len(e.L)
        self.phase2_setup()
        del e.L[mark:]
        vmark, smark = e.vnext, e.snext
        self.sPr = (smark + 3) // 4 * 4
        e(f"s_cmp_ge_u32 s{self.sSlot}, 30\ns_cbranch_scc1 L_spare")
        self.phase1_setup()
        self.after_kernarg("w")
        self.srd_adj(self.srdW3, -2048)
        self.phase1_main()
        e("L_join:")
        if not c.get("p1only"):
            self.phase2_main()
            self.write_stamps()
        e(f"L_end_{KN}:\ns_endpgm")
        e("L_spare:")
        self.in_spare = True
        e.reset_counts()
        if c.get("p1only") == 2:
            e("s_endpgm")
        e.vnext, e.snext = vmark, smark
        self.repack()
        if c.get("p1only"):
            e("s_endpgm")
        e(f"s_mov_b32 s{self.sFl}, {FR_OFF + 16384}")
        sq = self.seam_queue("s")
        self.r1probe[1]()
        for _, f in sq:
            f()
        e("s_waitcnt vmcnt(0)")
        e("s_branch L_join")
        e("\n".join(self.cold))
        e("L_codeend:")
        body = "\n".join(e.L)
        kd = f""".section .rodata,"a"
.p2align 6
.amdhsa_kernel {KN}
  .amdhsa_next_free_vgpr 512
  .amdhsa_next_free_sgpr 102
  .amdhsa_accum_offset 256
  .amdhsa_group_segment_fixed_size 0
  .amdhsa_kernarg_size 56
  .amdhsa_user_sgpr_count 2
  .amdhsa_user_sgpr_kernarg_segment_ptr 1
  .amdhsa_system_sgpr_workgroup_id_x 1
  .amdhsa_float_denorm_mode_32 3
.end_amdhsa_kernel
"""
        return head + '.amdgcn_target "amdgcn-amd-amdhsa--gfx950"\n.text\n' + body + "\n" + kd


def about_dma(vq):
    return bool(vq) and getattr(vq[0][1], "__name__", "") != "w2"


def parse_kw(args):
    kw = {}
    for a in args:
        k, v = a.split("=", 1)
        try:
            v = eval(v)
        except Exception:
            pass
        kw[k] = v
    return kw


if __name__ == "__main__":
    out = sys.argv[1]
    open(out, "w").write(Gen(**parse_kw(sys.argv[2:])).build())
```

```python
import sys

NAME = "standalone__glu_gated_swiglu__prompt"
KN = NAME + "_kernel"

X_BYTES = 2048 * 640 * 2
W_BYTES = 640 * 1536 * 2
OUT_BYTES = 2048 * 640 * 2
H_BYTES = 128 * 49152
W2P_OFF = 8 << 20
W2P_BYTES = 40 * 49152
FLAG_OFF = 12 << 20
FLAG_BYTES = 262144
FR_OFF = 196608
FSTAGE = 40960
STAMP_OFF = 16 << 20

NU = 13
XS = NU * 2048
STAGE = XS + 16384
NSTAGE = 3
RED0 = NSTAGE * STAGE
TST = 1344
SST = 5 * TST
REDSZ = 4 * SST
LDS_TOTAL = RED0 + REDSZ

HEADER = """; Kernarg layout for this problem (56 bytes, ptrs only, base s[0:1]):
;   offset  24: d_in[3] w2  shape=(1536, 640) dtype=bfloat16 strides=(1280, 2) contiguous=True
"""


class Em:
    def __init__(self):
        self.L = []
        self.reset_counts()
        self.vnext = 1
        self.snext = 4
        self.skip = lambda kind, tag: False
        self.t = self.tm = self.tv = 0

    def __call__(self, s):
        for line in s.split("\n"):
            line = line.strip()
            if line:
                self.L.append(line if line.endswith(":") else "    " + line)
                self.tick(line)

    def tick(self, line):
        op = line.split(" ")[0]
        if op.startswith("v_mfma"):
            self.t = max(self.t, self.tm + 16)
            self.tm = self.t
            self.t += 4
        elif op.startswith("v_"):
            self.t = max(self.t, self.tm + 8) + (8 if op.startswith(("v_exp", "v_rcp", "v_perm")) else 4)
        elif op.startswith(("buffer", "global")):
            self.t += 12
            self.tv = self.t
        elif op.startswith("ds_write"):
            self.t += 16
        elif op.startswith(("s_waitcnt", "s_nop")) or op.endswith(":"):
            self.t += 1
        else:
            self.t += 4

    def v(self, n=1, align=1):
        b = (self.vnext + align - 1) // align * align
        self.vnext = b + n
        assert self.vnext <= 256, "out of arch VGPRs"
        return b

    def s(self, n=1, align=1):
        b = (self.snext + align - 1) // align * align
        self.snext = b + n
        assert self.snext <= 102, "out of SGPRs"
        return b

    def ldsop(self, txt, tag=None):
        if not self.skip("lds", tag):
            self(txt)
        self.lds.append(tag)

    def vmop(self, txt, tag=None):
        if not self.skip("vm", tag):
            self(txt)
        self.vm.append(tag)

    def _need(self, ops, tags):
        idx = -1
        for t in tags:
            c = [i for i, x in enumerate(ops) if x == t]
            assert c, f"tag {t} never issued"
            idx = max(idx, c[-1])
        return idx + 1

    def wait(self, lds=(), vm=(), lds_all=False, vm_all=False):
        parts = []
        n = len(self.vm) if vm_all else (self._need(self.vm, vm) if vm else 0)
        if n > self.vm_done:
            cnt = min(len(self.vm) - n, 63)
            parts.append(f"vmcnt({cnt})")
            self.vm_done = len(self.vm) - cnt
        n = len(self.lds) if lds_all else (self._need(self.lds, lds) if lds else 0)
        if n > self.lds_done:
            cnt = min(len(self.lds) - n, 15)
            parts.append(f"lgkmcnt({cnt})")
            self.lds_done = len(self.lds) - cnt
        if parts:
            self("s_waitcnt " + " ".join(parts))

    def reset_counts(self):
        self.lds, self.vm, self.lds_done, self.vm_done = [], [], 0, 0


def vr(b, n):
    return f"v[{b}:{b+n-1}]" if n > 1 else f"v{b}"


def ar(b, n):
    return f"a[{b}:{b+n-1}]"


def sr(b, n):
    return f"s[{b}:{b+n-1}]" if n > 1 else f"s{b}"


DEF = dict(D=9, E=3, stamps=False, G=5, lead=1, xm=0, map2="8x4", stf="sc1", ldf="sc1", codepf=True, outflags="sc1",
           npre=18, pre0=8, tail=13, PF=9, HR=12, pollks=5, fA=6, fB=10, fC=-1, fD=1, align=12,
           tback=48, tdma=70, tw2=72, crit=3, rpv=1, rpos=0, rpub=3, rsk=8, l2pf=0, w2at=7, sleep=8, grot=0, wspace=1, ssleep=8, rah=3, rlag=1, rpd=8, r1d=7, fstr=4, tw2a=72, ua=0, g2late=0, bpos=12, chain=2, g0=1, lead0=1, lsh=0, inp2=0, wper=2, cpf=None, fastto=1, spf=(2, 3, 4), hfirst=48, pd0=8, epiA=4, epiB=4)


class Gen:
    def __init__(self, **kw):
        self.c = dict(DEF)
        self.c.update(kw)
        self.e = Em()
        c = self.c

        def skip(kind, tag):
            if kind == "vm" and tag in c.get("skipvm", ()):
                return True
            if not isinstance(tag, tuple):
                return False
            if kind == "vm" and tag[0] in c.get("skipvm", ()):
                return True
            if c.get("nohst") and kind == "vm" and tag[0] == "hst":
                return True
            if c.get("no_dma") and kind == "vm" and tag[0] == "d" and tag[1] >= 3:
                return True
            if c.get("no_xread") and kind == "lds" and tag[0] == "x" and tag[1] >= 26:
                return True
            return False
        self.e.skip = skip
        self.nstamp = 0
        self.cold = []

    def stamp(self):
        e = self.e
        if self.c.get("ms") is not None:
            if self.nstamp + (100 if getattr(self, "in_spare", False) else 0) == self.c["ms"]:
                e("s_memrealtime s[98:99]")
            self.nstamp += 1
            return
        if not self.c["stamps"]:
            return
        i = self.nstamp
        self.nstamp += 1
        if self.c["stamps"] == 9 and i != 30:
            return
        assert i < 31
        e(f"s_memtime {sr(self.sT, 2)}\ns_memrealtime {sr(self.sT3, 2)}")
        e("s_waitcnt lgkmcnt(0)")
        e.lds_done = len(e.lds)
        e(f"v_writelane_b32 v{self.vStamp}, s{self.sT}, {i}\nv_writelane_b32 v{self.vStamp}, s{self.sT3}, {32 + i}")

    def write_stamps(self):
        e = self.e
        if self.c.get("ms") is not None:
            e("s_waitcnt lgkmcnt(0)\nL_dly:\ns_memrealtime s[100:101]\ns_waitcnt lgkmcnt(0)\ns_sub_u32 s100, s100, s98\ns_cmp_lt_u32 s100, 3000\ns_cbranch_scc1 L_dly")
            return
        if not self.c["stamps"]:
            return
        keep = self.nstamp
        self.nstamp = 30
        self.stamp()
        self.nstamp = keep
        e(f"s_lshl_b32 s{self.sT}, s2, 2\ns_add_u32 s{self.sT}, s{self.sT}, s{self.sWave}\ns_lshl_b32 s{self.sT}, s{self.sT}, 8")
        e(f"s_add_u32 s{self.sT}, s{self.sT}, {STAMP_OFF}")
        e(f"v_lshlrev_b32 v{self.vT}, 2, v{self.vLane}\nv_add_u32 v{self.vT}, s{self.sT}, v{self.vT}")
        e(f"s_mov_b32 s{self.srdH+2}, 0x10000000")
        e(f"buffer_store_dword v{self.vStamp}, v{self.vT}, {sr(self.srdH, 4)}, 0 offen")
        e("s_waitcnt vmcnt(0)")

    def srd_adj(self, dst, addoff):
        e = self.e
        if addoff > 0:
            e(f"s_add_u32 s{dst}, s{dst}, {addoff}\ns_addc_u32 s{dst+1}, s{dst+1}, 0")
        else:
            e(f"s_sub_u32 s{dst}, s{dst}, {-addoff}\ns_subb_u32 s{dst+1}, s{dst+1}, 0")

    def srd_const(self, dst, nbytes):
        self.e(f"s_mov_b32 s{dst+2}, {nbytes}\ns_mov_b32 s{dst+3}, 0x20000")

    def tr_lane_addr(self, dst, qstride_hi, qstride_lo, sub):
        e = self.e
        t, L = self.vT, self.vLane
        e(f"v_bfe_u32 v{t}, v{L}, 5, 1\nv_mul_u32_u24 v{dst}, {qstride_hi}, v{t}")
        e(f"v_bfe_u32 v{t}, v{L}, 4, 1\nv_mul_u32_u24 v{t+1}, {qstride_lo}, v{t}\nv_add_u32 v{dst}, v{dst}, v{t+1}")
        e(f"v_lshlrev_b32 v{t+1}, 2, v{t}")
        e(f"v_bfe_u32 v{t}, v{L}, 3, 1\nv_lshl_add_u32 v{t+1}, v{t}, 1, v{t+1}")
        e(f"v_bfe_u32 v{t}, v{L}, 1, 1")
        if sub is not None:
            e(f"s_lshl_b32 s{self.sA}, s{sub}, 1\nv_add_u32 v{t}, s{self.sA}, v{t}")
        e(f"v_xor_b32 v{t}, v{t}, v{t+1}\nv_lshl_add_u32 v{dst}, v{t}, 4, v{dst}")
        e(f"v_bfe_u32 v{t}, v{L}, 2, 2\nv_lshl_add_u32 v{dst}, v{t}, 7, v{dst}")
        e(f"v_and_b32 v{t}, 1, v{L}\nv_lshl_add_u32 v{dst}, v{t}, 3, v{dst}")

    def spin(self, label, load, check):
        e = self.e
        if self.c.get("nocheck"):
            return
        check()
        e(f"s_cbranch_vccz {label}_out")
        e(f"s_mov_b32 s{self.sSpin}, 0x40000")
        e(f"{label}_spin:")
        e(f"s_sleep {self.c['ssleep'] if label.endswith('s') else self.c['sleep']}")
        e(load)
        e("s_waitcnt vmcnt(0)")
        check()
        e(f"s_cbranch_vccz {label}_out")
        e(f"s_sub_u32 s{self.sSpin}, s{self.sSpin}, 1\ns_cbranch_scc0 {label}_spin")
        e(f"{label}_out:")

    def tok_probe(self):
        self.e(f"s_buffer_load_dword s{self.sTok}, {sr(self.srdD, 4)}, 0")

    def tok_check(self, label):
        e = self.e
        e(f"s_cmp_eq_u32 s{self.sTok}, 0\ns_cbranch_scc1 {label}_slow\n{label}_ok:")
        e(f"v_mov_b32 v{self.vTok}, s{self.sTok}\ns_mov_b32 s{self.sTok+1}, s{self.sTok}")
        self.cold += [f"{label}_slow:", f"s_mov_b32 s{self.sSpin}, 0x40000", f"{label}_spin:",
                      f"buffer_load_dword v{self.vTok}, off, {sr(self.srdD, 4)}, 0 sc1", "s_waitcnt vmcnt(0)",
                      f"v_readfirstlane_b32 s{self.sTok}, v{self.vTok}", "s_nop 3", f"s_cmp_lg_u32 s{self.sTok}, 0", f"s_cbranch_scc1 {label}_ok",
                      "s_sleep 2", f"s_sub_u32 s{self.sSpin}, s{self.sSpin}, 1", f"s_cbranch_scc0 {label}_spin", f"s_branch {label}_ok"]

    def probe(self, soff, imm, n):
        e = self.e
        if ("probe",)[0] in self.c.get("skipvm", ()):
            return
        for i in range(0, n, 2):
            e(f"s_mov_b64 {sr(self.sPr+i, 2)}, 0")
        if self.c["fstr"] == 4:
            w = 8 if n > 4 else 4
            e(f"s_buffer_load_dwordx{w} {sr(self.sPr, w)}, {sr(self.srdF, 4)}, s{soff} offset:{imm}")
            return
        for i in range(n):
            e(f"s_buffer_load_dword s{self.sPr+i}, {sr(self.srdF, 4)}, s{soff} offset:{imm + self.c['fstr']*i}")

    def probe_check(self, label, vaddr, soff, imm, n):
        e = self.e
        if self.c.get("nocheck"):
            return

        for i in range(0, n, 2):
            e(f"s_cmp_eq_u64 {sr(self.sPr+i, 2)}, {sr(self.sTok, 2)}\ns_cbranch_scc0 {label}_slow")
        e(f"{label}_out:")
        k = [f"{label}_slow:", "s_waitcnt lgkmcnt(0)"]
        ident = ["L_pr1", "L_pr2", "L_pr3", "L_ph0", "L_ph1", "L_ph2", "L_ph3"].index(label.rstrip("s"))
        if self.c["stamps"] == 9:
            k.append(f"v_writelane_b32 v{self.vStamp}, 1, {2*ident + 1}")
        for i in range(0, n, 2):
            k += [f"s_cmp_eq_u64 {sr(self.sPr+i, 2)}, {sr(self.sTok, 2)}", f"s_cbranch_scc0 {label}_vec" if i + 2 < n else f"s_cbranch_scc1 {label}_out"]
        k += [f"{label}_vec:"] + ([f"v_writelane_b32 v{self.vStamp}, 1, {2*ident + 2}"] if self.c["stamps"] == 9 else [])
        k += [f"s_add_u32 s{self.sA}, s{soff}, {imm}", f"s_mov_b32 s{self.sSpin}, 0x40000", f"{label}_spin:",
              f"buffer_load_dword v{self.vPoll}, v{vaddr}, {sr(self.srdF, 4)}, s{self.sA} offen sc1", "s_waitcnt vmcnt(0)",
              f"v_cmp_ne_u32 vcc, v{self.vPoll}, v{self.vTok}", f"s_cbranch_vccz {label}_out",
              f"s_sleep {self.c['ssleep'] if label.endswith('s') else self.c['sleep']}",
              f"s_sub_u32 s{self.sSpin}, s{self.sSpin}, 1", f"s_cbranch_scc0 {label}_spin", f"s_branch {label}_out"]
        self.cold += k

    def publish(self, label, sreg, srd=None, cond=None):
        e = self.e
        if self.c.get("noflag"):
            return
        e(f"s_cmp_lg_u32 s{self.sWave if cond is None else cond}, 0\ns_cbranch_scc1 {label}")
        e(f"s_mov_b64 exec, 1\nbuffer_store_dword v{self.vTok}, off, {sr(self.srdF if srd is None else srd, 4)}, s{sreg} sc1\ns_mov_b64 exec, -1")
        e(f"{label}:")

    def publish_h(self, pr, stage):
        e = self.e
        e.wait(vm=[("hst", pr)])
        e("s_barrier")
        self.publish(f"L_pub{stage}", self.sFl)
        if stage < 4:
            e(f"s_add_u32 s{self.sFl}, s{self.sFl}, {FSTAGE}")

    def prologue(self):
        e = self.e
        c = self.c
        e(f".globl {KN}\n.p2align {c['align']}\n.type {KN},@function\n{KN}:")
        self.srdX, self.srdW1, self.srdW3, self.srdW2 = (e.s(4, 4) for _ in range(4))
        self.srdOut, self.srdH, self.srdP, self.srdD, self.srdF = (e.s(4, 4) for _ in range(5))
        self.sT, self.sT2 = e.s(2, 2), e.s(2, 2)
        self.sWave, self.sXcd, self.sSlot = e.s(), e.s(), e.s()
        self.sA, self.sB, self.sC, self.sSpin, self.sFl = (e.s() for _ in range(5))
        if c["stamps"]:
            self.vStamp = e.v()
            self.sT3, self.sT4 = e.s(2, 2), e.s(2, 2)
        self.vLane = e.v()
        self.vT = e.v(4, 4)
        self.vTok, self.vPoll = e.v(), e.v()
        self.sTok = e.s(2, 2)
        e(f"s_cmp_ge_u32 s2, 256\ns_cbranch_scc1 L_end_{KN}")
        if c["codepf"]:
            e(f"s_getpc_b64 {sr(self.sT, 2)}")
        for srd, off in ((self.srdX, 0), (self.srdW1, 8), (self.srdW3, 16), (self.srdW2, 24), (self.srdOut, 32),
                         (self.srdD, 40), (self.srdH, 48), (self.srdP, 48), (self.srdF, 48)):
            e(f"s_load_dwordx2 {sr(srd, 2)}, s[0:1], {off}")
        e(f"s_memrealtime {sr(self.sT2, 2)}")
        if c.get("ms") is not None:
            e("s_memrealtime s[98:99]")
        if c["stamps"]:
            e(f"v_mov_b32 v{self.vStamp}, 0")
            e(f"s_memtime {sr(self.sT4, 2)}")
        e(f"v_lshrrev_b32 v{self.vT}, 6, v0")
        e(f"v_and_b32 v{self.vLane}, 63, v0")
        e(f"v_readfirstlane_b32 s{self.sWave}, v{self.vT}")
        if c["codepf"]:
            t = self.vT + 1
            e(f"v_lshlrev_b32 v{t}, 7, v0")
            e(f"s_and_b32 s{self.sT}, s{self.sT}, 0xffffff00")
            e(f"v_min_u32 v{t}, L_codeend - {KN} - 4, v{t}")
            e.vmop(f"global_load_dword v{self.vPoll}, v{t}, {sr(self.sT, 2)}", "codepf")
        e(f"s_and_b32 s{self.sXcd}, s2, 7\ns_lshr_b32 s{self.sSlot}, s2, 3")
        for dst, nbytes in ((self.srdX, X_BYTES), (self.srdW1, W_BYTES), (self.srdW3, W_BYTES + 2048), (self.srdD, 256)):
            self.srd_const(dst, nbytes)

    def after_kernarg(self, tag):
        e = self.e
        e("s_waitcnt lgkmcnt(0)")
        if self.c.get("ms") is not None:
            self.nstamp = 1
            self.stamp()
        if self.c["stamps"]:
            e(f"v_writelane_b32 v{self.vStamp}, s{self.sT4}, 0\nv_writelane_b32 v{self.vStamp}, s{self.sT2}, 32")
            self.nstamp = 1
            self.stamp()

    def late_srds(self):
        for dst, nbytes in ((self.srdW2, W_BYTES), (self.srdOut, OUT_BYTES), (self.srdH, H_BYTES), (self.srdP, W2P_BYTES),
                            (self.srdF, FLAG_BYTES)):
            self.srd_const(dst, nbytes)
        self.srd_adj(self.srdP, W2P_OFF)
        self.srd_adj(self.srdF, FLAG_OFF)

    def publish_token(self):
        e = self.e
        t = self.vT
        e(f"s_or_b32 s{self.sA}, s2, s{self.sWave}\ns_cmp_lg_u32 s{self.sA}, 0\ns_cbranch_scc1 L_notok")
        e(f"s_max_u32 s{self.sA}, s{self.sT2}, 1\nv_mov_b32 v{t}, s{self.sA}")
        e(f"s_mov_b64 exec, 1\nbuffer_store_dword v{t}, off, {sr(self.srdD, 4)}, 0 sc1\ns_mov_b64 exec, -1")
        e("L_notok:")

    def phase1_setup(self):
        e = self.e
        c = self.c
        t, L = self.vT, self.vLane
        self.sRb, self.sCh = e.s(), e.s()
        self.sSoX, self.sSoW = e.s(10), e.s()
        self.sMx, self.sMw = e.s(), e.s()
        sG, sSig = e.s(), e.s()
        e(f"s_mul_i32 s{self.sA}, s{self.sSlot}, 43\ns_lshr_b32 s{self.sA}, s{self.sA}, 8")
        e(f"s_mul_i32 s{self.sB}, s{self.sA}, 6\ns_sub_u32 s{self.sB}, s{self.sSlot}, s{self.sB}")
        e(f"s_and_b32 s{self.sC}, s{self.sXcd}, 1\ns_mul_i32 s{self.sC}, s{self.sC}, 5\ns_add_u32 s{self.sRb}, s{self.sC}, s{self.sA}")
        e(f"s_lshr_b32 s{self.sC}, s{self.sXcd}, 1\ns_mul_i32 s{self.sC}, s{self.sC}, 6\ns_add_u32 s{self.sCh}, s{self.sC}, s{self.sB}")
        G = c["G"]
        if c["cpf"]:
            self.sRbl, self.sChl = e.s(), e.s()
            e(f"s_mov_b32 s{self.sRbl}, s{self.sA}\ns_mov_b32 s{self.sChl}, s{self.sB}")
        e(f"s_add_u32 s{sG}, s{self.sA}, s{self.sB}")
        if G == 1:
            e(f"s_mov_b32 s{sG}, 0")
        elif G == 2:
            e(f"s_and_b32 s{sG}, s{sG}, 1")
        else:
            e(f"s_mul_i32 s{self.sC}, s{sG}, {-(-256 // G)}\ns_lshr_b32 s{self.sC}, s{self.sC}, 8\ns_mul_i32 s{self.sC}, s{self.sC}, {G}\ns_sub_u32 s{sG}, s{sG}, s{self.sC}")
        e(f"s_lshr_b32 s{self.sC}, s{self.sXcd}, 1\ns_add_u32 s{self.sC}, s{self.sC}, s{self.sXcd}\ns_and_b32 s{sSig}, s{self.sC}, 1")
        self.sG, self.sSig = sG, sSig
        self.slab_off(0)
        self.slab_off(1)
        self.vXo = e.v(7)
        self.vWo = e.v(2)
        e(f"s_mul_i32 s{self.sA}, s{self.sWave}, 52")
        e(f"v_lshrrev_b32 v{t}, 3, v{L}\nv_add_u32 v{t}, s{self.sA}, v{t}")
        e(f"v_bfe_u32 v{t+1}, v{t}, 1, 3\nv_and_b32 v{t+2}, 7, v{L}\nv_xor_b32 v{t+1}, v{t+1}, v{t+2}")
        e(f"s_mul_i32 s{self.sB}, s{self.sRb}, 208\nv_add_u32 v{t}, s{self.sB}, v{t}\nv_mul_u32_u24 v{t}, 1280, v{t}")
        e(f"v_lshl_add_u32 v{self.vXo}, v{t+1}, 4, v{t}")
        e(f"v_xor_b32 v{t+1}, 64, v{self.vXo}")
        for i in range(1, 7):
            src = self.vXo if i % 2 == 0 else t + 1
            e(f"v_add_u32 v{self.vXo+i}, {i*10240 - (i & 3)*1024}, v{src}")
        e(f"s_lshl_b32 s{self.sA}, s{self.sWave}, 4\nv_lshrrev_b32 v{t}, 3, v{L}\nv_add_u32 v{t}, s{self.sA}, v{t}")
        e(f"v_mul_u32_u24 v{t}, 3072, v{t}")
        e(f"v_bfe_u32 v{t+1}, v{L}, 4, 1\nv_lshlrev_b32 v{t+1}, 1, v{t+1}\nv_xor_b32 v{t+1}, v{t+1}, v{t+2}")
        e(f"v_lshl_add_u32 v{t}, v{t+1}, 4, v{t}\ns_lshl_b32 s{self.sA}, s{self.sCh}, 7\nv_add_u32 v{self.vWo}, s{self.sA}, v{t}")
        e(f"v_xor_b32 v{t}, 64, v{self.vWo}\nv_add_u32 v{self.vWo+1}, {8*3072 - 1024}, v{t}")
        if c["cpf"]:
            self.vPx, self.vPw = e.v(), e.v()
            rbl, chl = self.sRbl, self.sChl
            e(f"v_mul_u32_u24 v{t}, 57, v{L}\nv_lshrrev_b32 v{t}, 9, v{t}\nv_mul_u32_u24 v{t+3}, 9, v{t}\nv_sub_u32 v{t+3}, v{L}, v{t+3}")
            e(f"s_lshl_b32 s{self.sA}, s{chl}, 2\ns_add_u32 s{self.sA}, s{self.sA}, s{self.sWave}\ns_mul_i32 s{self.sA}, s{self.sA}, 9\ns_add_u32 s{self.sA}, s{self.sA}, s{self.sB}")
            e(f"v_add_u32 v{t+3}, s{self.sA}, v{t+3}\nv_mul_u32_u24 v{t+3}, 1280, v{t+3}\nv_lshl_add_u32 v{self.vPx}, v{t}, 7, v{t+3}")
            e(f"s_lshl_b32 s{self.sA}, s{rbl}, 2\ns_add_u32 s{self.sA}, s{self.sA}, s{self.sWave}\ns_mul_i32 s{self.sA}, s{self.sA}, 13\ns_lshr_b32 s{self.sA}, s{self.sA}, 2")
            e(f"v_and_b32 v{t+3}, 3, v{L}\nv_add_u32 v{t+3}, s{self.sA}, v{t+3}\nv_lshrrev_b32 v{t}, 2, v{L}\nv_lshl_add_u32 v{t}, v{t}, 6, v{t+3}")
            e(f"v_mul_u32_u24 v{t}, 3072, v{t}\ns_lshl_b32 s{self.sA}, s{self.sCh}, 7\nv_add_u32 v{self.vPw}, s{self.sA}, v{t}")
        e(f"s_mul_i32 s{self.sMx}, s{self.sWave}, 6656")
        e(f"s_lshl_b32 s{self.sMw}, s{self.sWave}, 12\ns_add_u32 s{self.sMw}, s{self.sMw}, {XS}")

    def slab_off(self, s):
        e = self.e
        G, xm = self.c["G"], self.c["xm"]
        base = s // G * G
        d = self.sSoX + s
        if self.c.get("lead"):
            ld = self.c["lead"]
            e(f"s_mov_b32 s{d}, {s}")
            for cl in range(5):
                o = list(range(10))
                g0 = self.c["g0"]
                o[:g0] = [(i + cl) % g0 for i in range(g0)]
                for a in range(max(g0, self.c["lead0"]), 10):
                    if (a - ld) % 5 == (cl + self.c["lsh"]) % 5:
                        o.remove(a)
                        o.insert(a - ld, a)
                if o[s] != s:
                    e(f"s_cmp_eq_u32 s{self.sG}, {cl}\ns_cselect_b32 s{d}, {o[s]}, s{d}")
        elif base + G > 10 or G == 1:
            e(f"s_mov_b32 s{d}, {s}")
        elif G == 2:
            e(f"s_xor_b32 s{d}, s{self.sG}, {s}")
        else:
            e(f"s_add_u32 s{d}, s{self.sG}, {s}\ns_sub_u32 s{self.sC}, s{d}, {G}\ns_cmp_ge_u32 s{d}, {base + G}\ns_cselect_b32 s{d}, s{self.sC}, s{d}")
        if xm == "rev":
            e(f"s_sub_u32 s{self.sC}, 9, s{d}\ns_cmp_eq_u32 s{self.sSig}, 1\ns_cselect_b32 s{d}, s{self.sC}, s{d}")
        elif xm:
            e(f"s_mul_i32 s{self.sC}, s{self.sSig}, {xm}\ns_add_u32 s{d}, s{d}, s{self.sC}\ns_sub_u32 s{self.sC}, s{d}, 10\ns_cmp_ge_u32 s{d}, 10\ns_cselect_b32 s{d}, s{self.sC}, s{d}")
        e(f"s_lshl_b32 s{d}, s{d}, 7")

    def dma_list(self, s):
        e = self.e
        sb = (s % NSTAGE) * STAGE
        out = []
        for m in range(2):
            for j in range(2):
                def f(m=m, j=j):
                    srd = self.srdW1 if m == 0 else self.srdW3
                    e.vmop(f"buffer_load_dwordx4 v{self.vWo+j}, {sr(srd, 4)}, s{self.sSoW} offen offset:{m*2048 + j*1024} lds", ("d", s))
                out.append((f"s_add_u32 m0, s{self.sMw}, {sb}\ns_mul_i32 s{self.sSoW}, s{self.sSoX+s}, 1536" if m + j == 0 else None, f))
        for i in range(7):
            def f(i=i):
                if i == 6:
                    e("s_mov_b32 exec_hi, 0")
                e.vmop(f"buffer_load_dwordx4 v{self.vXo+i}, {sr(self.srdX, 4)}, s{self.sSoX+s} offen offset:{(i & 3)*1024} lds", ("d", s))
                if i == 6:
                    e("s_mov_b32 exec_hi, -1")
            out.append((f"s_add_u32 m0, s{self.sMx}, {sb + (i >> 2)*4096}" if i % 4 == 0 else None, f))
        return out

    def epi_ops(self, u):
        g = self.acc + u * 8
        up = g + 4
        T = self.tmp + (u & 1) * 4
        dst = self.outb + ((u >> 1) & 1) * 4 + (u & 1) * 2
        ops = []
        for i in range(4):
            ops.append((1, f"v_mul_f32 v{T+i}, s{self.sK}, v{g+i}"))
        for i in range(4):
            ops.append((2, f"v_exp_f32 v{T+i}, v{T+i}"))
            ops.append((1, f"v_mul_f32 v{g+i}, v{g+i}, v{up+i}"))
        for i in range(4):
            ops.append((1, f"v_add_f32 v{T+i}, 1.0, v{T+i}"))
        for i in range(4):
            ops.append((2, f"v_rcp_f32 v{T+i}, v{T+i}"))
        for i in range(4):
            ops.append((1, f"v_mul_f32 v{g+i}, v{g+i}, v{T+i}"))
        ops.append((1, f"v_cvt_pk_bf16_f32 v{dst}, v{g}, v{g+1}"))
        ops.append((1, f"v_cvt_pk_bf16_f32 v{dst+1}, v{g+2}, v{g+3}"))
        return ops

    def phase1_main(self):
        e = self.e
        c = self.c
        D, E = c["D"], c["E"]
        R = D + 2
        t, L = self.vT, self.vLane
        first = self.dma_list(0) + self.dma_list(1) + self.dma_list(2)
        def coop(s0, n):
            def f():
                assert not c["xm"]
                e(f"s_mov_b64 exec, {(1 << (4*n)) - 1}\ns_mov_b32 s{self.sA}, {s0*196608}")
                e.vmop(f"buffer_load_dword v{self.vPoll}, v{self.vPw}, {sr(self.srdW1, 4)}, s{self.sA} offen", "cpf")
                e.vmop(f"buffer_load_dword v{self.vPoll}, v{self.vPw}, {sr(self.srdW3, 4)}, s{self.sA} offen offset:2048", "cpf")
                e(f"s_mov_b64 exec, {(1 << (9*n)) - 1}")
                e.vmop(f"buffer_load_dword v{self.vPoll}, v{self.vPx}, {sr(self.srdX, 4)}, 0 offen offset:{s0*128}", "cpf")
                e("s_mov_b64 exec, -1")
            return (None, f)
        for pos, s0, n in reversed(c["cpf"] or ()):
            first.insert(pos, coop(s0, n))
        npre = c["npre"] + len(c["cpf"] or ())
        assert npre <= 26
        def emit_now(items):
            for m0, f in items:
                if m0:
                    e(m0 + "\ns_nop 0")
                f()
        pre0 = c["pre0"]
        emit_now(first[:pre0])
        self.acc = e.v(NU * 8, 4)
        self.xr = e.v(R * 4, 4)
        NW = 5
        self.wf = e.v(8 * NW, 4)
        vXa, vWa = e.v(6), e.v(3)
        self.vHs = e.v()
        self.tmp = e.v(8, 4)
        self.outb = e.v(8, 4)
        self.sK, self.sHo = e.s(), e.s()
        self.publish_token()
        if c.get("tlbw"):
            e(f"v_lshlrev_b32 v{t}, 21, v{L}\ns_mov_b32 s{self.srdH+2}, {14 << 20}\ns_mov_b32 s{self.srdH+3}, 0x20000")
            e(f"s_mov_b32 s{self.srdOut+2}, {OUT_BYTES}\ns_mov_b32 s{self.srdOut+3}, 0x20000\ns_mov_b64 exec, 127")
            e.vmop(f"buffer_load_dword v{self.vPoll}, v{t}, {sr(self.srdH, 4)}, 0 offen", "tlbw")
            e.vmop(f"buffer_load_dword v{self.vPoll}, v{t}, {sr(self.srdOut, 4)}, 0 offen", "tlbw")
            e("s_mov_b64 exec, -1")
        self.slab_off(2)
        e(f"v_and_b32 v{t}, 15, v{L}\nv_bfe_u32 v{t+1}, v{L}, 1, 3\nv_lshrrev_b32 v{t+2}, 4, v{L}\nv_xor_b32 v{t+1}, v{t+1}, v{t+2}")
        e(f"v_lshlrev_b32 v{t}, 7, v{t}\nv_lshl_add_u32 v{vXa}, v{t+1}, 4, v{t}\nv_xor_b32 v{vXa+1}, 64, v{vXa}")
        self.tr_lane_addr(vWa, 4096, 1024, self.sWave)
        e(f"v_add_u32 v{vWa}, {XS}, v{vWa}")
        emit_now(first[pre0:npre])
        vq = list(first[npre:])
        mark = len(e.L)
        tsave = (e.t, e.tm, e.tv)
        self.slab_off(3)
        for st in (1, 2):
            e(f"v_add_u32 v{vXa+2*st}, {st*STAGE}, v{vXa}\nv_add_u32 v{vXa+2*st+1}, {st*STAGE}, v{vXa+1}")
        e(f"v_add_u32 v{vWa+1}, {STAGE}, v{vWa}\nv_add_u32 v{vWa+2}, {2*STAGE}, v{vWa}")
        self.late_srds()
        e("MARK1:")
        self.slab_off(4)
        e("MARK2:")
        for sx in range(5, 10):
            self.slab_off(sx)
        e("MARK3:")
        e(f"s_mov_b32 s{self.sK}, 0xbfb8aa3b")
        e(f"v_bfe_u32 v{t}, v{L}, 4, 1\nv_mul_u32_u24 v{self.vHs}, 49152, v{t}")
        e(f"v_bfe_u32 v{t}, v{L}, 5, 1\nv_lshl_add_u32 v{self.vHs}, v{t}, 8, v{self.vHs}")
        e(f"v_and_b32 v{t}, 15, v{L}\nv_lshl_add_u32 v{self.vHs}, v{t}, 4, v{self.vHs}")
        e(f"s_mul_i32 s{self.sA}, s{self.sRb}, {NU*49152}\ns_lshl_b32 s{self.sB}, s{self.sCh}, 11\ns_add_u32 s{self.sA}, s{self.sA}, s{self.sB}")
        e(f"s_lshl_b32 s{self.sB}, s{self.sWave}, 9\ns_add_u32 s{self.sA}, s{self.sA}, s{self.sB}")
        e(f"v_add_u32 v{self.vHs}, s{self.sA}, v{self.vHs}")
        e(f"s_lshr_b32 s{self.sA}, s{self.sXcd}, 1\ns_mul_i32 s{self.sB}, s{self.sA}, 6\ns_sub_u32 s{self.sB}, s{self.sCh}, s{self.sB}")
        e(f"s_lshl_b32 s{self.sC}, s{self.sRb}, 2\ns_add_u32 s{self.sA}, s{self.sA}, s{self.sC}\ns_lshl_b32 s{self.sA}, s{self.sA}, 10")
        e(f"s_mul_i32 s{self.sB}, s{self.sB}, {c['fstr']}")
        e(f"s_add_u32 s{self.sFl}, s{self.sA}, s{self.sB}")
        self.phase2_setup()
        e("MARK5:")
        lines = [l.strip() for l in e.L[mark:]]
        del e.L[mark:]
        e.t, e.tm, e.tv = tsave
        setup = []
        for l in lines:
            if l.split()[0] in ("s_cselect_b32", "s_addc_u32", "s_subb_u32"):
                setup[-1] += "\n" + l
            else:
                setup.append(l)

        def setup_upto(m):
            while m in setup:
                it = setup.pop(0)
                if not it.startswith("MARK"):
                    e(it)

        seq = [(u, s, ks) for s in range(8) for ks in range(2) for u in range(NU)]
        k = c["tail"]
        seq += [(u, 8, ks) for ks in range(2) for u in range(k, NU)]
        for u in range(NU):
            if u < k:
                seq += [(u, 8, 0), (u, 8, 1)]
            seq += [(u, 9, 0), (u, 9, 1)]
        N = len(seq)
        first_use = {s: min(n for n in range(N) if seq[n][1] == s) for s in range(10)}
        last_use = {u: max(n for n in range(N) if seq[n][0] == u) for u in range(NU)}
        bpos = {s: first_use[s] - (D - E) for s in range(1, 10)}
        bpos[0] = 0
        if bpos[9] <= bpos[8] + 1:
            bpos[9] = bpos[8]

        def xread(n):
            u, s, ks = seq[n]
            e.ldsop(f"ds_read_b128 {vr(self.xr + (n % R)*4, 4)}, v{vXa + 2*(s % NSTAGE) + ks} offset:{u*2048}", ("x", n))

        def wbuf(s, ks):
            return self.wf + ((2 * s + ks) % NW) * 8

        def wread(s, ks, m, h):
            e.ldsop(f"ds_read_b64_tr_b16 {vr(wbuf(s, ks) + m*4 + h*2, 2)}, v{vWa + s % NSTAGE} offset:{ks*8192 + m*2048 + h*512}", ("w", s, ks))

        wneed, wlast = {}, {}
        for n, (u, s, ks) in enumerate(seq):
            wneed.setdefault((s, ks), n)
            wlast[(s, ks)] = n
        lq = []

        def validate(sx):
            for ks in range(2):
                for m in range(2):
                    for h in range(2):
                        lq.append((wneed[(sx, ks)], 0, ("w", sx, ks, m, h)))
            for n in range(N):
                if seq[n][1] == sx:
                    lq.append((n, 1, ("x", n)))
            lq.sort(key=lambda z: (z[0], z[1]))

        def lds_ok(it, n):
            if it[2][0] == "x":
                return it[0] <= n + R - 2
            if it[2][0] == "r":
                return True
            _, sx, ks, m, h = it[2]
            prev = 2 * sx + ks - NW
            return prev < 0 or wlast[(prev // 2, prev % 2)] < n

        def lds_issue(it):
            lq.remove(it)
            if it[2][0] == "x":
                xread(it[2][1])
            elif it[2][0] == "r":
                _, bb, h = it[2]
                e.ldsop(f"ds_read_b64_tr_b16 {vr(self.outb + 4*bb + 2*h, 2)}, v{vWa+2} offset:{RED0 - XS - 2*STAGE + bb*2048 + h*512}", ("r", bb))
            else:
                wread(*it[2][1:])

        self.stamp()
        e.wait(vm=[("d", 0)])
        e("s_barrier")
        self.stamp()
        validate(0)
        while lq[0][0] < D:
            lds_issue(lq[0])
        epi = []
        st = dict(m0=False, vslot=0, tn=0, tv=32, epi=0)
        done_units = 0

        def run_events():
            while vq and vq[0][0] == "event":
                vq.pop(0)[1]()

        def vm_issue():
            run_events()
            m0, f = vq.pop(0)
            m0 = None if m0 and m0.startswith("hguard") else m0
            if m0 and not st["m0"]:
                e(m0 + "\ns_nop 0")
            f()
            st["m0"] = False
            st["tn"] = max(st["tn"], e.t - 12 - 24) + st["tv"]
            run_events()

        def gap(n, isA):
            used = None
            st["vslot"] += 1
            head = lq[0] if lq and lds_ok(lq[0], n) else None
            backlog = (sum(1 for m0, _ in vq if m0 and m0.startswith("s_")) > 3 and n < 52) or n < bpos[c["fastto"]]
            tv = c["tback"] if backlog else (c["tdma"] if about_dma(vq) else (c["tw2a"] if st["epi"] < c["ua"] else c["tw2"]))
            st["tv"] = tv
            vm_ready = vq and (vq[0][0] is None or st["m0"] or (vq[0][0].startswith("hguard") and st["epi"] >= int(vq[0][0][6:]))) and e.t >= st["tn"]
            if head and head[0] - n <= c["crit"]:
                lds_issue(head)
                used = "l"
                if backlog and vm_ready:
                    vm_issue()
                    used = "v"
            elif vm_ready:
                vm_issue()
                used = "v"
            else:
                cand = [it for it in lq[:24] if lds_ok(it, n) and (it[2][0] in "wr" or it[0] - n <= D + (1 if isA else 0))]
                if cand:
                    lds_issue(cand[0])
                    used = "l"
            if used != "v" and vq and vq[0][0] and vq[0][0].startswith("s_") and not st["m0"]:
                e(vq[0][0])
                st["m0"] = True
            elif used != "v" and setup:
                for _ in range(1 if used else 2):
                    if setup:
                        it = setup.pop(0)
                        if not it.startswith("MARK"):
                            e(it)

        def pop_epi(budget):
            while epi and budget > 0:
                it = epi.pop(0)
                if callable(it):
                    it()
                    budget -= 2
                elif it[0] == "mark":
                    st["epi"] = it[1]
                    if c["stamps"] == 3 and it[1] in (3, 6, 9):
                        self.stamp()
                else:
                    e(it[1])
                    budget -= it[0]

        def store_pair(pr):
            def f():
                ob = self.outb + (pr & 1) * 4
                e(f"s_mov_b32 s{self.sHo}, {pr*2*49152}\ns_nop 0")
                e(f"v_permlane16_swap_b32 v{ob}, v{ob+2}\nv_permlane16_swap_b32 v{ob+1}, v{ob+3}")
                if 2 * pr + 1 >= NU:
                    e("s_mov_b32 exec_lo, 0xffff\ns_mov_b32 exec_hi, 0xffff")
                e.vmop(f"buffer_store_dwordx4 {vr(ob, 4)}, v{self.vHs}, {sr(self.srdH, 4)}, s{self.sHo} offen {c['stf']}", ("hst", pr))
                if 2 * pr + 1 >= NU:
                    e("s_mov_b64 exec, -1")
            return f

        def flag_item(pr, stage):
            return lambda: self.publish_h(pr, stage)

        def unit_done(u):
            epi.extend(self.epi_ops(u))
            epi.append(("mark", u + 1))
            if u % 2 == 1 or u == NU - 1:
                epi.append(store_pair(u // 2))
            if u == c["fA"]:
                epi.append(flag_item(1, 1))
            if u == c["fB"]:
                epi.append(flag_item(3, 2))
            if u == NU - 1 and c["fC"] < 0:
                epi.append(flag_item(4, 3))

        def mfma(n, m):
            u, s, ks = seq[n]
            a = self.acc + u * 8 + m * 4
            cin = "0" if (s == 0 and ks == 0) else vr(a, 4)
            if not (c.get("no_mfma") and s >= 1):
                e(f"v_mfma_f32_16x16x32_bf16 {vr(a, 4)}, {vr(wbuf(s, ks) + m*4, 4)}, {vr(self.xr + (n % R)*4, 4)}, {cin}")

        tail0 = last_use[0]
        e.wait(lds=[("x", 0), ("w", 0, 0)])
        for n in range(N):
            u, s, ks = seq[n]
            intail = n > tail0 + 2
            mfma(n, 0)
            bars = [sb for sb in range(1, 10) if bpos[sb] == n]
            if bars:
                sb, s0 = max(bars), min(bars)
                setup_upto(f"MARK{s0}:")
                while len([x for x in e.vm if x == ("d", sb)]) < 11:
                    vm_issue()
                rel = s0 + 2 <= 9
                e.wait(vm=[("d", sb)], lds_all=rel)
                e("s_barrier")
                if c["stamps"] == 2 or sb in (1, 5, 8, 9):
                    self.stamp()
                for sx in bars:
                    validate(sx)
                held = [it for it in vq if getattr(it[1], "__name__", "") in ("w2", "chkp", "chk0", "chk2")]
                vq[:] = [it for it in vq if it not in held]
                if s0 == c["w2at"] and not c.get("p1only"):
                    held = self.seam_queue()
                if s0 == 5:
                    self.tok_probe()
                if s0 == 6:
                    self.tok_check("L_tok")
                if rel:
                    dl = self.dma_list(s0 + 2)
                    if s0 == c["w2at"] and not c.get("p1only"):
                        dl.insert(11 - c["r1d"], ("event", lambda: self.r1probe[1]()))
                    vq += dl
                vq += held
            else:
                gap(n, False)
                if intail:
                    pop_epi(c.get("epiB", 4))
            mfma(n, 1)
            if n + 1 < N:
                u2, s2, ks2 = seq[n + 1]
                while lq and lq[0][0] <= n + 1:
                    assert lds_ok(lq[0], n + 1)
                    lds_issue(lq[0])
                e.wait(lds=[("x", n + 1), ("w", s2, ks2)])
            gap(n, True)
            while done_units < NU and last_use[done_units] + 2 <= n:
                unit_done(done_units)
                done_units += 1
            if intail:
                pop_epi(c.get("epiA", 4))
        self.stamp()
        if c.get("p1only"):
            self.write_stamps()
            e("s_endpgm")
        e("s_nop 3")
        while done_units < NU:
            unit_done(done_units)
            done_units += 1
        while epi:
            pop_epi(2)
            if vq and e.t - e.tv >= c["tw2"] - 12 and not (vq[0][0] or "").startswith(f"hguard{st['epi'] + 1}"):
                vm_issue()
        self.stamp()
        k = 0
        while vq and not c.get("p1only"):
            if k == c["fC"]:
                flag_item(4, 3)()
            vm_issue()
            k += 1
        assert k > c["fC"] or c.get("p1only")
        self.stamp()

    def phase2_setup(self):
        e = self.e
        c = self.c
        t, L = self.vT, self.vLane
        if not hasattr(self, "sM2"):
            self.sM2, self.sNb, self.sSoP = e.s(), e.s(), e.s()
            self.sU, self.sFo, self.sRow = e.s(4), e.s(4), e.s(4)
            self.vP, self.vHl, self.vFr, self.vFh = e.v(), e.v(), e.v(), e.v()
            self.vRw, self.vRa, self.vOa = (e.v() for _ in range(3))
            self.sSoH = e.s()
            self.sGo = e.s(3)
            self.sFr = e.s()
        if c["map2"] == "8x4":
            e(f"s_and_b32 s{self.sM2}, s{self.sXcd}, 3\ns_lshl_b32 s{self.sM2}, s{self.sM2}, 3\ns_and_b32 s{self.sA}, s{self.sSlot}, 7\ns_add_u32 s{self.sM2}, s{self.sM2}, s{self.sA}")
            e(f"s_lshr_b32 s{self.sNb}, s{self.sXcd}, 2\ns_lshl_b32 s{self.sNb}, s{self.sNb}, 2\ns_lshr_b32 s{self.sA}, s{self.sSlot}, 3\ns_add_u32 s{self.sNb}, s{self.sNb}, s{self.sA}")
        else:
            e(f"s_lshl_b32 s{self.sM2}, s{self.sXcd}, 2\ns_and_b32 s{self.sA}, s{self.sSlot}, 3\ns_add_u32 s{self.sM2}, s{self.sM2}, s{self.sA}")
            e(f"s_lshr_b32 s{self.sNb}, s{self.sSlot}, 2")
        e(f"s_mul_i32 s{self.sA}, s{self.sWave}, 12288\nv_lshlrev_b32 v{t}, 4, v{L}\nv_add_u32 v{self.vHl}, s{self.sA}, v{t}")
        e(f"s_mul_i32 s{self.sB}, s{self.sNb}, {5*49152}\nv_add_u32 v{self.vP}, s{self.sB}, v{self.vHl}")
        e(f"v_min_u32 v{t}, 3, v{L}\nv_mul_u32_u24 v{self.vFr}, {c['fstr']}, v{t}\ns_lshl_b32 s{self.sFr}, s{self.sWave}, 9\ns_add_u32 s{self.sFr}, s{self.sFr}, {FR_OFF}")
        e(f"v_min_u32 v{t}, 5, v{L}\nv_mul_u32_u24 v{self.vFh}, {c['fstr']}, v{t}")
        for j in range(4):
            e(f"s_add_u32 s{self.sA}, s{self.sM2}, {32*j}")
            e(f"s_mul_i32 s{self.sB}, s{self.sA}, 205\ns_lshr_b32 s{self.sB}, s{self.sB}, 11")
            e(f"s_mul_i32 s{self.sC}, s{self.sB}, 10\ns_sub_u32 s{self.sC}, s{self.sA}, s{self.sC}")
            if j == 3:
                e(f"s_cmp_ge_u32 s{self.sA}, 119\ns_cselect_b32 s{self.sU+3}, 12, 11\ns_cselect_b32 s{self.sRow+3}, 9, 0")
                e(f"s_sub_u32 s{self.sRow+3}, s{self.sA}, s{self.sRow+3}\ns_sub_u32 s{self.sRow+3}, s{self.sRow+3}, 110")
                e(f"s_cmp_ge_u32 s{self.sA}, 110\ns_cselect_b32 s{self.sB}, s{self.sU+3}, s{self.sB}\ns_cselect_b32 s{self.sC}, s{self.sRow+3}, s{self.sC}")
            e(f"s_lshl_b32 s{self.sFo+j}, s{self.sC}, 2\ns_add_u32 s{self.sFo+j}, s{self.sFo+j}, s{self.sWave}\ns_lshl_b32 s{self.sFo+j}, s{self.sFo+j}, 10")
            e(f"s_mul_i32 s{self.sC}, s{self.sC}, 13\ns_add_u32 s{self.sC}, s{self.sC}, s{self.sB}")
            e(f"s_mul_i32 s{self.sU+j}, s{self.sC}, {0 if c.get('hsame') else 49152}\ns_mul_i32 s{self.sRow+j}, s{self.sC}, 20480")
        if c["grot"]:
            e(f"s_add_u32 s{self.sA}, s{self.sM2}, s{self.sNb}\ns_mul_i32 s{self.sB}, s{self.sA}, 86\ns_lshr_b32 s{self.sB}, s{self.sB}, 8\ns_mul_i32 s{self.sB}, s{self.sB}, 3\ns_sub_u32 s{self.sA}, s{self.sA}, s{self.sB}")
            e(f"s_lshl_b32 s{self.sGo}, s{self.sA}, 12")
            for g in (1, 2):
                e(f"s_add_u32 s{self.sGo+g}, s{self.sGo+g-1}, 4096\ns_cmp_eq_u32 s{self.sGo+g}, 12288\ns_cselect_b32 s{self.sGo+g}, 0, s{self.sGo+g}")
        else:
            for g in range(3):
                e(f"s_mov_b32 s{self.sGo+g}, {g*4096}")
        e(f"v_lshrrev_b32 v{t}, 4, v{L}\nv_mul_u32_u24 v{t}, 320, v{t}\nv_and_b32 v{t+1}, 15, v{L}\nv_lshl_add_u32 v{t}, v{t+1}, 4, v{t}")
        e(f"s_mul_i32 s{self.sA}, s{self.sWave}, {SST}\nv_add_u32 v{self.vRw}, s{self.sA}, v{t}")
        e(f"v_lshrrev_b32 v{t}, 2, v{L}\nv_min_u32 v{t}, 9, v{t}\ns_movk_i32 s{self.sA}, 0x296\nv_lshrrev_b32 v{t+1}, v{t}, s{self.sA}\nv_and_b32 v{t+1}, 1, v{t+1}\nv_lshrrev_b32 v{t}, 1, v{t}")
        e(f"v_and_b32 v{t+2}, 3, v{L}\ns_lshl_b32 s{self.sA}, s{self.sWave}, 2\nv_add_u32 v{t+2}, s{self.sA}, v{t+2}")
        e(f"v_mul_u32_u24 v{self.vRa}, {TST}, v{t}\nv_mul_u32_u24 v{t+3}, 640, v{t+1}\nv_add_u32 v{self.vRa}, v{self.vRa}, v{t+3}\nv_lshl_add_u32 v{self.vRa}, v{t+2}, 4, v{self.vRa}")
        e(f"v_mul_u32_u24 v{t+2}, 1280, v{t+2}\nv_lshl_add_u32 v{t+2}, v{t}, 5, v{t+2}\nv_lshl_add_u32 v{t+2}, v{t+1}, 4, v{t+2}")
        e(f"s_mul_i32 s{self.sA}, s{self.sNb}, 160\nv_add_u32 v{self.vOa}, s{self.sA}, v{t+2}")

    def w2p_list(self):
        e = self.e
        out = []
        for g in range(3):
            for tt in range(5):
                for k4 in range(4):
                    ks = g * 4 + k4

                    def w2(tt=tt, ks=ks, g=g, k4=k4):
                        assert g + 1 in self.rchecked and not self.c["grot"]
                        if k4 == 0:
                            e(f"s_add_u32 s{self.sSoP}, s{self.sGo+g}, {tt*49152}")
                        e.vmop(f"buffer_load_dwordx4 {ar((tt*12 + ks)*4, 4)}, v{self.vP}, {sr(self.srdP, 4)}, s{self.sSoP} offen offset:{k4*1024} {self.c['ldf']}", ("p", tt, ks))
                    out.append(w2)
        return out

    def hload(self, i):
        e = self.e
        j, ks = divmod(i, 12)
        assert j in self.checked, f"slot {j} loaded before its flags were checked"
        if ks % 4 == 0:
            e(f"s_add_u32 s{self.sSoH}, s{self.sU+j}, s{self.sGo + (ks >> 2)}")
        e.vmop(f"buffer_load_dwordx4 {vr(self.hr + (i % self.c['HR'])*4, 4)}, v{self.vHl}, {sr(self.srdH, 4)}, s{self.sSoH} offen offset:{(ks & 3)*1024} {self.c['ldf']}", ("h", i))

    def pollh(self, j):
        self.polled.add(j)
        self.probe(self.sFo + j, j * FSTAGE, 6)

    def checkh(self, j, sfx=""):
        assert j in self.polled
        self.checked.add(j)
        self.probe_check(f"L_ph{j}{sfx}", self.vFh, self.sFo + j, j * FSTAGE, 6)

    def seam_queue(self, sfx=""):
        e = self.e
        c = self.c
        self.hr = self.acc

        self.polled = set()
        self.checked = set()
        self.rchecked = set()
        self.post = []

        def rpoll(k):
            def chkp():
                self.probe(self.sFr, (k - 1) * 2048, 4)

            def chk2():
                self.probe_check(f"L_pr{k}" + sfx, self.vFr, self.sFr, (k - 1) * 2048, 4)
                self.rchecked.add(k)
                if k == 1:
                    self.stamp()
            return ("event", chkp), ("event", chk2)
        self.r1probe, c1 = rpoll(1)
        q = [c1]
        w2l = [(None, f) for f in self.w2p_list()]
        p2, c2 = rpoll(2)
        p3, c3 = rpoll(3)
        rd, hf, pd = c["rpd"], c["hfirst"], c["pd0"]

        def chkp():
            self.pollh(0)
        ph0 = ("event", chkp)

        def chk0():
            self.checkh(0, sfx)
            if not sfx:
                self.stamp()
        hl = []
        for i in range(c["PF"]):
            def w2(i=i):
                self.hload(i)
            hl.append((f"hguard{i // 2 + 1}", w2))
            if i + 1 == c["pollks"]:
                def chkp():
                    self.pollh(1)
                hl.append(("event", chkp))
        q += w2l[:20-rd] + [p2] + w2l[20-rd:20] + [c2]
        if c["g2late"]:
            hl = [it for it in hl if it[0] != "event"]
            q += w2l[20:40-pd] + [ph0] + w2l[40-pd:40] + [("event", chk0), p3] + hl[:c["g2late"]] + [c3]
            hl, rest = hl[c["g2late"]:], w2l[40:]

            def chkp():
                self.pollh(1)
            k = len(rest) - c["inp2"]
            self.post = [f for _, f in rest[k:]]
            rest = rest[:k]
            rest.insert(min(c["bpos"], len(rest)), ("event", chkp))
        else:
            assert hf >= 40
            q += w2l[20:40-rd] + [p3] + w2l[40-rd:40] + [c3] + w2l[40:hf] + [ph0] + w2l[hf:hf+pd] + [("event", chk0)]
            rest = w2l[hf+pd:]
        for it in hl:
            q.append(it)
            q += rest[:c["wper"]]
            rest = rest[c["wper"]:]
        return q + rest

    def phase2_main(self):
        e = self.e
        c = self.c
        HR, PF = c["HR"], c["PF"]
        assert PF < 12 and HR <= 16
        hr = self.hr
        acc = self.wf
        ra, rb, obase = self.xr, self.xr + 16, self.acc + 64
        self.vRwH, self.vRaH = self.xr + 36, self.xr + 37
        stores = []
        seq = [(j, ks) for j in range(4) for ks in range(12)]
        hload, pollh, checkh = self.hload, self.pollh, self.checkh
        hn = PF
        post = list(self.post)
        side = []

        def red_write(j, tt):
            e.ldsop(f"ds_write_b128 v{self.vRw if j & 1 else self.vRwH}, {vr(acc + (j & 1)*20 + tt*4, 4)} offset:{tt*TST}", ("rw", j))

        def reduce_items(j, last):
            ob = obase + 4 * j
            va = self.vRa if j & 1 else self.vRaH
            it = []
            for tt in range(4 if last else 0, 5):
                it.append(lambda tt=tt: red_write(j, tt))
                if not last and c["wspace"]:
                    it.append(None)
            if not last:
                it += [None] * 2

            def bar():
                e.wait(lds=[("rw", j)])
                e("s_barrier")
            it.append(bar)
            for src in range(4):
                for h, base in enumerate((ra, rb)):
                    it.append(lambda src=src, h=h, base=base: e.ldsop(
                        f"ds_read_b128 {vr(base + src*4, 4)}, v{va} offset:{src*SST + h*320}", ("rr", j, h, src)))
            if not last:
                it += [None] * 4
            for src in range(1, 4):
                for h, base in enumerate((ra, rb)):
                    for half in range(2):
                        def ad(h=h, base=base, src=src, half=half):
                            e.wait(lds=[("rr", j, h, src)])
                            for i2 in (2 * half, 2 * half + 1):
                                e(f"v_add_f32 v{base+i2}, v{base+i2}, v{base+src*4+i2}")
                        it.append(ad)

            def sto():
                e("s_mov_b32 exec_hi, 0xff")
                e.vmop(f"buffer_store_dwordx4 {vr(ob, 4)}, v{self.vOa}, {sr(self.srdOut, 4)}, s{self.sRow+j} offen {c['outflags'] if j < 3 else c.get('outlast', c['outflags'])}", ("o", j))
                e("s_mov_b32 exec_hi, -1")
            for h, base in enumerate((ra, rb)):
                def cvt(h=h, base=base):
                    e(f"v_cvt_pk_bf16_f32 v{ob+2*h}, v{base}, v{base+1}\nv_cvt_pk_bf16_f32 v{ob+2*h+1}, v{base+2}, v{base+3}")
                    if h:
                        stores.append(sto)
                it.append(cvt)
            return it
        e(f"v_add_u32 v{self.vRwH}, {RED0}, v{self.vRw}\nv_add_u32 v{self.vRaH}, {RED0}, v{self.vRa}")
        e.wait(vm=[("h", 0)] + [("p", tt, 0) for tt in range(5)])
        self.stamp()
        CH = c["chain"]
        published = False
        order = [(i0 + k, tt) for i0 in range(0, 44, CH) for tt in range(5) for k in range(CH)]
        for pos, (im, tm) in enumerate(order):
            i, tt = divmod(pos, 5)
            j, ks = seq[i]
            jm, km = seq[im]
            a = acc + (jm & 1) * 20 + tm * 4
            e.wait(vm=[("h", im), ("p", tm, km)])
            e(f"v_mfma_f32_16x16x32_bf16 {vr(a, 4)}, {ar((tm*12 + km)*4, 4)}, {vr(hr + (im % HR)*4, 4)}, {'0' if km == 0 else vr(a, 4)}")
            if tt == 0 and hn < 48:
                hload(hn)
                hn += 1
            elif tt in (2, 3) and post:
                post.pop(0)()
            elif tt == 0 and stores:
                stores.pop(0)()
            elif tt == 4 and i == c["fD"]:
                self.publish_h(6, 4)
                published = True
            elif tt == 2 and hn < 48 and seq[hn][1] >= c['pollks'] and seq[hn][0] < 3 and seq[hn][0] + 1 not in self.polled:
                pollh(seq[hn][0] + 1)
            elif tt == 1 and hn < 48 and seq[hn][1] == 0:
                checkh(seq[hn][0])
            elif side and ks >= 1:
                it = side.pop(0)
                if it:
                    it()
            if ks == 11 and tt == 4:
                if c["stamps"] == 3 and j < 3:
                    self.stamp()
                assert not side, len(side)
                side = reduce_items(j, False)
        assert HR >= PF + CH + 1 and published
        for tt in range(5):
            for i in range(44, 48):
                a = acc + 20 + tt * 4
                if tt == 0:
                    e.wait(vm=[("h", i)])
                e(f"v_mfma_f32_16x16x32_bf16 {vr(a, 4)}, {ar((tt*12 + i - 36)*4, 4)}, {vr(hr + (i % HR)*4, 4)}, {vr(a, 4)}")
                if tt >= 2 and i == 46:
                    red_write(3, tt - 2)
                elif side:
                    it = side.pop(0)
                    if it:
                        it()
                elif stores:
                    stores.pop(0)()
        assert not side
        self.stamp()
        e("s_nop 3")
        red_write(3, 3)
        e("s_nop 2")
        side = reduce_items(3, True)
        for k, it in enumerate(side):
            if it:
                it()
            if stores:
                stores.pop(0)()
        if c["stamps"] or c.get("ms") is not None:
            self.stamp()
            e.wait(vm_all=True)
            self.stamp()

    def repack(self):
        e = self.e
        c = self.c
        t, L = self.vT, self.vLane
        sR, sLo, sSt = e.s(), e.s(8), e.s(8)
        vD, vR, vS = e.v(4), e.v(4), e.v(4)
        F = e.v(32, 4)
        e(f"s_lshl_b32 s{sR}, s{self.sXcd}, 1\ns_add_u32 s{sR}, s{sR}, s{self.sSlot}\ns_sub_u32 s{sR}, s{sR}, 30")
        e(f"s_lshr_b32 s{self.sB}, s{sR}, 2\ns_mul_i32 s{self.sB}, s{self.sB}, 384")
        e(f"v_lshrrev_b32 v{t}, 3, v{L}\nv_add_u32 v{t}, s{self.sB}, v{t}\nv_mul_u32_u24 v{vD}, 1280, v{t}")
        e(f"v_bfe_u32 v{t}, v{L}, 4, 1\nv_lshlrev_b32 v{t}, 1, v{t}")
        e(f"v_and_b32 v{t+1}, 7, v{L}\nv_xor_b32 v{t}, v{t}, v{t+1}\nv_lshl_add_u32 v{vD}, v{t}, 4, v{vD}")
        e(f"v_xor_b32 v{t}, 64, v{vD}")
        for p in range(1, 4):
            e(f"v_add_u32 v{vD+p}, {p*(10240 - 1024)}, v{vD if p % 2 == 0 else t}")
        e(f"s_and_b32 s{self.sFl}, s{sR}, 3\ns_lshl_b32 s{self.sFl}, s{self.sFl}, 2\ns_add_u32 s{self.sFl}, s{self.sFl}, s{self.sWave}")

        def offs(i):
            e(f"s_add_u32 s{self.sA}, s{self.sFl}, {16*i}\ns_mul_i32 s{self.sB}, s{self.sA}, 205\ns_lshr_b32 s{self.sB}, s{self.sB}, 11")
            e(f"s_mul_i32 s{self.sC}, s{self.sB}, 10\ns_sub_u32 s{self.sC}, s{self.sA}, s{self.sC}")
            e(f"s_mul_i32 s{sLo+i}, s{self.sB}, 40960\ns_lshl_b32 s{self.sSpin}, s{self.sC}, 7\ns_add_u32 s{sLo+i}, s{sLo+i}, s{self.sSpin}")
            e(f"s_mul_i32 s{sSt+i}, s{self.sC}, {4*49152}\ns_lshl_b32 s{self.sSpin}, s{self.sB}, 10\ns_add_u32 s{sSt+i}, s{sSt+i}, s{self.sSpin}")
            if i == 7:
                e(f"s_cmp_ge_u32 s{self.sA}, 120\ns_cselect_b32 s{sLo+i}, 0x40000000, s{sLo+i}\ns_cselect_b32 s{sSt+i}, 0x40000000, s{sSt+i}")
        AH = c["rah"]
        for i in range(AH):
            offs(i)
        sM = e.s()
        e(f"s_lshl_b32 s{sM}, s{self.sWave}, 15")
        self.after_kernarg("s")
        self.late_srds()

        def loads(i):
            e(f"s_add_u32 m0, s{sM}, {i*4096}\ns_nop 0")
            for p in range(4):
                e.vmop(f"buffer_load_dwordx4 v{vD+p}, {sr(self.srdW2, 4)}, s{sLo+i} offen offset:{p*1024} lds", ("rp", i))
        for i in range(AH):
            loads(i)
        for i in range(AH, 8):
            offs(i)
        self.tr_lane_addr(vR, 2048, 1024, None)
        e(f"v_add_u32 v{vR}, s{sM}, v{vR}")
        for sub in range(1, 4):
            e(f"v_xor_b32 v{vR+sub}, {sub*32}, v{vR}")
        e(f"s_lshr_b32 s{self.sB}, s{sR}, 2\ns_mul_i32 s{self.sB}, s{self.sB}, 12288\nv_lshlrev_b32 v{vS}, 4, v{L}\nv_add_u32 v{vS}, s{self.sB}, v{vS}")
        for sub in range(1, 4):
            e(f"v_add_u32 v{vS+sub}, {sub*49152}, v{vS}")
        e(f"s_lshr_b32 s{self.sA}, s{sR}, 2\ns_lshl_b32 s{self.sA}, s{self.sA}, 9\ns_and_b32 s{self.sFl}, s{sR}, 3\ns_mul_i32 s{self.sFl}, s{self.sFl}, {c['fstr']}")
        e(f"s_add_u32 s{self.sFl}, s{self.sFl}, s{self.sA}\ns_add_u32 s{self.sFl}, s{self.sFl}, {FR_OFF}")
        for i in range(8):
            fb = F + (i & 1) * 16
            e.wait(vm=[("rp", i)])
            for sub in range(4):
                for h in range(2):
                    e.ldsop(f"ds_read_b64_tr_b16 {vr(fb + 4*sub + 2*h, 2)}, v{vR+sub} offset:{i*4096 + h*512}", ("rr", i, sub))
            if i + AH < 8:
                loads(i + AH)
            if i == 1:
                self.tok_probe()
            for sub in range(4):
                e.wait(lds=[("rr", i, sub)])
                e.vmop(f"buffer_store_dwordx4 {vr(fb + 4*sub, 4)}, v{vS+sub}, {sr(self.srdP, 4)}, s{sSt+i} offen {c['stf']}", ("rst", i))
            if i in (2 + c["rlag"], 4 + c["rlag"]):
                e.wait(vm=[("rst", i - c["rlag"])])
                if i == 2 + c["rlag"]:
                    e("s_waitcnt lgkmcnt(0)")
                    self.tok_check("L_tok2")
                e("s_barrier")
                self.publish(f"L_r{i}", self.sFl)
                e(f"s_add_u32 s{self.sFl}, s{self.sFl}, 2048")
                self.stamp()
        self.phase2_setup()
        e.wait(vm_all=True)
        e("s_barrier")
        self.publish("L_rlast", self.sFl)
        self.stamp()

    def build(self):
        e = self.e
        c = self.c
        head = HEADER + f"; @launch grid=(256,1,1) block=(256,1,1) lds={LDS_TOTAL}\n"
        self.prologue()
        mark = len(e.L)
        self.phase2_setup()
        del e.L[mark:]
        vmark, smark = e.vnext, e.snext
        self.sPr = (smark + 3) // 4 * 4
        e(f"s_cmp_ge_u32 s{self.sSlot}, 30\ns_cbranch_scc1 L_spare")
        self.phase1_setup()
        self.after_kernarg("w")
        self.srd_adj(self.srdW3, -2048)
        self.phase1_main()
        e("L_join:")
        if not c.get("p1only"):
            self.phase2_main()
            self.write_stamps()
        e(f"L_end_{KN}:\ns_endpgm")
        e("L_spare:")
        self.in_spare = True
        e.reset_counts()
        if c.get("p1only") == 2:
            e("s_endpgm")
        e.vnext, e.snext = vmark, smark
        self.repack()
        if c.get("p1only"):
            e("s_endpgm")
        e(f"s_mov_b32 s{self.sFl}, {FR_OFF + 16384}")
        sq = self.seam_queue("s")
        self.r1probe[1]()
        for _, f in sq:
            f()
        e("s_waitcnt vmcnt(0)")
        e("s_branch L_join")
        e("\n".join(self.cold))
        e("L_codeend:")
        body = "\n".join(e.L)
        kd = f""".section .rodata,"a"
.p2align 6
.amdhsa_kernel {KN}
  .amdhsa_next_free_vgpr 512
  .amdhsa_next_free_sgpr 102
  .amdhsa_accum_offset 256
  .amdhsa_group_segment_fixed_size 0
  .amdhsa_kernarg_size 56
  .amdhsa_user_sgpr_count 2
  .amdhsa_user_sgpr_kernarg_segment_ptr 1
  .amdhsa_system_sgpr_workgroup_id_x 1
  .amdhsa_float_denorm_mode_32 3
.end_amdhsa_kernel
"""
        return head + '.amdgcn_target "amdgcn-amd-amdhsa--gfx950"\n.text\n' + body + "\n" + kd


def about_dma(vq):
    return bool(vq) and getattr(vq[0][1], "__name__", "") != "w2"


def parse_kw(args):
    kw = {}
    for a in args:
        k, v = a.split("=", 1)
        try:
            v = eval(v)
        except Exception:
            pass
        kw[k] = v
    return kw


if __name__ == "__main__":
    out = sys.argv[1]
    open(out, "w").write(Gen(**parse_kw(sys.argv[2:])).build())
```

```python
import sys

NAME = "standalone__glu_gated_swiglu__prompt"
KN = NAME + "_kernel"

X_BYTES = 2048 * 640 * 2
W_BYTES = 640 * 1536 * 2
OUT_BYTES = 2048 * 640 * 2
H_BYTES = 128 * 49152
W2P_OFF = 8 << 20
W2P_BYTES = 40 * 49152
FLAG_OFF = 12 << 20
FLAG_BYTES = 262144
FR_OFF = 196608
FSTAGE = 40960
STAMP_OFF = 16 << 20

NU = 13
XS = NU * 2048
STAGE = XS + 16384
NSTAGE = 3
RED0 = NSTAGE * STAGE
TST = 64
RST = 336
SST = 16 * RST
REDSZ = 4 * SST
LDS_TOTAL = RED0 + REDSZ

HEADER = """; Kernarg layout for this problem (56 bytes, ptrs only, base s[0:1]):
;   offset  24: d_in[3] w2  shape=(1536, 640) dtype=bfloat16 strides=(1280, 2) contiguous=True
"""


class Em:
    def __init__(self):
        self.L = []
        self.reset_counts()
        self.vnext = 1
        self.snext = 4
        self.skip = lambda kind, tag: False
        self.t = self.tm = self.tv = 0

    def __call__(self, s):
        for line in s.split("\n"):
            line = line.strip()
            if line:
                self.L.append(line if line.endswith(":") else "    " + line)
                self.tick(line)

    def tick(self, line):
        op = line.split(" ")[0]
        if op.startswith("v_mfma"):
            self.t = max(self.t, self.tm + 16)
            self.tm = self.t
            self.t += 4
        elif op.startswith("v_"):
            self.t = max(self.t, self.tm + 8) + (8 if op.startswith(("v_exp", "v_rcp", "v_perm")) else 4)
        elif op.startswith(("buffer", "global")):
            self.t += 12
            self.tv = self.t
        elif op.startswith("ds_write"):
            self.t += 16
        elif op.startswith(("s_waitcnt", "s_nop")) or op.endswith(":"):
            self.t += 1
        else:
            self.t += 4

    def v(self, n=1, align=1):
        b = (self.vnext + align - 1) // align * align
        self.vnext = b + n
        assert self.vnext <= 256, "out of arch VGPRs"
        return b

    def s(self, n=1, align=1):
        b = (self.snext + align - 1) // align * align
        self.snext = b + n
        assert self.snext <= 102, "out of SGPRs"
        return b

    def ldsop(self, txt, tag=None):
        if not self.skip("lds", tag):
            self(txt)
        self.lds.append(tag)

    def vmop(self, txt, tag=None):
        if not self.skip("vm", tag):
            self(txt)
        self.vm.append(tag)

    def _need(self, ops, tags):
        idx = -1
        for t in tags:
            c = [i for i, x in enumerate(ops) if x == t]
            assert c, f"tag {t} never issued"
            idx = max(idx, c[-1])
        return idx + 1

    def wait(self, lds=(), vm=(), lds_all=False, vm_all=False):
        parts = []
        n = len(self.vm) if vm_all else (self._need(self.vm, vm) if vm else 0)
        if n > self.vm_done:
            cnt = min(len(self.vm) - n, 63)
            parts.append(f"vmcnt({cnt})")
            self.vm_done = len(self.vm) - cnt
        n = len(self.lds) if lds_all else (self._need(self.lds, lds) if lds else 0)
        if n > self.lds_done:
            cnt = min(len(self.lds) - n, 15)
            parts.append(f"lgkmcnt({cnt})")
            self.lds_done = len(self.lds) - cnt
        if parts:
            self("s_waitcnt " + " ".join(parts))

    def reset_counts(self):
        self.lds, self.vm, self.lds_done, self.vm_done = [], [], 0, 0


def vr(b, n):
    return f"v[{b}:{b+n-1}]" if n > 1 else f"v{b}"


def ar(b, n):
    return f"a[{b}:{b+n-1}]"


def sr(b, n):
    return f"s[{b}:{b+n-1}]" if n > 1 else f"s{b}"


DEF = dict(D=9, E=2, stamps=False, G=5, lead=1, xm=0, map2="8x4", stf="sc1", ldf="sc1", codepf="dist", outflags="sc1",
           npre=20, pre0=11, tail=13, PF=9, HR=12, pollks=5, fA=6, fB=10, fC=-1, fD=1, align=12,
           tback=48, tdma=66, tw2=90, crit=3, rpv=1, rpos=0, rpub=3, rsk=8, l2pf=0, w2at=7, sleep=8, grot=0, wspace=1, ssleep=8, rah=3, rlag=1, rpd=8, r1d=7, fstr=4, tw2a=60, ua=2, g2late=0, bpos=12, chain=2, gsh=1, xlate=1, klate=1, g0=1, lead0=1, lsh=0, inp2=0, wper=2, cpf=None, fastto=1, spf=(2, 3, 4), hfirst=44, pd0=10, epiA=4, epiB=4)


class Gen:
    def __init__(self, **kw):
        self.c = dict(DEF)
        self.c["await"] = 1
        self.c.update(kw)
        self.e = Em()
        c = self.c

        def skip(kind, tag):
            if kind == "vm" and tag in c.get("skipvm", ()):
                return True
            if not isinstance(tag, tuple):
                return False
            if kind == "vm" and tag[0] in c.get("skipvm", ()):
                return True
            if c.get("nohst") and kind == "vm" and tag[0] == "hst":
                return True
            if c.get("no_dma") and kind == "vm" and tag[0] == "d" and tag[1] >= 3:
                return True
            if c.get("no_xread") and kind == "lds" and tag[0] == "x" and tag[1] >= 26:
                return True
            return False
        self.e.skip = skip
        self.nstamp = 0
        self.cold = []

    def stamp(self):
        e = self.e
        if self.c.get("ms") is not None:
            if self.nstamp + (100 if getattr(self, "in_spare", False) else 0) == self.c["ms"]:
                e("s_memrealtime s[98:99]")
            self.nstamp += 1
            return
        if not self.c["stamps"]:
            return
        i = self.nstamp
        self.nstamp += 1
        if self.c["stamps"] == 9 and i != 30:
            return
        assert i < 31
        e(f"s_memtime {sr(self.sT, 2)}\ns_memrealtime {sr(self.sT3, 2)}")
        e("s_waitcnt lgkmcnt(0)")
        e.lds_done = len(e.lds)
        e(f"v_writelane_b32 v{self.vStamp}, s{self.sT}, {i}\nv_writelane_b32 v{self.vStamp}, s{self.sT3}, {32 + i}")

    def write_stamps(self):
        e = self.e
        if self.c.get("ms") is not None:
            e("s_waitcnt lgkmcnt(0)\nL_dly:\ns_memrealtime s[100:101]\ns_waitcnt lgkmcnt(0)\ns_sub_u32 s100, s100, s98\ns_cmp_lt_u32 s100, 3000\ns_cbranch_scc1 L_dly")
            return
        if not self.c["stamps"]:
            return
        keep = self.nstamp
        self.nstamp = 30
        self.stamp()
        self.nstamp = keep
        e(f"s_lshl_b32 s{self.sT}, s2, 2\ns_add_u32 s{self.sT}, s{self.sT}, s{self.sWave}\ns_lshl_b32 s{self.sT}, s{self.sT}, 8")
        e(f"s_add_u32 s{self.sT}, s{self.sT}, {STAMP_OFF}")
        e(f"v_lshlrev_b32 v{self.vT}, 2, v{self.vLane}\nv_add_u32 v{self.vT}, s{self.sT}, v{self.vT}")
        e(f"s_mov_b32 s{self.srdH+2}, 0x10000000")
        e(f"buffer_store_dword v{self.vStamp}, v{self.vT}, {sr(self.srdH, 4)}, 0 offen")
        e("s_waitcnt vmcnt(0)")

    def srd_adj(self, dst, addoff):
        e = self.e
        if addoff > 0:
            e(f"s_add_u32 s{dst}, s{dst}, {addoff}\ns_addc_u32 s{dst+1}, s{dst+1}, 0")
        else:
            e(f"s_sub_u32 s{dst}, s{dst}, {-addoff}\ns_subb_u32 s{dst+1}, s{dst+1}, 0")

    def srd_const(self, dst, nbytes):
        self.e(f"s_mov_b32 s{dst+2}, {nbytes}\ns_mov_b32 s{dst+3}, 0x20000")

    def tr_lane_addr(self, dst, qstride_hi, qstride_lo, sub):
        e = self.e
        t, L = self.vT, self.vLane
        e(f"v_bfe_u32 v{t}, v{L}, 5, 1\nv_mul_u32_u24 v{dst}, {qstride_hi}, v{t}")
        e(f"v_bfe_u32 v{t}, v{L}, 4, 1\nv_mul_u32_u24 v{t+1}, {qstride_lo}, v{t}\nv_add_u32 v{dst}, v{dst}, v{t+1}")
        e(f"v_lshlrev_b32 v{t+1}, 2, v{t}")
        e(f"v_bfe_u32 v{t}, v{L}, 3, 1\nv_lshl_add_u32 v{t+1}, v{t}, 1, v{t+1}")
        e(f"v_bfe_u32 v{t}, v{L}, 1, 1")
        if sub is not None:
            e(f"s_lshl_b32 s{self.sA}, s{sub}, 1\nv_add_u32 v{t}, s{self.sA}, v{t}")
        e(f"v_xor_b32 v{t}, v{t}, v{t+1}\nv_lshl_add_u32 v{dst}, v{t}, 4, v{dst}")
        e(f"v_bfe_u32 v{t}, v{L}, 2, 2\nv_lshl_add_u32 v{dst}, v{t}, 7, v{dst}")
        e(f"v_and_b32 v{t}, 1, v{L}\nv_lshl_add_u32 v{dst}, v{t}, 3, v{dst}")

    def spin(self, label, load, check):
        e = self.e
        if self.c.get("nocheck"):
            return
        check()
        e(f"s_cbranch_vccz {label}_out")
        e(f"s_mov_b32 s{self.sSpin}, 0x40000")
        e(f"{label}_spin:")
        e(f"s_sleep {self.c['ssleep'] if label.endswith('s') else self.c['sleep']}")
        e(load)
        e("s_waitcnt vmcnt(0)")
        check()
        e(f"s_cbranch_vccz {label}_out")
        e(f"s_sub_u32 s{self.sSpin}, s{self.sSpin}, 1\ns_cbranch_scc0 {label}_spin")
        e(f"{label}_out:")

    def tok_probe(self):
        self.e(f"s_buffer_load_dword s{self.sTok}, {sr(self.srdD, 4)}, 0")

    def tok_check(self, label):
        e = self.e
        e(f"s_cmp_eq_u32 s{self.sTok}, 0\ns_cbranch_scc1 {label}_slow\n{label}_ok:")
        e(f"v_mov_b32 v{self.vTok}, s{self.sTok}\ns_mov_b32 s{self.sTok+1}, s{self.sTok}")
        self.cold += [f"{label}_slow:", f"s_mov_b32 s{self.sSpin}, 0x40000", f"{label}_spin:",
                      f"buffer_load_dword v{self.vTok}, off, {sr(self.srdD, 4)}, 0 sc1", "s_waitcnt vmcnt(0)",
                      f"v_readfirstlane_b32 s{self.sTok}, v{self.vTok}", "s_nop 3", f"s_cmp_lg_u32 s{self.sTok}, 0", f"s_cbranch_scc1 {label}_ok",
                      "s_sleep 2", f"s_sub_u32 s{self.sSpin}, s{self.sSpin}, 1", f"s_cbranch_scc0 {label}_spin", f"s_branch {label}_ok"]

    def probe(self, soff, imm, n):
        e = self.e
        if ("probe",)[0] in self.c.get("skipvm", ()):
            return
        for i in range(0, n, 2):
            e(f"s_mov_b64 {sr(self.sPr+i, 2)}, 0")
        if self.c["fstr"] == 4:
            w = 8 if n > 4 else 4
            e(f"s_buffer_load_dwordx{w} {sr(self.sPr, w)}, {sr(self.srdF, 4)}, s{soff} offset:{imm}")
            return
        for i in range(n):
            e(f"s_buffer_load_dword s{self.sPr+i}, {sr(self.srdF, 4)}, s{soff} offset:{imm + self.c['fstr']*i}")

    def probe_check(self, label, vaddr, soff, imm, n):
        e = self.e
        if self.c.get("nocheck"):
            return

        for i in range(0, n, 2):
            e(f"s_cmp_eq_u64 {sr(self.sPr+i, 2)}, {sr(self.sTok, 2)}\ns_cbranch_scc0 {label}_slow")
        e(f"{label}_out:")
        k = [f"{label}_slow:", "s_waitcnt lgkmcnt(0)"]
        ident = ["L_pr1", "L_pr2", "L_pr3", "L_ph0", "L_ph1", "L_ph2", "L_ph3"].index(label.rstrip("s"))
        if self.c["stamps"] == 9:
            k.append(f"v_writelane_b32 v{self.vStamp}, 1, {2*ident + 1}")
        for i in range(0, n, 2):
            k += [f"s_cmp_eq_u64 {sr(self.sPr+i, 2)}, {sr(self.sTok, 2)}", f"s_cbranch_scc0 {label}_vec" if i + 2 < n else f"s_cbranch_scc1 {label}_out"]
        k += [f"{label}_vec:"] + ([f"v_writelane_b32 v{self.vStamp}, 1, {2*ident + 2}"] if self.c["stamps"] == 9 else [])
        k += [f"s_add_u32 s{self.sA}, s{soff}, {imm}", f"s_mov_b32 s{self.sSpin}, 0x40000", f"{label}_spin:",
              f"buffer_load_dword v{self.vPoll}, v{vaddr}, {sr(self.srdF, 4)}, s{self.sA} offen sc1", "s_waitcnt vmcnt(0)",
              f"v_cmp_ne_u32 vcc, v{self.vPoll}, v{self.vTok}", f"s_cbranch_vccz {label}_out",
              f"s_sleep {self.c['ssleep'] if label.endswith('s') else self.c['sleep']}",
              f"s_sub_u32 s{self.sSpin}, s{self.sSpin}, 1", f"s_cbranch_scc0 {label}_spin", f"s_branch {label}_out"]
        self.cold += k

    def publish(self, label, sreg, srd=None, cond=None):
        e = self.e
        if self.c.get("noflag"):
            return
        e(f"s_cmp_lg_u32 s{self.sWave if cond is None else cond}, 0\ns_cbranch_scc1 {label}")
        e(f"s_mov_b64 exec, 1\nbuffer_store_dword v{self.vTok}, off, {sr(self.srdF if srd is None else srd, 4)}, s{sreg} sc1\ns_mov_b64 exec, -1")
        e(f"{label}:")

    def publish_h(self, pr, stage):
        e = self.e
        e.wait(vm=[("hst", pr)])
        e("s_barrier")
        self.publish(f"L_pub{stage}", self.sFl)
        if stage < 4:
            e(f"s_add_u32 s{self.sFl}, s{self.sFl}, {FSTAGE}")

    def prologue(self):
        e = self.e
        c = self.c
        e(f".globl {KN}\n.p2align {c['align']}\n.type {KN},@function\n{KN}:")
        self.srdX, self.srdW1, self.srdW3, self.srdW2 = (e.s(4, 4) for _ in range(4))
        self.srdOut, self.srdH, self.srdP, self.srdD, self.srdF = (e.s(4, 4) for _ in range(5))
        self.sT, self.sT2 = e.s(2, 2), e.s(2, 2)
        self.sWave, self.sXcd, self.sSlot = e.s(), e.s(), e.s()
        self.sA, self.sB, self.sC, self.sSpin, self.sFl = (e.s() for _ in range(5))
        if c["stamps"]:
            self.vStamp = e.v()
            self.sT3, self.sT4 = e.s(2, 2), e.s(2, 2)
        self.vLane = e.v()
        self.vT = e.v(4, 4)
        self.vTok, self.vPoll = e.v(), e.v()
        self.sTok = e.s(2, 2)
        e(f"s_cmp_ge_u32 s2, 256\ns_cbranch_scc1 L_end_{KN}")
        if c["codepf"]:
            e(f"s_getpc_b64 {sr(self.sT, 2)}")
        for srd, off in ((self.srdW1, 8), (self.srdW3, 16), (self.srdX, 0)):
            e(f"s_load_dwordx2 {sr(srd, 2)}, s[0:1], {off}")
        if c["stamps"] or not c["klate"]:
            e(f"s_memrealtime {sr(self.sT2, 2)}")
        if not c["klate"]:
            self.late_kernargs()
        if c.get("ms") is not None:
            e("s_memrealtime s[98:99]")
        if c["stamps"]:
            e(f"v_mov_b32 v{self.vStamp}, 0")
            e(f"s_memtime {sr(self.sT4, 2)}")
        e(f"v_lshrrev_b32 v{self.vT}, 6, v0")
        e(f"v_and_b32 v{self.vLane}, 63, v0")
        e(f"v_readfirstlane_b32 s{self.sWave}, v{self.vT}")
        if c["codepf"] == "dist":
            t = self.vT + 1
            e(f"s_lshr_b32 s{self.sSlot}, s2, 3\nv_lshrrev_b32 v{t}, 5, v0\ns_lshl_b32 s{self.sA}, s{self.sSlot}, 3\nv_add_u32 v{t}, s{self.sA}, v{t}")
            e(f"v_lshlrev_b32 v{t}, 7, v{t}")
            e(f"s_and_b32 s{self.sT}, s{self.sT}, 0xffffff00")
            e(f"v_min_u32 v{t}, L_codeend - {KN} - 4, v{t}")
            e.vmop(f"global_load_dword v{self.vPoll}, v{t}, {sr(self.sT, 2)}", "codepf")
        elif c["codepf"]:
            t = self.vT + 1
            e(f"v_lshlrev_b32 v{t}, 7, v0")
            e(f"s_and_b32 s{self.sT}, s{self.sT}, 0xffffff00")
            e(f"v_min_u32 v{t}, L_codeend - {KN} - 4, v{t}")
            e.vmop(f"global_load_dword v{self.vPoll}, v{t}, {sr(self.sT, 2)}", "codepf")
        e(f"s_and_b32 s{self.sXcd}, s2, 7\ns_lshr_b32 s{self.sSlot}, s2, 3")
        for dst, nbytes in ((self.srdW1, W_BYTES), (self.srdW3, W_BYTES + 2048)):
            self.srd_const(dst, nbytes)

    def late_kernargs(self):
        for srd, off in ((self.srdW2, 24), (self.srdP, 48), (self.srdD, 40), (self.srdOut, 32), (self.srdH, 48), (self.srdF, 48)):
            self.e(f"s_load_dwordx2 {sr(srd, 2)}, s[0:1], {off}")

    def after_kernarg(self, tag):
        e = self.e
        e("s_waitcnt lgkmcnt(0)")
        if self.c.get("ms") is not None:
            self.nstamp = 1
            self.stamp()
        if self.c["stamps"]:
            e(f"v_writelane_b32 v{self.vStamp}, s{self.sT4}, 0\nv_writelane_b32 v{self.vStamp}, s{self.sT2}, 32")
            self.nstamp = 1
            self.stamp()

    def late_srds(self):
        for dst, nbytes in ((self.srdW2, W_BYTES), (self.srdOut, OUT_BYTES), (self.srdH, H_BYTES), (self.srdP, W2P_BYTES),
                            (self.srdF, FLAG_BYTES)):
            self.srd_const(dst, nbytes)
        self.srd_adj(self.srdP, W2P_OFF)
        self.srd_adj(self.srdF, FLAG_OFF)

    def publish_token(self):
        e = self.e
        t = self.vT
        e(f"s_or_b32 s{self.sA}, s2, s{self.sWave}\ns_cmp_lg_u32 s{self.sA}, 0\ns_cbranch_scc1 L_notok")
        e(f"s_max_u32 s{self.sA}, s{self.sT2}, 1\nv_mov_b32 v{t}, s{self.sA}")
        e(f"s_mov_b64 exec, 1\nbuffer_store_dword v{t}, off, {sr(self.srdD, 4)}, 0 sc1\ns_mov_b64 exec, -1")
        e("L_notok:")

    def phase1_setup(self):
        e = self.e
        c = self.c
        t, L = self.vT, self.vLane
        self.sRb, self.sCh = e.s(), e.s()
        self.sSoX, self.sSoW = e.s(10), e.s()
        self.sMx, self.sMw = e.s(), e.s()
        sG, sSig = e.s(), e.s()
        e(f"s_mul_i32 s{self.sA}, s{self.sSlot}, 43\ns_lshr_b32 s{self.sA}, s{self.sA}, 8")
        e(f"s_mul_i32 s{self.sB}, s{self.sA}, 6\ns_sub_u32 s{self.sB}, s{self.sSlot}, s{self.sB}")
        e(f"s_and_b32 s{self.sC}, s{self.sXcd}, 1\ns_mul_i32 s{self.sC}, s{self.sC}, 5\ns_add_u32 s{self.sRb}, s{self.sC}, s{self.sA}")
        e(f"s_lshr_b32 s{self.sC}, s{self.sXcd}, 1\ns_mul_i32 s{self.sC}, s{self.sC}, 6\ns_add_u32 s{self.sCh}, s{self.sC}, s{self.sB}")
        G = c["G"]
        if c["cpf"]:
            self.sRbl, self.sChl = e.s(), e.s()
            e(f"s_mov_b32 s{self.sRbl}, s{self.sA}\ns_mov_b32 s{self.sChl}, s{self.sB}")
        e(f"s_add_u32 s{sG}, s{self.sA}, s{self.sB}")
        if G == 1:
            e(f"s_mov_b32 s{sG}, 0")
        elif G == 2:
            e(f"s_and_b32 s{sG}, s{sG}, 1")
        else:
            e(f"s_mul_i32 s{self.sC}, s{sG}, {-(-256 // G)}\ns_lshr_b32 s{self.sC}, s{self.sC}, 8\ns_mul_i32 s{self.sC}, s{self.sC}, {G}\ns_sub_u32 s{sG}, s{sG}, s{self.sC}")
        if c["xm"]:
            e(f"s_lshr_b32 s{self.sC}, s{self.sXcd}, 1\ns_add_u32 s{self.sC}, s{self.sC}, s{self.sXcd}\ns_and_b32 s{sSig}, s{self.sC}, 1")
        self.sG, self.sSig = sG, sSig
        self.slab_off(0)
        self.vXo = e.v(7)
        self.vWo = e.v(2)
        e(f"s_lshl_b32 s{self.sA}, s{self.sWave}, 4\nv_lshrrev_b32 v{t+3}, 3, v{L}\nv_add_u32 v{t}, s{self.sA}, v{t+3}")
        e(f"v_mul_u32_u24 v{t}, 3072, v{t}\nv_and_b32 v{t+2}, 7, v{L}")
        e(f"v_bfe_u32 v{t+1}, v{L}, 4, 1\nv_lshlrev_b32 v{t+1}, 1, v{t+1}\nv_xor_b32 v{t+1}, v{t+1}, v{t+2}")
        e(f"v_lshl_add_u32 v{t}, v{t+1}, 4, v{t}\ns_lshl_b32 s{self.sA}, s{self.sCh}, 7\nv_add_u32 v{self.vWo}, s{self.sA}, v{t}")
        e(f"v_xor_b32 v{t}, 64, v{self.vWo}\nv_add_u32 v{self.vWo+1}, {8*3072 - 1024}, v{t}")
        e(f"s_lshl_b32 s{self.sMw}, s{self.sWave}, 12\ns_add_u32 s{self.sMw}, s{self.sMw}, {XS}")
        if not c["xlate"]:
            self.x_setup()

    def x_setup(self):
        e = self.e
        t = self.vT
        e(f"s_mul_i32 s{self.sA}, s{self.sWave}, 52\nv_add_u32 v{t}, s{self.sA}, v{t+3}")
        e(f"v_bfe_u32 v{t+1}, v{t}, 1, 3\nv_xor_b32 v{t+1}, v{t+1}, v{t+2}")
        e(f"s_mul_i32 s{self.sB}, s{self.sRb}, 208\nv_add_u32 v{t}, s{self.sB}, v{t}\nv_mul_u32_u24 v{t}, 1280, v{t}")
        e(f"v_lshl_add_u32 v{self.vXo}, v{t+1}, 4, v{t}")
        e(f"v_xor_b32 v{t+1}, 64, v{self.vXo}")
        for i in range(1, 7):
            src = self.vXo if i % 2 == 0 else t + 1
            e(f"v_add_u32 v{self.vXo+i}, {i*10240 - (i & 3)*1024}, v{src}")
        e(f"s_mul_i32 s{self.sMx}, s{self.sWave}, 6656")
        self.srd_const(self.srdX, X_BYTES)

    def slab_off(self, s):
        e = self.e
        G, xm = self.c["G"], self.c["xm"]
        base = s // G * G
        d = self.sSoX + s
        if self.c.get("lead"):
            ld = self.c["lead"]
            e(f"s_mov_b32 s{d}, {s}")
            for cl in range(5):
                o = list(range(10))
                g0 = self.c["g0"]
                o[:g0] = [(i + cl) % g0 for i in range(g0)]
                for a in range(max(g0, self.c["lead0"]), 10):
                    if (a - ld) % 5 == (cl + self.c["lsh"]) % 5:
                        o.remove(a)
                        o.insert(a - ld, a)
                if o[s] != s:
                    e(f"s_cmp_eq_u32 s{self.sG}, {cl}\ns_cselect_b32 s{d}, {o[s]}, s{d}")
        elif base + G > 10 or G == 1:
            e(f"s_mov_b32 s{d}, {s}")
        elif G == 2:
            e(f"s_xor_b32 s{d}, s{self.sG}, {s}")
        else:
            e(f"s_add_u32 s{d}, s{self.sG}, {s}\ns_sub_u32 s{self.sC}, s{d}, {G}\ns_cmp_ge_u32 s{d}, {base + G}\ns_cselect_b32 s{d}, s{self.sC}, s{d}")
        if xm == "rev":
            e(f"s_sub_u32 s{self.sC}, 9, s{d}\ns_cmp_eq_u32 s{self.sSig}, 1\ns_cselect_b32 s{d}, s{self.sC}, s{d}")
        elif xm:
            e(f"s_mul_i32 s{self.sC}, s{self.sSig}, {xm}\ns_add_u32 s{d}, s{d}, s{self.sC}\ns_sub_u32 s{self.sC}, s{d}, 10\ns_cmp_ge_u32 s{d}, 10\ns_cselect_b32 s{d}, s{self.sC}, s{d}")
        e(f"s_lshl_b32 s{d}, s{d}, 7")

    def dma_list(self, s):
        e = self.e
        sb = (s % NSTAGE) * STAGE
        out = []
        for m in range(2):
            for j in range(2):
                def f(m=m, j=j):
                    srd = self.srdW1 if m == 0 else self.srdW3
                    e.vmop(f"buffer_load_dwordx4 v{self.vWo+j}, {sr(srd, 4)}, s{self.sSoW} offen offset:{m*2048 + j*1024} lds", ("d", s))
                out.append((f"s_add_u32 m0, s{self.sMw}, {sb}\ns_mul_i32 s{self.sSoW}, s{self.sSoX+s}, 1536" if m + j == 0 else None, f))
        for i in range(7):
            def f(i=i):
                if i == 6:
                    e("s_mov_b32 exec_hi, 0")
                e.vmop(f"buffer_load_dwordx4 v{self.vXo+i}, {sr(self.srdX, 4)}, s{self.sSoX+s} offen offset:{(i & 3)*1024} lds", ("d", s))
                if i == 6:
                    e("s_mov_b32 exec_hi, -1")
            out.append((f"s_add_u32 m0, s{self.sMx}, {sb + (i >> 2)*4096}" if i % 4 == 0 else None, f))
        return out

    def epi_ops(self, u):
        g = self.acc + u * 8
        up = g + 4
        T = self.tmp + (u & 1) * 4
        dst = self.outb + ((u >> 1) & 1) * 4 + (u & 1) * 2
        ops = []
        for i in range(4):
            ops.append((1, f"v_mul_f32 v{T+i}, s{self.sK}, v{g+i}"))
        for i in range(4):
            ops.append((2, f"v_exp_f32 v{T+i}, v{T+i}"))
            ops.append((1, f"v_mul_f32 v{g+i}, v{g+i}, v{up+i}"))
        for i in range(4):
            ops.append((1, f"v_add_f32 v{T+i}, 1.0, v{T+i}"))
        for i in range(4):
            ops.append((2, f"v_rcp_f32 v{T+i}, v{T+i}"))
        for i in range(4):
            ops.append((1, f"v_mul_f32 v{g+i}, v{g+i}, v{T+i}"))
        ops.append((1, f"v_cvt_pk_bf16_f32 v{dst}, v{g}, v{g+1}"))
        ops.append((1, f"v_cvt_pk_bf16_f32 v{dst+1}, v{g+2}, v{g+3}"))
        return ops

    def phase1_main(self):
        e = self.e
        c = self.c
        D, E = c["D"], c["E"]
        R = D + 2
        t, L = self.vT, self.vLane
        first = self.dma_list(0) + self.dma_list(1) + self.dma_list(2)
        def coop(s0, n):
            def f():
                assert not c["xm"]
                e(f"s_mov_b64 exec, {(1 << (4*n)) - 1}\ns_mov_b32 s{self.sA}, {s0*196608}")
                e.vmop(f"buffer_load_dword v{self.vPoll}, v{self.vPw}, {sr(self.srdW1, 4)}, s{self.sA} offen", "cpf")
                e.vmop(f"buffer_load_dword v{self.vPoll}, v{self.vPw}, {sr(self.srdW3, 4)}, s{self.sA} offen offset:2048", "cpf")
                e(f"s_mov_b64 exec, {(1 << (9*n)) - 1}")
                e.vmop(f"buffer_load_dword v{self.vPoll}, v{self.vPx}, {sr(self.srdX, 4)}, 0 offen offset:{s0*128}", "cpf")
                e("s_mov_b64 exec, -1")
            return (None, f)
        for pos, s0, n in reversed(c["cpf"] or ()):
            first.insert(pos, coop(s0, n))
        npre = c["npre"] + len(c["cpf"] or ())
        assert npre <= 26
        def emit_now(items):
            for m0, f in items:
                if m0:
                    e(m0 + "\ns_nop 0")
                f()
        pre0 = c["pre0"]
        emit_now(first[:4])
        if c["klate"]:
            self.late_kernargs()
            if not c["stamps"]:
                e(f"s_memrealtime {sr(self.sT2, 2)}")
        if c["xlate"]:
            self.x_setup()
        emit_now(first[4:min(pre0, 11)])
        self.slab_off(1)
        emit_now(first[11:pre0])
        self.acc = e.v(NU * 8, 4)
        self.xr = e.v(R * 4, 4)
        NW = 5
        self.wf = e.v(8 * NW, 4)
        vXa, vWa = e.v(6), e.v(3)
        self.vHs = e.v()
        self.tmp = e.v(8, 4)
        self.outb = e.v(8, 4)
        self.sK, self.sHo = e.s(), e.s()
        self.srd_const(self.srdD, 256)
        e("s_waitcnt lgkmcnt(0)")
        self.publish_token()
        if c.get("tlbw"):
            e(f"v_lshlrev_b32 v{t}, 21, v{L}\ns_mov_b32 s{self.srdH+2}, {14 << 20}\ns_mov_b32 s{self.srdH+3}, 0x20000")
            e(f"s_mov_b32 s{self.srdOut+2}, {OUT_BYTES}\ns_mov_b32 s{self.srdOut+3}, 0x20000\ns_mov_b64 exec, 127")
            e.vmop(f"buffer_load_dword v{self.vPoll}, v{t}, {sr(self.srdH, 4)}, 0 offen", "tlbw")
            e.vmop(f"buffer_load_dword v{self.vPoll}, v{t}, {sr(self.srdOut, 4)}, 0 offen", "tlbw")
            e("s_mov_b64 exec, -1")
        self.slab_off(2)
        e(f"v_and_b32 v{t}, 15, v{L}\nv_bfe_u32 v{t+1}, v{L}, 1, 3\nv_lshrrev_b32 v{t+2}, 4, v{L}\nv_xor_b32 v{t+1}, v{t+1}, v{t+2}")
        e(f"v_lshlrev_b32 v{t}, 7, v{t}\nv_lshl_add_u32 v{vXa}, v{t+1}, 4, v{t}\nv_xor_b32 v{vXa+1}, 64, v{vXa}")
        self.tr_lane_addr(vWa, 4096, 1024, self.sWave)
        e(f"v_add_u32 v{vWa}, {XS}, v{vWa}")
        emit_now(first[pre0:npre])
        vq = list(first[npre:])
        mark = len(e.L)
        tsave = (e.t, e.tm, e.tv)
        self.slab_off(3)
        for st in (1, 2):
            e(f"v_add_u32 v{vXa+2*st}, {st*STAGE}, v{vXa}\nv_add_u32 v{vXa+2*st+1}, {st*STAGE}, v{vXa+1}")
        e(f"v_add_u32 v{vWa+1}, {STAGE}, v{vWa}\nv_add_u32 v{vWa+2}, {2*STAGE}, v{vWa}")
        self.late_srds()
        e("MARK1:")
        self.slab_off(4)
        e("MARK2:")
        for sx in range(5, 10):
            self.slab_off(sx)
        e("MARK3:")
        e(f"s_mov_b32 s{self.sK}, 0xbfb8aa3b")
        e(f"v_bfe_u32 v{t}, v{L}, 4, 1\nv_mul_u32_u24 v{self.vHs}, 49152, v{t}")
        e(f"v_bfe_u32 v{t}, v{L}, 5, 1\nv_lshl_add_u32 v{self.vHs}, v{t}, 8, v{self.vHs}")
        e(f"v_and_b32 v{t}, 15, v{L}\nv_lshl_add_u32 v{self.vHs}, v{t}, 4, v{self.vHs}")
        e(f"s_mul_i32 s{self.sA}, s{self.sRb}, {NU*49152}\ns_lshl_b32 s{self.sB}, s{self.sCh}, 11\ns_add_u32 s{self.sA}, s{self.sA}, s{self.sB}")
        e(f"s_lshl_b32 s{self.sB}, s{self.sWave}, 9\ns_add_u32 s{self.sA}, s{self.sA}, s{self.sB}")
        e(f"v_add_u32 v{self.vHs}, s{self.sA}, v{self.vHs}")
        e(f"s_lshr_b32 s{self.sA}, s{self.sXcd}, 1\ns_mul_i32 s{self.sB}, s{self.sA}, 6\ns_sub_u32 s{self.sB}, s{self.sCh}, s{self.sB}")
        e(f"s_lshl_b32 s{self.sC}, s{self.sRb}, 2\ns_add_u32 s{self.sA}, s{self.sA}, s{self.sC}\ns_lshl_b32 s{self.sA}, s{self.sA}, 10")
        e(f"s_mul_i32 s{self.sB}, s{self.sB}, {c['fstr']}")
        e(f"s_add_u32 s{self.sFl}, s{self.sA}, s{self.sB}")
        self.phase2_setup()
        e("MARK5:")
        lines = [l.strip() for l in e.L[mark:]]
        del e.L[mark:]
        e.t, e.tm, e.tv = tsave
        setup = []
        for l in lines:
            if l.split()[0] in ("s_cselect_b32", "s_addc_u32", "s_subb_u32", "s_nop", "v_cndmask_b32"):
                setup[-1] += "\n" + l
            else:
                setup.append(l)

        def setup_upto(m):
            while m in setup:
                it = setup.pop(0)
                if not it.startswith("MARK"):
                    e(it)

        seq = [(u, s, ks) for s in range(8) for ks in range(2) for u in range(NU)]
        k = c["tail"]
        seq += [(u, 8, ks) for ks in range(2) for u in range(k, NU)]
        for u in range(NU):
            if u < k:
                seq += [(u, 8, 0), (u, 8, 1)]
            seq += [(u, 9, 0), (u, 9, 1)]
        N = len(seq)
        first_use = {s: min(n for n in range(N) if seq[n][1] == s) for s in range(10)}
        last_use = {u: max(n for n in range(N) if seq[n][0] == u) for u in range(NU)}
        bpos = {s: first_use[s] - (D - E) for s in range(1, 10)}
        bpos[0] = 0
        if bpos[9] <= bpos[8] + 1:
            bpos[9] = bpos[8]

        def xread(n):
            u, s, ks = seq[n]
            e.ldsop(f"ds_read_b128 {vr(self.xr + (n % R)*4, 4)}, v{vXa + 2*(s % NSTAGE) + ks} offset:{u*2048}", ("x", n))

        def wbuf(s, ks):
            return self.wf + ((2 * s + ks) % NW) * 8

        def wread(s, ks, m, h):
            e.ldsop(f"ds_read_b64_tr_b16 {vr(wbuf(s, ks) + m*4 + h*2, 2)}, v{vWa + s % NSTAGE} offset:{ks*8192 + m*2048 + h*512}", ("w", s, ks))

        wneed, wlast = {}, {}
        for n, (u, s, ks) in enumerate(seq):
            wneed.setdefault((s, ks), n)
            wlast[(s, ks)] = n
        lq = []

        def validate(sx):
            for ks in range(2):
                for m in range(2):
                    for h in range(2):
                        lq.append((wneed[(sx, ks)], 0, ("w", sx, ks, m, h)))
            for n in range(N):
                if seq[n][1] == sx:
                    lq.append((n, 1, ("x", n)))
            lq.sort(key=lambda z: (z[0], z[1]))

        def lds_ok(it, n):
            if it[2][0] == "x":
                return it[0] <= n + R - 2
            if it[2][0] == "r":
                return True
            _, sx, ks, m, h = it[2]
            prev = 2 * sx + ks - NW
            return prev < 0 or wlast[(prev // 2, prev % 2)] < n

        def lds_issue(it):
            lq.remove(it)
            if it[2][0] == "x":
                xread(it[2][1])
            elif it[2][0] == "r":
                _, bb, h = it[2]
                e.ldsop(f"ds_read_b64_tr_b16 {vr(self.outb + 4*bb + 2*h, 2)}, v{vWa+2} offset:{RED0 - XS - 2*STAGE + bb*2048 + h*512}", ("r", bb))
            else:
                wread(*it[2][1:])

        for _ in range(c.get("pad", 0) // 4):
            e("s_nop 0")
        self.stamp()
        e.wait(vm=[("d", 0)])
        e("s_barrier")
        self.stamp()
        validate(0)
        while lq[0][0] < D:
            lds_issue(lq[0])
        epi = []
        st = dict(m0=False, vslot=0, tn=0, tv=32, epi=0)
        done_units = 0

        def run_events():
            while vq and vq[0][0] == "event":
                vq.pop(0)[1]()

        def vm_issue():
            run_events()
            m0, f = vq.pop(0)
            m0 = None if m0 and m0.startswith("hguard") else m0
            if m0 and not st["m0"]:
                e(m0 + "\ns_nop 0")
            f()
            st["m0"] = False
            st["tn"] = max(st["tn"], e.t - 12 - 24) + st["tv"]
            run_events()

        def gap(n, isA):
            used = None
            st["vslot"] += 1
            head = lq[0] if lq and lds_ok(lq[0], n) else None
            backlog = (sum(1 for m0, _ in vq if m0 and m0.startswith("s_")) > 3 and n < 52) or n < bpos[c["fastto"]]
            tv = c["tback"] if backlog else (c["tdma"] if about_dma(vq) else (c["tw2a"] if st["epi"] < c["ua"] else c["tw2"]))
            st["tv"] = tv
            vm_ready = vq and (vq[0][0] is None or st["m0"] or (vq[0][0].startswith("hguard") and st["epi"] >= int(vq[0][0][6:]))) and e.t >= st["tn"]
            if head and head[0] - n <= c["crit"]:
                lds_issue(head)
                used = "l"
                if backlog and vm_ready:
                    vm_issue()
                    used = "v"
            elif vm_ready:
                vm_issue()
                used = "v"
            else:
                cand = [it for it in lq[:24] if lds_ok(it, n) and (it[2][0] in "wr" or it[0] - n <= D + (1 if isA else 0))]
                if cand:
                    lds_issue(cand[0])
                    used = "l"
            if used != "v" and vq and vq[0][0] and vq[0][0].startswith("s_") and not st["m0"]:
                e(vq[0][0])
                st["m0"] = True
            elif used != "v" and setup:
                for _ in range(1 if used else 2):
                    if setup:
                        it = setup.pop(0)
                        if not it.startswith("MARK"):
                            e(it)

        def pop_epi(budget):
            while epi and budget > 0:
                it = epi.pop(0)
                if callable(it):
                    it()
                    budget -= 2
                elif it[0] == "mark":
                    st["epi"] = it[1]
                    if c["stamps"] == 3 and it[1] in (3, 6, 9):
                        self.stamp()
                else:
                    e(it[1])
                    budget -= it[0]

        def store_pair(pr):
            def f():
                ob = self.outb + (pr & 1) * 4
                e(f"s_mov_b32 s{self.sHo}, {pr*2*49152}\ns_nop 0")
                e(f"v_permlane16_swap_b32 v{ob}, v{ob+2}\nv_permlane16_swap_b32 v{ob+1}, v{ob+3}")
                if 2 * pr + 1 >= NU:
                    e("s_mov_b32 exec_lo, 0xffff\ns_mov_b32 exec_hi, 0xffff")
                e.vmop(f"buffer_store_dwordx4 {vr(ob, 4)}, v{self.vHs}, {sr(self.srdH, 4)}, s{self.sHo} offen {c['stf']}", ("hst", pr))
                if 2 * pr + 1 >= NU:
                    e("s_mov_b64 exec, -1")
            return f

        def flag_item(pr, stage):
            return lambda: self.publish_h(pr, stage)

        def unit_done(u):
            epi.extend(self.epi_ops(u))
            epi.append(("mark", u + 1))
            if u % 2 == 1 or u == NU - 1:
                epi.append(store_pair(u // 2))
            if u == c["fA"]:
                epi.append(flag_item(1, 1))
            if u == c["fB"]:
                epi.append(flag_item(3, 2))
            if u == NU - 1 and c["fC"] < 0:
                epi.append(flag_item(4, 3))

        def mfma(n, m):
            u, s, ks = seq[n]
            a = self.acc + u * 8 + m * 4
            cin = "0" if (s == 0 and ks == 0) else vr(a, 4)
            if not (c.get("no_mfma") and s >= 1):
                e(f"v_mfma_f32_16x16x32_bf16 {vr(a, 4)}, {vr(wbuf(s, ks) + m*4, 4)}, {vr(self.xr + (n % R)*4, 4)}, {cin}")

        tail0 = last_use[0]
        e.wait(lds=[("x", 0), ("w", 0, 0)])
        for n in range(N):
            u, s, ks = seq[n]
            intail = n > tail0 + 2
            mfma(n, 0)
            bars = [sb for sb in range(1, 10) if bpos[sb] == n]
            if bars:
                sb, s0 = max(bars), min(bars)
                setup_upto(f"MARK{s0}:")
                while len([x for x in e.vm if x == ("d", sb)]) < 11:
                    vm_issue()
                rel = s0 + 2 <= 9
                e.wait(vm=[("d", sb)], lds_all=rel)
                e("s_barrier")
                if c["stamps"] == 2 or sb in (1, 5, 8, 9):
                    self.stamp()
                for sx in bars:
                    validate(sx)
                held = [it for it in vq if getattr(it[1], "__name__", "") in ("w2", "chkp", "chk0", "chk2")]
                vq[:] = [it for it in vq if it not in held]
                if s0 == c["w2at"] and not c.get("p1only"):
                    held = self.seam_queue()
                if s0 == 5:
                    self.tok_probe()
                if s0 == 6:
                    self.tok_check("L_tok")
                if rel:
                    dl = self.dma_list(s0 + 2)
                    if s0 == c["w2at"] and not c.get("p1only"):
                        dl.insert(11 - c["r1d"], ("event", lambda: self.r1probe[1]()))
                    vq += dl
                vq += held
            else:
                gap(n, False)
                if intail:
                    pop_epi(c.get("epiB", 4))
            mfma(n, 1)
            if n + 1 < N:
                u2, s2, ks2 = seq[n + 1]
                while lq and lq[0][0] <= n + 1:
                    assert lds_ok(lq[0], n + 1)
                    lds_issue(lq[0])
                e.wait(lds=[("x", n + 1), ("w", s2, ks2)])
            gap(n, True)
            while done_units < NU and last_use[done_units] + 2 <= n:
                unit_done(done_units)
                done_units += 1
            if intail:
                pop_epi(c.get("epiA", 4))
        self.stamp()
        if c.get("p1only"):
            self.write_stamps()
            e("s_endpgm")
        e("s_nop 3")
        while done_units < NU:
            unit_done(done_units)
            done_units += 1
        while epi:
            pop_epi(2)
            if vq and e.t - e.tv >= c["tw2"] - 12 and not (vq[0][0] or "").startswith(f"hguard{st['epi'] + 1}"):
                vm_issue()
        self.stamp()
        k = 0
        while vq and not c.get("p1only"):
            if k == c["fC"]:
                flag_item(4, 3)()
            vm_issue()
            k += 1
        assert k > c["fC"] or c.get("p1only")
        self.stamp()

    def phase2_setup(self):
        e = self.e
        c = self.c
        t, L = self.vT, self.vLane
        if not hasattr(self, "sM2"):
            self.sM2, self.sNb, self.sSoP = e.s(), e.s(), e.s()
            self.sU, self.sFo, self.sRow = e.s(4), e.s(4), e.s(4)
            self.vP, self.vHl, self.vFr, self.vFh = e.v(), e.v(), e.v(), e.v()
            self.vRw, self.vRa, self.vOa = (e.v() for _ in range(3))
            self.sSoH = e.s()
            self.sT4o = e.s()
            self.sFr = e.s()
        if c["map2"] == "8x4":
            e(f"s_and_b32 s{self.sM2}, s{self.sXcd}, 3\ns_lshl_b32 s{self.sM2}, s{self.sM2}, 3\ns_and_b32 s{self.sA}, s{self.sSlot}, 7\ns_add_u32 s{self.sM2}, s{self.sM2}, s{self.sA}")
            e(f"s_lshr_b32 s{self.sNb}, s{self.sXcd}, 2\ns_lshl_b32 s{self.sNb}, s{self.sNb}, 2\ns_lshr_b32 s{self.sA}, s{self.sSlot}, 3\ns_add_u32 s{self.sNb}, s{self.sNb}, s{self.sA}")
        else:
            e(f"s_lshl_b32 s{self.sM2}, s{self.sXcd}, 2\ns_and_b32 s{self.sA}, s{self.sSlot}, 3\ns_add_u32 s{self.sM2}, s{self.sM2}, s{self.sA}")
            e(f"s_lshr_b32 s{self.sNb}, s{self.sSlot}, 2")
        e(f"s_mul_i32 s{self.sA}, s{self.sWave}, 12288\nv_lshlrev_b32 v{t}, 4, v{L}\nv_add_u32 v{self.vHl}, s{self.sA}, v{t}")
        e(f"s_mul_i32 s{self.sB}, s{self.sNb}, {4*49152}\nv_add_u32 v{self.vP}, s{self.sB}, v{self.vHl}")
        e(f"v_min_u32 v{t}, 3, v{L}\nv_mul_u32_u24 v{self.vFr}, {c['fstr']}, v{t}\ns_lshl_b32 s{self.sFr}, s{self.sWave}, 9\ns_add_u32 s{self.sFr}, s{self.sFr}, {FR_OFF}")
        e(f"v_min_u32 v{t}, 5, v{L}\nv_mul_u32_u24 v{self.vFh}, {c['fstr']}, v{t}")
        for j in range(4):
            e(f"s_add_u32 s{self.sA}, s{self.sM2}, {32*j}")
            e(f"s_mul_i32 s{self.sB}, s{self.sA}, 205\ns_lshr_b32 s{self.sB}, s{self.sB}, 11")
            e(f"s_mul_i32 s{self.sC}, s{self.sB}, 10\ns_sub_u32 s{self.sC}, s{self.sA}, s{self.sC}")
            if j == 3:
                e(f"s_cmp_ge_u32 s{self.sA}, 119\ns_cselect_b32 s{self.sU+3}, 12, 11\ns_cselect_b32 s{self.sRow+3}, 9, 0")
                e(f"s_sub_u32 s{self.sRow+3}, s{self.sA}, s{self.sRow+3}\ns_sub_u32 s{self.sRow+3}, s{self.sRow+3}, 110")
                e(f"s_cmp_ge_u32 s{self.sA}, 110\ns_cselect_b32 s{self.sB}, s{self.sU+3}, s{self.sB}\ns_cselect_b32 s{self.sC}, s{self.sRow+3}, s{self.sC}")
            e(f"s_lshl_b32 s{self.sFo+j}, s{self.sC}, 2\ns_add_u32 s{self.sFo+j}, s{self.sFo+j}, s{self.sWave}\ns_lshl_b32 s{self.sFo+j}, s{self.sFo+j}, 10")
            e(f"s_mul_i32 s{self.sC}, s{self.sC}, 13\ns_add_u32 s{self.sC}, s{self.sC}, s{self.sB}")
            e(f"s_mul_i32 s{self.sU+j}, s{self.sC}, {0 if c.get('hsame') else 49152}\ns_mul_i32 s{self.sRow+j}, s{self.sC}, 20480")
        e(f"v_lshrrev_b32 v{t}, 4, v{L}\nv_and_b32 v{t+1}, 15, v{L}\nv_mul_u32_u24 v{t+1}, {RST}, v{t+1}\nv_lshl_add_u32 v{t}, v{t}, 4, v{t+1}")
        e(f"s_mul_i32 s{self.sA}, s{self.sWave}, {SST}\nv_add_u32 v{self.vRw}, s{self.sA}, v{t}")
        e(f"v_min_u32 v{t}, 39, v{L}\nv_mul_u32_u24 v{t+1}, 26, v{t}\nv_lshrrev_b32 v{t+1}, 8, v{t+1}\nv_mul_u32_u24 v{t+2}, 10, v{t+1}\nv_sub_u32 v{t}, v{t}, v{t+2}")
        e(f"s_lshl_b32 s{self.sA}, s{self.sWave}, 2\nv_add_u32 v{t+1}, s{self.sA}, v{t+1}")
        e(f"v_mul_u32_u24 v{self.vRa}, {RST}, v{t+1}\nv_lshl_add_u32 v{self.vRa}, v{t}, 5, v{self.vRa}")
        e(f"v_mul_u32_u24 v{t+1}, 1280, v{t+1}\nv_lshl_add_u32 v{t+1}, v{t}, 4, v{t+1}")
        e(f"s_lshl_b32 s{self.sA}, s{self.sNb}, 7\ns_lshl_b32 s{self.sB}, s{self.sNb}, 5\ns_add_u32 s{self.sB}, s{self.sB}, 896")
        e(f"v_mov_b32 v{t+2}, s{self.sA}\nv_mov_b32 v{t+3}, s{self.sB}\nv_cmp_lt_u32 vcc, 7, v{t}\ns_nop 1\nv_cndmask_b32 v{t+2}, v{t+2}, v{t+3}, vcc")
        e(f"v_add_u32 v{self.vOa}, v{t+1}, v{t+2}")
        e(f"s_mul_i32 s{self.sT4o}, s{self.sNb}, {-3*49152}\ns_add_u32 s{self.sT4o}, s{self.sT4o}, {32*49152}")

    def w2p_list(self):
        e = self.e
        out = []
        for g in range(3):
            for tt in range(5):
                for k4 in range(4):
                    ks = g * 4 + k4

                    def w2(tt=tt, ks=ks, g=g, k4=k4):
                        assert g + 1 in self.rchecked and not self.c["grot"]
                        if k4 == 0:
                            e(f"s_add_u32 s{self.sSoP}, s{self.sT4o}, {g*4096}" if tt == 4 else f"s_mov_b32 s{self.sSoP}, {tt*49152 + g*4096}")
                        e.vmop(f"buffer_load_dwordx4 {ar((tt*12 + ks)*4, 4)}, v{self.vP}, {sr(self.srdP, 4)}, s{self.sSoP} offen offset:{k4*1024} {self.c['ldf']}", ("p", tt, ks))
                    out.append(w2)
        return out

    def hload(self, i):
        e = self.e
        j, ks = divmod(i, 12)
        assert j in self.checked, f"slot {j} loaded before its flags were checked"
        if ks % 4 == 0 and self.hprep != i:
            self.hprep_emit(i)
        e.vmop(f"buffer_load_dwordx4 {vr(self.hr + (i % self.c['HR'])*4, 4)}, v{self.vHl}, {sr(self.srdH, 4)}, s{self.sSoH} offen offset:{(ks & 3)*1024} {self.c['ldf']}", ("h", i))

    def hprep_emit(self, i):
        j, ks = divmod(i, 12)
        self.e(f"s_add_u32 s{self.sSoH}, s{self.sU+j}, {(ks >> 2)*4096}")
        self.hprep = i

    def pollh(self, j):
        self.polled.add(j)
        self.probe(self.sFo + j, j * FSTAGE, 6)

    def checkh(self, j, sfx=""):
        assert j in self.polled
        self.checked.add(j)
        self.probe_check(f"L_ph{j}{sfx}", self.vFh, self.sFo + j, j * FSTAGE, 6)

    def seam_queue(self, sfx=""):
        e = self.e
        c = self.c
        self.hr = self.acc

        self.polled = set()
        self.checked = set()
        self.rchecked = set()
        self.hprep = -1
        self.post = []

        def rpoll(k):
            def chkp():
                self.probe(self.sFr, (k - 1) * 2048, 4)

            def chk2():
                self.probe_check(f"L_pr{k}" + sfx, self.vFr, self.sFr, (k - 1) * 2048, 4)
                self.rchecked.add(k)
                if k == 1:
                    self.stamp()
            return ("event", chkp), ("event", chk2)
        self.r1probe, c1 = rpoll(1)
        q = [c1]
        w2l = [(None, f) for f in self.w2p_list()]
        p2, c2 = rpoll(2)
        p3, c3 = rpoll(3)
        rd, hf, pd = c["rpd"], c["hfirst"], c["pd0"]

        def chkp():
            self.pollh(0)
        ph0 = ("event", chkp)

        def chk0():
            if c["await"]:
                e("s_waitcnt lgkmcnt(0)")
                e.lds_done = len(e.lds)
            self.checkh(0, sfx)
            if not sfx:
                self.stamp()
        hl = []
        for i in range(c["PF"]):
            def w2(i=i):
                self.hload(i)
            hl.append((f"hguard{i // 2 + 1}", w2))
            if i + 1 == c["pollks"]:
                def chkp():
                    self.pollh(1)
                hl.append(("event", chkp))
        q += w2l[:20-rd] + [p2] + w2l[20-rd:20] + [c2]
        if c["g2late"]:
            hl = [it for it in hl if it[0] != "event"]
            q += w2l[20:40-pd] + [ph0] + w2l[40-pd:40] + [("event", chk0), p3] + hl[:c["g2late"]] + [c3]
            hl, rest = hl[c["g2late"]:], w2l[40:]

            def chkp():
                self.pollh(1)
            k = len(rest) - c["inp2"]
            self.post = [f for _, f in rest[k:]]
            rest = rest[:k]
            rest.insert(min(c["bpos"], len(rest)), ("event", chkp))
        else:
            assert hf >= 40
            q += w2l[20:40-rd] + [p3] + w2l[40-rd:40] + [c3] + w2l[40:hf] + [ph0] + w2l[hf:hf+pd] + [("event", chk0)]
            rest = w2l[hf+pd:]
        for it in hl:
            q.append(it)
            q += rest[:c["wper"]]
            rest = rest[c["wper"]:]
        return q + rest

    def phase2_main(self):
        e = self.e
        c = self.c
        HR, PF = c["HR"], c["PF"]
        assert PF < 12 and HR <= 16
        hr = self.hr
        acc = self.wf
        ra, rb, obase = self.xr, self.xr + 16, self.acc + 64
        self.vRwH, self.vRaH = self.xr + 36, self.xr + 37
        stores = []
        seq = [(j, ks) for j in range(4) for ks in range(12)]
        hload, pollh, checkh = self.hload, self.pollh, self.checkh
        hn = PF
        post = list(self.post)
        side = []

        def red_write(j, tt):
            e.ldsop(f"ds_write_b128 v{self.vRw if j & 1 else self.vRwH}, {vr(acc + (j & 1)*20 + tt*4, 4)} offset:{tt*TST}", ("rw", j))

        def reduce_items(j, last):
            ob = obase + 4 * j
            va = self.vRa if j & 1 else self.vRaH
            it = []
            for tt in range(4 if last else 0, 5):
                it.append(lambda tt=tt: red_write(j, tt))
                if not last and c["wspace"]:
                    it.append(None)
            if not last:
                it += [None] * 2

            def bar():
                e.wait(lds=[("rw", j)])
                e("s_barrier")
            it.append(bar)
            for src in range(4):
                for h, base in enumerate((ra, rb)):
                    def rd(src=src, h=h, base=base):
                        e.ldsop(f"ds_read_b128 {vr(base + src*4, 4)}, v{va} offset:{src*SST + h*16}", ("rr", j, h, src))
                    rd.isread = True
                    it.append(rd)
            if not last:
                it += [None] * 4
            for src in range(1, 4):
                for h, base in enumerate((ra, rb)):
                    for half in range(2):
                        def ad(h=h, base=base, src=src, half=half):
                            e.wait(lds=[("rr", j, h, src)])
                            for i2 in (2 * half, 2 * half + 1):
                                e(f"v_add_f32 v{base+i2}, v{base+i2}, v{base+src*4+i2}")
                        it.append(ad)

            def sto():
                e("s_mov_b32 exec_hi, 0xff")
                e.vmop(f"buffer_store_dwordx4 {vr(ob, 4)}, v{self.vOa}, {sr(self.srdOut, 4)}, s{self.sRow+j} offen {c['outflags'] if j < 3 else c.get('outlast', c['outflags'])}", ("o", j))
                e("s_mov_b32 exec_hi, -1")
            for h, base in enumerate((ra, rb)):
                def cvt(h=h, base=base):
                    e(f"v_cvt_pk_bf16_f32 v{ob+2*h}, v{base}, v{base+1}\nv_cvt_pk_bf16_f32 v{ob+2*h+1}, v{base+2}, v{base+3}")
                    if h:
                        stores.append(sto)
                it.append(cvt)
            return it
        e(f"v_add_u32 v{self.vRwH}, {RED0}, v{self.vRw}\nv_add_u32 v{self.vRaH}, {RED0}, v{self.vRa}")
        e.wait(vm=[("h", 0)] + [("p", tt, 0) for tt in range(5)])
        self.stamp()
        CH = c["chain"]
        published = False
        order = [(i0 + k, tt) for i0 in range(0, 44, CH) for tt in range(5) for k in range(CH)]
        for pos, (im, tm) in enumerate(order):
            i, tt = divmod(pos, 5)
            j, ks = seq[i]
            jm, km = seq[im]
            a = acc + (jm & 1) * 20 + tm * 4
            e.wait(vm=[("h", im), ("p", tm, km)])
            e(f"v_mfma_f32_16x16x32_bf16 {vr(a, 4)}, {ar((tm*12 + km)*4, 4)}, {vr(hr + (im % HR)*4, 4)}, {'0' if km == 0 else vr(a, 4)}")
            rt = (tt - c["gsh"]) % 5
            reads_left = any(it is not None and getattr(it, "isread", False) for it in side)
            if rt == 0 and hn < 48:
                hload(hn)
                hn += 1
            elif rt in (2, 3) and post:
                post.pop(0)()
            elif rt == 0 and stores:
                stores.pop(0)()
            elif rt == 3 and i == c["fD"]:
                self.publish_h(6, 4)
                published = True
            elif rt == 2 and hn < 48 and seq[hn][1] >= c['pollks'] and seq[hn][0] < 3 and seq[hn][0] + 1 not in self.polled and not reads_left:
                e.wait(lds_all=True)
                pollh(seq[hn][0] + 1)
            elif rt == 1 and hn < 48 and seq[hn][1] == 0:
                checkh(seq[hn][0])
            else:
                if side and ks >= 1:
                    it = side.pop(0)
                    if it:
                        it()
                if rt == 2 and hn < 48 and hn % 4 == 0 and self.hprep != hn:
                    self.hprep_emit(hn)
            if ks == 11 and tt == 4:
                if c["stamps"] == 3 and j < 3:
                    self.stamp()
                assert not side, len(side)
                side = reduce_items(j, False)
        assert HR >= PF + CH + 1 and published
        for tt in range(5):
            for i in range(44, 48):
                a = acc + 20 + tt * 4
                if tt == 0:
                    e.wait(vm=[("h", i)])
                e(f"v_mfma_f32_16x16x32_bf16 {vr(a, 4)}, {ar((tt*12 + i - 36)*4, 4)}, {vr(hr + (i % HR)*4, 4)}, {vr(a, 4)}")
                if tt >= 2 and i == 46:
                    red_write(3, tt - 2)
                elif side:
                    it = side.pop(0)
                    if it:
                        it()
                elif stores:
                    stores.pop(0)()
        assert not side
        self.stamp()
        e("s_nop 3")
        red_write(3, 3)
        e("s_nop 2")
        side = reduce_items(3, True)
        for k, it in enumerate(side):
            if it:
                it()
            if stores:
                stores.pop(0)()
        if c["stamps"] or c.get("ms") is not None:
            self.stamp()
            e.wait(vm_all=True)
            self.stamp()

    def repack(self):
        e = self.e
        c = self.c
        t, L = self.vT, self.vLane
        sR, sLo, sSt = e.s(), e.s(8), e.s(8)
        vD, vR, vS = e.v(4), e.v(4), e.v(4)
        F = e.v(32, 4)
        if c["klate"]:
            self.late_kernargs()
        self.srd_const(self.srdD, 256)
        e(f"s_lshl_b32 s{sR}, s{self.sXcd}, 1\ns_add_u32 s{sR}, s{sR}, s{self.sSlot}\ns_sub_u32 s{sR}, s{sR}, 30")
        e(f"s_lshr_b32 s{self.sB}, s{sR}, 2\ns_mul_i32 s{self.sB}, s{self.sB}, 384")
        e(f"v_lshrrev_b32 v{t}, 3, v{L}\nv_add_u32 v{t}, s{self.sB}, v{t}\nv_mul_u32_u24 v{vD}, 1280, v{t}")
        e(f"v_bfe_u32 v{t}, v{L}, 4, 1\nv_lshlrev_b32 v{t}, 1, v{t}")
        e(f"v_and_b32 v{t+1}, 7, v{L}\nv_xor_b32 v{t}, v{t}, v{t+1}\nv_lshl_add_u32 v{vD}, v{t}, 4, v{vD}")
        e(f"v_xor_b32 v{t}, 64, v{vD}")
        for p in range(1, 4):
            e(f"v_add_u32 v{vD+p}, {p*(10240 - 1024)}, v{vD if p % 2 == 0 else t}")
        e(f"s_and_b32 s{self.sFl}, s{sR}, 3\ns_lshl_b32 s{self.sFl}, s{self.sFl}, 2\ns_add_u32 s{self.sFl}, s{self.sFl}, s{self.sWave}")

        def offs(i):
            e(f"s_add_u32 s{self.sA}, s{self.sFl}, {16*i}\ns_mul_i32 s{self.sB}, s{self.sA}, 205\ns_lshr_b32 s{self.sB}, s{self.sB}, 11")
            e(f"s_mul_i32 s{self.sC}, s{self.sB}, 10\ns_sub_u32 s{self.sC}, s{self.sA}, s{self.sC}")
            e(f"s_mul_i32 s{sLo+i}, s{self.sB}, 40960\ns_lshl_b32 s{self.sSpin}, s{self.sC}, 7\ns_add_u32 s{sLo+i}, s{sLo+i}, s{self.sSpin}")
            e(f"s_mul_i32 s{sSt+i}, s{self.sC}, {4*49152}\ns_lshl_b32 s{self.sSpin}, s{self.sB}, 10\ns_add_u32 s{sSt+i}, s{sSt+i}, s{self.sSpin}")
            if i == 7:
                e(f"s_cmp_ge_u32 s{self.sA}, 120\ns_cselect_b32 s{sLo+i}, 0x40000000, s{sLo+i}\ns_cselect_b32 s{sSt+i}, 0x40000000, s{sSt+i}")
        AH = c["rah"]
        for i in range(AH):
            offs(i)
        sM = e.s()
        e(f"s_lshl_b32 s{sM}, s{self.sWave}, 15")
        self.after_kernarg("s")
        self.late_srds()

        def loads(i):
            e(f"s_add_u32 m0, s{sM}, {i*4096}\ns_nop 0")
            for p in range(4):
                e.vmop(f"buffer_load_dwordx4 v{vD+p}, {sr(self.srdW2, 4)}, s{sLo+i} offen offset:{p*1024} lds", ("rp", i))
        for i in range(AH):
            loads(i)
        for i in range(AH, 8):
            offs(i)
        self.tr_lane_addr(vR, 2048, 1024, None)
        e(f"v_add_u32 v{vR}, s{sM}, v{vR}")
        for sub in range(1, 4):
            e(f"v_xor_b32 v{vR+sub}, {sub*32}, v{vR}")
        e(f"s_lshr_b32 s{self.sB}, s{sR}, 2\ns_mul_i32 s{self.sB}, s{self.sB}, 12288\nv_lshlrev_b32 v{vS}, 4, v{L}\nv_add_u32 v{vS}, s{self.sB}, v{vS}")
        for sub in range(1, 4):
            e(f"v_add_u32 v{vS+sub}, {sub*49152}, v{vS}")
        e(f"s_lshr_b32 s{self.sA}, s{sR}, 2\ns_lshl_b32 s{self.sA}, s{self.sA}, 9\ns_and_b32 s{self.sFl}, s{sR}, 3\ns_mul_i32 s{self.sFl}, s{self.sFl}, {c['fstr']}")
        e(f"s_add_u32 s{self.sFl}, s{self.sFl}, s{self.sA}\ns_add_u32 s{self.sFl}, s{self.sFl}, {FR_OFF}")
        for i in range(8):
            fb = F + (i & 1) * 16
            e.wait(vm=[("rp", i)])
            for sub in range(4):
                for h in range(2):
                    e.ldsop(f"ds_read_b64_tr_b16 {vr(fb + 4*sub + 2*h, 2)}, v{vR+sub} offset:{i*4096 + h*512}", ("rr", i, sub))
            if i + AH < 8:
                loads(i + AH)
            if i == 1:
                self.tok_probe()
            for sub in range(4):
                e.wait(lds=[("rr", i, sub)])
                e.vmop(f"buffer_store_dwordx4 {vr(fb + 4*sub, 4)}, v{vS+sub}, {sr(self.srdP, 4)}, s{sSt+i} offen {c['stf']}", ("rst", i))
            if i in (2 + c["rlag"], 4 + c["rlag"]):
                e.wait(vm=[("rst", i - c["rlag"])])
                if i == 2 + c["rlag"]:
                    e("s_waitcnt lgkmcnt(0)")
                    self.tok_check("L_tok2")
                e("s_barrier")
                self.publish(f"L_r{i}", self.sFl)
                e(f"s_add_u32 s{self.sFl}, s{self.sFl}, 2048")
                self.stamp()
        self.phase2_setup()
        e.wait(vm_all=True)
        e("s_barrier")
        self.publish("L_rlast", self.sFl)
        self.stamp()

    def build(self):
        e = self.e
        c = self.c
        head = HEADER + f"; @launch grid=(256,1,1) block=(256,1,1) lds={LDS_TOTAL}\n"
        self.prologue()
        mark = len(e.L)
        self.phase2_setup()
        del e.L[mark:]
        vmark, smark = e.vnext, e.snext
        self.sPr = (smark + 3) // 4 * 4
        e(f"s_cmp_ge_u32 s{self.sSlot}, 30\ns_cbranch_scc1 L_spare")
        self.phase1_setup()
        self.after_kernarg("w")
        self.srd_adj(self.srdW3, -2048)
        self.phase1_main()
        e("L_join:")
        if not c.get("p1only"):
            self.phase2_main()
            self.write_stamps()
        e(f"L_end_{KN}:\ns_endpgm")
        e("L_spare:")
        self.in_spare = True
        e.reset_counts()
        if c.get("p1only") == 2:
            e("s_endpgm")
        e.vnext, e.snext = vmark, smark
        self.repack()
        if c.get("p1only"):
            e("s_endpgm")
        e(f"s_mov_b32 s{self.sFl}, {FR_OFF + 16384}")
        sq = self.seam_queue("s")
        self.r1probe[1]()
        for _, f in sq:
            f()
        e("s_waitcnt vmcnt(0)")
        e("s_branch L_join")
        e("\n".join(self.cold))
        e("L_codeend:")
        body = "\n".join(e.L)
        kd = f""".section .rodata,"a"
.p2align 6
.amdhsa_kernel {KN}
  .amdhsa_next_free_vgpr 512
  .amdhsa_next_free_sgpr 102
  .amdhsa_accum_offset 256
  .amdhsa_group_segment_fixed_size 0
  .amdhsa_kernarg_size 56
  .amdhsa_user_sgpr_count 2
  .amdhsa_user_sgpr_kernarg_segment_ptr 1
  .amdhsa_system_sgpr_workgroup_id_x 1
  .amdhsa_float_denorm_mode_32 3
.end_amdhsa_kernel
"""
        return head + '.amdgcn_target "amdgcn-amd-amdhsa--gfx950"\n.text\n' + body + "\n" + kd


def about_dma(vq):
    return bool(vq) and getattr(vq[0][1], "__name__", "") != "w2"


def parse_kw(args):
    kw = {}
    for a in args:
        k, v = a.split("=", 1)
        try:
            v = eval(v)
        except Exception:
            pass
        kw[k] = v
    return kw


if __name__ == "__main__":
    out = sys.argv[1]
    open(out, "w").write(Gen(**parse_kw(sys.argv[2:])).build())
```

```python
import sys

NAME = "standalone__glu_gated_swiglu__prompt"
KN = NAME + "_kernel"

X_BYTES = 2048 * 640 * 2
W_BYTES = 640 * 1536 * 2
OUT_BYTES = 2048 * 640 * 2
H_BYTES = 128 * 49152
W2P_OFF = 8 << 20
W2P_BYTES = 40 * 49152
FLAG_OFF = 12 << 20
FLAG_BYTES = 262144
FR_OFF = 196608
FSTAGE = 40960
STAMP_OFF = 16 << 20

NU = 13
XS = NU * 2048
STAGE = XS + 16384
NSTAGE = 3
RED0 = NSTAGE * STAGE
TST = 64
RST = 336
SST = 16 * RST
REDSZ = 4 * SST
LDS_TOTAL = RED0 + REDSZ

HEADER = """; Kernarg layout for this problem (56 bytes, ptrs only, base s[0:1]):
;   offset  24: d_in[3] w2  shape=(1536, 640) dtype=bfloat16 strides=(1280, 2) contiguous=True
"""


class Em:
    def __init__(self):
        self.L = []
        self.reset_counts()
        self.vnext = 1
        self.snext = 4
        self.skip = lambda kind, tag: False
        self.t = self.tm = self.tv = 0

    def __call__(self, s):
        for line in s.split("\n"):
            line = line.strip()
            if line:
                self.L.append(line if line.endswith(":") else "    " + line)
                self.tick(line)

    def tick(self, line):
        op = line.split(" ")[0]
        if op.startswith("v_mfma"):
            self.t = max(self.t, self.tm + 16)
            self.tm = self.t
            self.t += 4
        elif op.startswith("v_"):
            self.t = max(self.t, self.tm + 8) + (8 if op.startswith(("v_exp", "v_rcp", "v_perm")) else 4)
        elif op.startswith(("buffer", "global")):
            self.t += 12
            self.tv = self.t
        elif op.startswith("ds_write"):
            self.t += 16
        elif op.startswith(("s_waitcnt", "s_nop")) or op.endswith(":"):
            self.t += 1
        else:
            self.t += 4

    def v(self, n=1, align=1):
        b = (self.vnext + align - 1) // align * align
        self.vnext = b + n
        assert self.vnext <= 256, "out of arch VGPRs"
        return b

    def s(self, n=1, align=1):
        b = (self.snext + align - 1) // align * align
        self.snext = b + n
        assert self.snext <= 102, "out of SGPRs"
        return b

    def ldsop(self, txt, tag=None):
        if not self.skip("lds", tag):
            self(txt)
        self.lds.append(tag)

    def vmop(self, txt, tag=None):
        if not self.skip("vm", tag):
            self(txt)
        self.vm.append(tag)

    def _need(self, ops, tags):
        idx = -1
        for t in tags:
            c = [i for i, x in enumerate(ops) if x == t]
            assert c, f"tag {t} never issued"
            idx = max(idx, c[-1])
        return idx + 1

    def wait(self, lds=(), vm=(), lds_all=False, vm_all=False):
        parts = []
        n = len(self.vm) if vm_all else (self._need(self.vm, vm) if vm else 0)
        if n > self.vm_done:
            cnt = min(len(self.vm) - n, 63)
            parts.append(f"vmcnt({cnt})")
            self.vm_done = len(self.vm) - cnt
        n = len(self.lds) if lds_all else (self._need(self.lds, lds) if lds else 0)
        if n > self.lds_done:
            cnt = min(len(self.lds) - n, 15)
            parts.append(f"lgkmcnt({cnt})")
            self.lds_done = len(self.lds) - cnt
        if parts:
            self("s_waitcnt " + " ".join(parts))

    def reset_counts(self):
        self.lds, self.vm, self.lds_done, self.vm_done = [], [], 0, 0


def vr(b, n):
    return f"v[{b}:{b+n-1}]" if n > 1 else f"v{b}"


def ar(b, n):
    return f"a[{b}:{b+n-1}]"


def sr(b, n):
    return f"s[{b}:{b+n-1}]" if n > 1 else f"s{b}"


DEF = dict(D=9, E=2, stamps=False, G=5, lead=1, xm=0, map2="8x4", stf="sc1", ldf="sc1", codepf="dist", outflags="sc1",
           npre=20, pre0=11, tail=13, PF=9, HR=12, pollks=5, fA=6, fB=10, fC=-1, fD=1, align=12,
           tback=48, tdma=66, tw2=90, crit=3, rpv=1, rpos=0, rpub=3, rsk=8, l2pf=0, w2at=7, sleep=8, grot=0, wspace=1, ssleep=8, rah=3, rlag=1, rpd=8, r1d=7, fstr=4, tw2a=60, ua=2, g2late=0, bpos=12, chain=2, gsh=1, xlate=0, klate=0, tdma9=66, await2=0, g0=1, lead0=1, lsh=0, inp2=0, wper=2, cpf=None, fastto=1, spf=(2, 3, 4), hfirst=44, pd0=10, epiA=4, epiB=4)


class Gen:
    def __init__(self, **kw):
        self.c = dict(DEF)
        self.c["await"] = 1
        self.c.update(kw)
        self.e = Em()
        c = self.c

        def skip(kind, tag):
            if kind == "vm" and tag in c.get("skipvm", ()):
                return True
            if not isinstance(tag, tuple):
                return False
            if kind == "vm" and tag[0] in c.get("skipvm", ()):
                return True
            if c.get("nohst") and kind == "vm" and tag[0] == "hst":
                return True
            if c.get("no_dma") and kind == "vm" and tag[0] == "d" and tag[1] >= 3:
                return True
            if c.get("no_xread") and kind == "lds" and tag[0] == "x" and tag[1] >= 26:
                return True
            return False
        self.e.skip = skip
        self.nstamp = 0
        self.cold = []

    def stamp(self):
        e = self.e
        if self.c.get("ms") is not None:
            if self.nstamp + (100 if getattr(self, "in_spare", False) else 0) == self.c["ms"]:
                e("s_memrealtime s[98:99]")
            self.nstamp += 1
            return
        if not self.c["stamps"]:
            return
        i = self.nstamp
        self.nstamp += 1
        if self.c["stamps"] == 9 and i != 30:
            return
        assert i < 31
        e(f"s_memtime {sr(self.sT, 2)}\ns_memrealtime {sr(self.sT3, 2)}")
        e("s_waitcnt lgkmcnt(0)")
        e.lds_done = len(e.lds)
        e(f"v_writelane_b32 v{self.vStamp}, s{self.sT}, {i}\nv_writelane_b32 v{self.vStamp}, s{self.sT3}, {32 + i}")

    def write_stamps(self):
        e = self.e
        if self.c.get("ms") is not None:
            e("s_waitcnt lgkmcnt(0)\nL_dly:\ns_memrealtime s[100:101]\ns_waitcnt lgkmcnt(0)\ns_sub_u32 s100, s100, s98\ns_cmp_lt_u32 s100, 3000\ns_cbranch_scc1 L_dly")
            return
        if not self.c["stamps"]:
            return
        keep = self.nstamp
        self.nstamp = 30
        self.stamp()
        self.nstamp = keep
        e(f"s_lshl_b32 s{self.sT}, s2, 2\ns_add_u32 s{self.sT}, s{self.sT}, s{self.sWave}\ns_lshl_b32 s{self.sT}, s{self.sT}, 8")
        e(f"s_add_u32 s{self.sT}, s{self.sT}, {STAMP_OFF}")
        e(f"v_lshlrev_b32 v{self.vT}, 2, v{self.vLane}\nv_add_u32 v{self.vT}, s{self.sT}, v{self.vT}")
        e(f"s_mov_b32 s{self.srdH+2}, 0x10000000")
        e(f"buffer_store_dword v{self.vStamp}, v{self.vT}, {sr(self.srdH, 4)}, 0 offen")
        e("s_waitcnt vmcnt(0)")

    def srd_adj(self, dst, addoff):
        e = self.e
        if addoff > 0:
            e(f"s_add_u32 s{dst}, s{dst}, {addoff}\ns_addc_u32 s{dst+1}, s{dst+1}, 0")
        else:
            e(f"s_sub_u32 s{dst}, s{dst}, {-addoff}\ns_subb_u32 s{dst+1}, s{dst+1}, 0")

    def srd_const(self, dst, nbytes):
        self.e(f"s_mov_b32 s{dst+2}, {nbytes}\ns_mov_b32 s{dst+3}, 0x20000")

    def tr_lane_addr(self, dst, qstride_hi, qstride_lo, sub):
        e = self.e
        t, L = self.vT, self.vLane
        e(f"v_bfe_u32 v{t}, v{L}, 5, 1\nv_mul_u32_u24 v{dst}, {qstride_hi}, v{t}")
        e(f"v_bfe_u32 v{t}, v{L}, 4, 1\nv_mul_u32_u24 v{t+1}, {qstride_lo}, v{t}\nv_add_u32 v{dst}, v{dst}, v{t+1}")
        e(f"v_lshlrev_b32 v{t+1}, 2, v{t}")
        e(f"v_bfe_u32 v{t}, v{L}, 3, 1\nv_lshl_add_u32 v{t+1}, v{t}, 1, v{t+1}")
        e(f"v_bfe_u32 v{t}, v{L}, 1, 1")
        if sub is not None:
            e(f"s_lshl_b32 s{self.sA}, s{sub}, 1\nv_add_u32 v{t}, s{self.sA}, v{t}")
        e(f"v_xor_b32 v{t}, v{t}, v{t+1}\nv_lshl_add_u32 v{dst}, v{t}, 4, v{dst}")
        e(f"v_bfe_u32 v{t}, v{L}, 2, 2\nv_lshl_add_u32 v{dst}, v{t}, 7, v{dst}")
        e(f"v_and_b32 v{t}, 1, v{L}\nv_lshl_add_u32 v{dst}, v{t}, 3, v{dst}")

    def spin(self, label, load, check):
        e = self.e
        if self.c.get("nocheck"):
            return
        check()
        e(f"s_cbranch_vccz {label}_out")
        e(f"s_mov_b32 s{self.sSpin}, 0x40000")
        e(f"{label}_spin:")
        e(f"s_sleep {self.c['ssleep'] if label.endswith('s') else self.c['sleep']}")
        e(load)
        e("s_waitcnt vmcnt(0)")
        check()
        e(f"s_cbranch_vccz {label}_out")
        e(f"s_sub_u32 s{self.sSpin}, s{self.sSpin}, 1\ns_cbranch_scc0 {label}_spin")
        e(f"{label}_out:")

    def tok_probe(self):
        self.e(f"s_buffer_load_dword s{self.sTok}, {sr(self.srdD, 4)}, 0")

    def tok_check(self, label):
        e = self.e
        e(f"s_cmp_eq_u32 s{self.sTok}, 0\ns_cbranch_scc1 {label}_slow\n{label}_ok:")
        e(f"v_mov_b32 v{self.vTok}, s{self.sTok}\ns_mov_b32 s{self.sTok+1}, s{self.sTok}")
        self.cold += [f"{label}_slow:", f"s_mov_b32 s{self.sSpin}, 0x40000", f"{label}_spin:",
                      f"buffer_load_dword v{self.vTok}, off, {sr(self.srdD, 4)}, 0 sc1", "s_waitcnt vmcnt(0)",
                      f"v_readfirstlane_b32 s{self.sTok}, v{self.vTok}", "s_nop 3", f"s_cmp_lg_u32 s{self.sTok}, 0", f"s_cbranch_scc1 {label}_ok",
                      "s_sleep 2", f"s_sub_u32 s{self.sSpin}, s{self.sSpin}, 1", f"s_cbranch_scc0 {label}_spin", f"s_branch {label}_ok"]

    def probe(self, soff, imm, n):
        e = self.e
        if ("probe",)[0] in self.c.get("skipvm", ()):
            return
        for i in range(0, n, 2):
            e(f"s_mov_b64 {sr(self.sPr+i, 2)}, 0")
        if self.c["fstr"] == 4:
            w = 8 if n > 4 else 4
            e(f"s_buffer_load_dwordx{w} {sr(self.sPr, w)}, {sr(self.srdF, 4)}, s{soff} offset:{imm}")
            return
        for i in range(n):
            e(f"s_buffer_load_dword s{self.sPr+i}, {sr(self.srdF, 4)}, s{soff} offset:{imm + self.c['fstr']*i}")

    def probe_check(self, label, vaddr, soff, imm, n):
        e = self.e
        if self.c.get("nocheck"):
            return

        for i in range(0, n, 2):
            e(f"s_cmp_eq_u64 {sr(self.sPr+i, 2)}, {sr(self.sTok, 2)}\ns_cbranch_scc0 {label}_slow")
        e(f"{label}_out:")
        k = [f"{label}_slow:", "s_waitcnt lgkmcnt(0)"]
        ident = ["L_pr1", "L_pr2", "L_pr3", "L_ph0", "L_ph1", "L_ph2", "L_ph3"].index(label.rstrip("s"))
        if self.c["stamps"] == 9:
            k.append(f"v_writelane_b32 v{self.vStamp}, 1, {2*ident + 1}")
        for i in range(0, n, 2):
            k += [f"s_cmp_eq_u64 {sr(self.sPr+i, 2)}, {sr(self.sTok, 2)}", f"s_cbranch_scc0 {label}_vec" if i + 2 < n else f"s_cbranch_scc1 {label}_out"]
        k += [f"{label}_vec:"] + ([f"v_writelane_b32 v{self.vStamp}, 1, {2*ident + 2}"] if self.c["stamps"] == 9 else [])
        k += [f"s_add_u32 s{self.sA}, s{soff}, {imm}", f"s_mov_b32 s{self.sSpin}, 0x40000", f"{label}_spin:",
              f"buffer_load_dword v{self.vPoll}, v{vaddr}, {sr(self.srdF, 4)}, s{self.sA} offen sc1", "s_waitcnt vmcnt(0)",
              f"v_cmp_ne_u32 vcc, v{self.vPoll}, v{self.vTok}", f"s_cbranch_vccz {label}_out",
              f"s_sleep {self.c['ssleep'] if label.endswith('s') else self.c['sleep']}",
              f"s_sub_u32 s{self.sSpin}, s{self.sSpin}, 1", f"s_cbranch_scc0 {label}_spin", f"s_branch {label}_out"]
        self.cold += k

    def publish(self, label, sreg, srd=None, cond=None):
        e = self.e
        if self.c.get("noflag"):
            return
        e(f"s_cmp_lg_u32 s{self.sWave if cond is None else cond}, 0\ns_cbranch_scc1 {label}")
        e(f"s_mov_b64 exec, 1\nbuffer_store_dword v{self.vTok}, off, {sr(self.srdF if srd is None else srd, 4)}, s{sreg} sc1\ns_mov_b64 exec, -1")
        e(f"{label}:")

    def publish_h(self, pr, stage):
        e = self.e
        e.wait(vm=[("hst", pr)])
        e("s_barrier")
        self.publish(f"L_pub{stage}", self.sFl)
        if stage < 4:
            e(f"s_add_u32 s{self.sFl}, s{self.sFl}, {FSTAGE}")

    def prologue(self):
        e = self.e
        c = self.c
        e(f".globl {KN}\n.p2align {c['align']}\n.type {KN},@function\n{KN}:")
        self.srdX, self.srdW1, self.srdW3, self.srdW2 = (e.s(4, 4) for _ in range(4))
        self.srdOut, self.srdH, self.srdP, self.srdD, self.srdF = (e.s(4, 4) for _ in range(5))
        self.sT, self.sT2 = e.s(2, 2), e.s(2, 2)
        self.sWave, self.sXcd, self.sSlot = e.s(), e.s(), e.s()
        self.sA, self.sB, self.sC, self.sSpin, self.sFl = (e.s() for _ in range(5))
        if c["stamps"]:
            self.vStamp = e.v()
            self.sT3, self.sT4 = e.s(2, 2), e.s(2, 2)
        self.vLane = e.v()
        self.vT = e.v(4, 4)
        self.vTok, self.vPoll = e.v(), e.v()
        self.sTok = e.s(2, 2)
        e(f"s_cmp_ge_u32 s2, 256\ns_cbranch_scc1 L_end_{KN}")
        if c["codepf"]:
            e(f"s_getpc_b64 {sr(self.sT, 2)}")
        for srd, off in ((self.srdW1, 8), (self.srdW3, 16), (self.srdX, 0)):
            e(f"s_load_dwordx2 {sr(srd, 2)}, s[0:1], {off}")
        if c["stamps"] or not c["klate"]:
            e(f"s_memrealtime {sr(self.sT2, 2)}")
        if not c["klate"]:
            self.late_kernargs()
        if c.get("ms") is not None:
            e("s_memrealtime s[98:99]")
        if c["stamps"]:
            e(f"v_mov_b32 v{self.vStamp}, 0")
            e(f"s_memtime {sr(self.sT4, 2)}")
        e(f"v_lshrrev_b32 v{self.vT}, 6, v0")
        e(f"v_and_b32 v{self.vLane}, 63, v0")
        e(f"v_readfirstlane_b32 s{self.sWave}, v{self.vT}")
        if c["codepf"] == "dist":
            t = self.vT + 1
            e(f"s_lshr_b32 s{self.sSlot}, s2, 3\nv_lshrrev_b32 v{t}, 5, v0\ns_lshl_b32 s{self.sA}, s{self.sSlot}, 3\nv_add_u32 v{t}, s{self.sA}, v{t}")
            e(f"v_lshlrev_b32 v{t}, 7, v{t}")
            e(f"s_and_b32 s{self.sT}, s{self.sT}, 0xffffff00")
            e(f"v_min_u32 v{t}, L_codeend - {KN} - 4, v{t}")
            e.vmop(f"global_load_dword v{self.vPoll}, v{t}, {sr(self.sT, 2)}", "codepf")
        elif c["codepf"]:
            t = self.vT + 1
            e(f"v_lshlrev_b32 v{t}, 7, v0")
            e(f"s_and_b32 s{self.sT}, s{self.sT}, 0xffffff00")
            e(f"v_min_u32 v{t}, L_codeend - {KN} - 4, v{t}")
            e.vmop(f"global_load_dword v{self.vPoll}, v{t}, {sr(self.sT, 2)}", "codepf")
        e(f"s_and_b32 s{self.sXcd}, s2, 7\ns_lshr_b32 s{self.sSlot}, s2, 3")
        for dst, nbytes in ((self.srdW1, W_BYTES), (self.srdW3, W_BYTES + 2048)):
            self.srd_const(dst, nbytes)

    def late_kernargs(self):
        for srd, off in ((self.srdW2, 24), (self.srdP, 48), (self.srdD, 40), (self.srdOut, 32), (self.srdH, 48), (self.srdF, 48)):
            self.e(f"s_load_dwordx2 {sr(srd, 2)}, s[0:1], {off}")

    def after_kernarg(self, tag):
        e = self.e
        e("s_waitcnt lgkmcnt(0)")
        if self.c.get("ms") is not None:
            self.nstamp = 1
            self.stamp()
        if self.c["stamps"]:
            e(f"v_writelane_b32 v{self.vStamp}, s{self.sT4}, 0\nv_writelane_b32 v{self.vStamp}, s{self.sT2}, 32")
            self.nstamp = 1
            self.stamp()

    def late_srds(self):
        for dst, nbytes in ((self.srdW2, W_BYTES), (self.srdOut, OUT_BYTES), (self.srdH, H_BYTES), (self.srdP, W2P_BYTES),
                            (self.srdF, FLAG_BYTES)):
            self.srd_const(dst, nbytes)
        self.srd_adj(self.srdP, W2P_OFF)
        self.srd_adj(self.srdF, FLAG_OFF)

    def publish_token(self):
        e = self.e
        t = self.vT
        e(f"s_or_b32 s{self.sA}, s2, s{self.sWave}\ns_cmp_lg_u32 s{self.sA}, 0\ns_cbranch_scc1 L_notok")
        e(f"s_max_u32 s{self.sA}, s{self.sT2}, 1\nv_mov_b32 v{t}, s{self.sA}")
        e(f"s_mov_b64 exec, 1\nbuffer_store_dword v{t}, off, {sr(self.srdD, 4)}, 0 sc1\ns_mov_b64 exec, -1")
        e("L_notok:")

    def phase1_setup(self):
        e = self.e
        c = self.c
        t, L = self.vT, self.vLane
        self.sRb, self.sCh = e.s(), e.s()
        self.sSoX, self.sSoW = e.s(10), e.s()
        self.sMx, self.sMw = e.s(), e.s()
        sG, sSig = e.s(), e.s()
        e(f"s_mul_i32 s{self.sA}, s{self.sSlot}, 43\ns_lshr_b32 s{self.sA}, s{self.sA}, 8")
        e(f"s_mul_i32 s{self.sB}, s{self.sA}, 6\ns_sub_u32 s{self.sB}, s{self.sSlot}, s{self.sB}")
        e(f"s_and_b32 s{self.sC}, s{self.sXcd}, 1\ns_mul_i32 s{self.sC}, s{self.sC}, 5\ns_add_u32 s{self.sRb}, s{self.sC}, s{self.sA}")
        e(f"s_lshr_b32 s{self.sC}, s{self.sXcd}, 1\ns_mul_i32 s{self.sC}, s{self.sC}, 6\ns_add_u32 s{self.sCh}, s{self.sC}, s{self.sB}")
        G = c["G"]
        if c["cpf"]:
            self.sRbl, self.sChl = e.s(), e.s()
            e(f"s_mov_b32 s{self.sRbl}, s{self.sA}\ns_mov_b32 s{self.sChl}, s{self.sB}")
        e(f"s_add_u32 s{sG}, s{self.sA}, s{self.sB}")
        if G == 1:
            e(f"s_mov_b32 s{sG}, 0")
        elif G == 2:
            e(f"s_and_b32 s{sG}, s{sG}, 1")
        else:
            e(f"s_mul_i32 s{self.sC}, s{sG}, {-(-256 // G)}\ns_lshr_b32 s{self.sC}, s{self.sC}, 8\ns_mul_i32 s{self.sC}, s{self.sC}, {G}\ns_sub_u32 s{sG}, s{sG}, s{self.sC}")
        if c["xm"]:
            e(f"s_lshr_b32 s{self.sC}, s{self.sXcd}, 1\ns_add_u32 s{self.sC}, s{self.sC}, s{self.sXcd}\ns_and_b32 s{sSig}, s{self.sC}, 1")
        self.sG, self.sSig = sG, sSig
        self.slab_off(0)
        self.vXo = e.v(7)
        self.vWo = e.v(2)
        e(f"s_lshl_b32 s{self.sA}, s{self.sWave}, 4\nv_lshrrev_b32 v{t+3}, 3, v{L}\nv_add_u32 v{t}, s{self.sA}, v{t+3}")
        e(f"v_mul_u32_u24 v{t}, 3072, v{t}\nv_and_b32 v{t+2}, 7, v{L}")
        e(f"v_bfe_u32 v{t+1}, v{L}, 4, 1\nv_lshlrev_b32 v{t+1}, 1, v{t+1}\nv_xor_b32 v{t+1}, v{t+1}, v{t+2}")
        e(f"v_lshl_add_u32 v{t}, v{t+1}, 4, v{t}\ns_lshl_b32 s{self.sA}, s{self.sCh}, 7\nv_add_u32 v{self.vWo}, s{self.sA}, v{t}")
        e(f"v_xor_b32 v{t}, 64, v{self.vWo}\nv_add_u32 v{self.vWo+1}, {8*3072 - 1024}, v{t}")
        e(f"s_lshl_b32 s{self.sMw}, s{self.sWave}, 12\ns_add_u32 s{self.sMw}, s{self.sMw}, {XS}")
        if not c["xlate"]:
            self.x_setup()

    def x_setup(self):
        e = self.e
        t = self.vT
        e(f"s_mul_i32 s{self.sA}, s{self.sWave}, 52\nv_add_u32 v{t}, s{self.sA}, v{t+3}")
        e(f"v_bfe_u32 v{t+1}, v{t}, 1, 3\nv_xor_b32 v{t+1}, v{t+1}, v{t+2}")
        e(f"s_mul_i32 s{self.sB}, s{self.sRb}, 208\nv_add_u32 v{t}, s{self.sB}, v{t}\nv_mul_u32_u24 v{t}, 1280, v{t}")
        e(f"v_lshl_add_u32 v{self.vXo}, v{t+1}, 4, v{t}")
        e(f"v_xor_b32 v{t+1}, 64, v{self.vXo}")
        for i in range(1, 7):
            src = self.vXo if i % 2 == 0 else t + 1
            e(f"v_add_u32 v{self.vXo+i}, {i*10240 - (i & 3)*1024}, v{src}")
        e(f"s_mul_i32 s{self.sMx}, s{self.sWave}, 6656")
        self.srd_const(self.srdX, X_BYTES)

    def slab_off(self, s):
        e = self.e
        G, xm = self.c["G"], self.c["xm"]
        base = s // G * G
        d = self.sSoX + s
        if self.c.get("lead"):
            ld = self.c["lead"]
            e(f"s_mov_b32 s{d}, {s}")
            for cl in range(5):
                o = list(range(10))
                g0 = self.c["g0"]
                o[:g0] = [(i + cl) % g0 for i in range(g0)]
                for a in range(max(g0, self.c["lead0"]), 10):
                    if (a - ld) % 5 == (cl + self.c["lsh"]) % 5:
                        o.remove(a)
                        o.insert(a - ld, a)
                if o[s] != s:
                    e(f"s_cmp_eq_u32 s{self.sG}, {cl}\ns_cselect_b32 s{d}, {o[s]}, s{d}")
        elif base + G > 10 or G == 1:
            e(f"s_mov_b32 s{d}, {s}")
        elif G == 2:
            e(f"s_xor_b32 s{d}, s{self.sG}, {s}")
        else:
            e(f"s_add_u32 s{d}, s{self.sG}, {s}\ns_sub_u32 s{self.sC}, s{d}, {G}\ns_cmp_ge_u32 s{d}, {base + G}\ns_cselect_b32 s{d}, s{self.sC}, s{d}")
        if xm == "rev":
            e(f"s_sub_u32 s{self.sC}, 9, s{d}\ns_cmp_eq_u32 s{self.sSig}, 1\ns_cselect_b32 s{d}, s{self.sC}, s{d}")
        elif xm:
            e(f"s_mul_i32 s{self.sC}, s{self.sSig}, {xm}\ns_add_u32 s{d}, s{d}, s{self.sC}\ns_sub_u32 s{self.sC}, s{d}, 10\ns_cmp_ge_u32 s{d}, 10\ns_cselect_b32 s{d}, s{self.sC}, s{d}")
        e(f"s_lshl_b32 s{d}, s{d}, 7")

    def dma_list(self, s):
        e = self.e
        sb = (s % NSTAGE) * STAGE
        out = []
        for m in range(2):
            for j in range(2):
                def f(m=m, j=j):
                    srd = self.srdW1 if m == 0 else self.srdW3
                    e.vmop(f"buffer_load_dwordx4 v{self.vWo+j}, {sr(srd, 4)}, s{self.sSoW} offen offset:{m*2048 + j*1024} lds", ("d", s))
                out.append((f"s_add_u32 m0, s{self.sMw}, {sb}\ns_mul_i32 s{self.sSoW}, s{self.sSoX+s}, 1536" if m + j == 0 else None, f))
        for i in range(7):
            def f(i=i):
                if i == 6:
                    e("s_mov_b32 exec_hi, 0")
                e.vmop(f"buffer_load_dwordx4 v{self.vXo+i}, {sr(self.srdX, 4)}, s{self.sSoX+s} offen offset:{(i & 3)*1024} lds", ("d", s))
                if i == 6:
                    e("s_mov_b32 exec_hi, -1")
            out.append((f"s_add_u32 m0, s{self.sMx}, {sb + (i >> 2)*4096}" if i % 4 == 0 else None, f))
        return out

    def epi_ops(self, u):
        g = self.acc + u * 8
        up = g + 4
        T = self.tmp + (u & 1) * 4
        dst = self.outb + ((u >> 1) & 1) * 4 + (u & 1) * 2
        ops = []
        for i in range(4):
            ops.append((1, f"v_mul_f32 v{T+i}, s{self.sK}, v{g+i}"))
        for i in range(4):
            ops.append((2, f"v_exp_f32 v{T+i}, v{T+i}"))
            ops.append((1, f"v_mul_f32 v{g+i}, v{g+i}, v{up+i}"))
        for i in range(4):
            ops.append((1, f"v_add_f32 v{T+i}, 1.0, v{T+i}"))
        for i in range(4):
            ops.append((2, f"v_rcp_f32 v{T+i}, v{T+i}"))
        for i in range(4):
            ops.append((1, f"v_mul_f32 v{g+i}, v{g+i}, v{T+i}"))
        ops.append((1, f"v_cvt_pk_bf16_f32 v{dst}, v{g}, v{g+1}"))
        ops.append((1, f"v_cvt_pk_bf16_f32 v{dst+1}, v{g+2}, v{g+3}"))
        return ops

    def phase1_main(self):
        e = self.e
        c = self.c
        D, E = c["D"], c["E"]
        R = D + 2
        t, L = self.vT, self.vLane
        first = self.dma_list(0) + self.dma_list(1) + self.dma_list(2)
        def coop(s0, n):
            def f():
                assert not c["xm"]
                e(f"s_mov_b64 exec, {(1 << (4*n)) - 1}\ns_mov_b32 s{self.sA}, {s0*196608}")
                e.vmop(f"buffer_load_dword v{self.vPoll}, v{self.vPw}, {sr(self.srdW1, 4)}, s{self.sA} offen", "cpf")
                e.vmop(f"buffer_load_dword v{self.vPoll}, v{self.vPw}, {sr(self.srdW3, 4)}, s{self.sA} offen offset:2048", "cpf")
                e(f"s_mov_b64 exec, {(1 << (9*n)) - 1}")
                e.vmop(f"buffer_load_dword v{self.vPoll}, v{self.vPx}, {sr(self.srdX, 4)}, 0 offen offset:{s0*128}", "cpf")
                e("s_mov_b64 exec, -1")
            return (None, f)
        for pos, s0, n in reversed(c["cpf"] or ()):
            first.insert(pos, coop(s0, n))
        npre = c["npre"] + len(c["cpf"] or ())
        assert npre <= 26
        def emit_now(items):
            for m0, f in items:
                if m0:
                    e(m0 + "\ns_nop 0")
                f()
        pre0 = c["pre0"]
        emit_now(first[:4])
        if c["klate"]:
            self.late_kernargs()
            if not c["stamps"]:
                e(f"s_memrealtime {sr(self.sT2, 2)}")
        if c["xlate"]:
            self.x_setup()
        emit_now(first[4:min(pre0, 11)])
        self.slab_off(1)
        emit_now(first[11:pre0])
        self.acc = e.v(NU * 8, 4)
        self.xr = e.v(R * 4, 4)
        NW = 5
        self.wf = e.v(8 * NW, 4)
        vXa, vWa = e.v(6), e.v(3)
        self.vHs = e.v()
        self.tmp = e.v(8, 4)
        self.outb = e.v(8, 4)
        self.sK, self.sHo = e.s(), e.s()
        self.srd_const(self.srdD, 256)
        e("s_waitcnt lgkmcnt(0)")
        self.publish_token()
        if c.get("tlbw"):
            e(f"v_lshlrev_b32 v{t}, 21, v{L}\ns_mov_b32 s{self.srdH+2}, {14 << 20}\ns_mov_b32 s{self.srdH+3}, 0x20000")
            e(f"s_mov_b32 s{self.srdOut+2}, {OUT_BYTES}\ns_mov_b32 s{self.srdOut+3}, 0x20000\ns_mov_b64 exec, 127")
            e.vmop(f"buffer_load_dword v{self.vPoll}, v{t}, {sr(self.srdH, 4)}, 0 offen", "tlbw")
            e.vmop(f"buffer_load_dword v{self.vPoll}, v{t}, {sr(self.srdOut, 4)}, 0 offen", "tlbw")
            e("s_mov_b64 exec, -1")
        self.slab_off(2)
        e(f"v_and_b32 v{t}, 15, v{L}\nv_bfe_u32 v{t+1}, v{L}, 1, 3\nv_lshrrev_b32 v{t+2}, 4, v{L}\nv_xor_b32 v{t+1}, v{t+1}, v{t+2}")
        e(f"v_lshlrev_b32 v{t}, 7, v{t}\nv_lshl_add_u32 v{vXa}, v{t+1}, 4, v{t}\nv_xor_b32 v{vXa+1}, 64, v{vXa}")
        self.tr_lane_addr(vWa, 4096, 1024, self.sWave)
        e(f"v_add_u32 v{vWa}, {XS}, v{vWa}")
        emit_now(first[pre0:npre])
        vq = list(first[npre:])
        mark = len(e.L)
        tsave = (e.t, e.tm, e.tv)
        self.slab_off(3)
        for st in (1, 2):
            e(f"v_add_u32 v{vXa+2*st}, {st*STAGE}, v{vXa}\nv_add_u32 v{vXa+2*st+1}, {st*STAGE}, v{vXa+1}")
        e(f"v_add_u32 v{vWa+1}, {STAGE}, v{vWa}\nv_add_u32 v{vWa+2}, {2*STAGE}, v{vWa}")
        self.late_srds()
        e("MARK1:")
        self.slab_off(4)
        e("MARK2:")
        for sx in range(5, 10):
            self.slab_off(sx)
        e("MARK3:")
        e(f"s_mov_b32 s{self.sK}, 0xbfb8aa3b")
        e(f"v_bfe_u32 v{t}, v{L}, 4, 1\nv_mul_u32_u24 v{self.vHs}, 49152, v{t}")
        e(f"v_bfe_u32 v{t}, v{L}, 5, 1\nv_lshl_add_u32 v{self.vHs}, v{t}, 8, v{self.vHs}")
        e(f"v_and_b32 v{t}, 15, v{L}\nv_lshl_add_u32 v{self.vHs}, v{t}, 4, v{self.vHs}")
        e(f"s_mul_i32 s{self.sA}, s{self.sRb}, {NU*49152}\ns_lshl_b32 s{self.sB}, s{self.sCh}, 11\ns_add_u32 s{self.sA}, s{self.sA}, s{self.sB}")
        e(f"s_lshl_b32 s{self.sB}, s{self.sWave}, 9\ns_add_u32 s{self.sA}, s{self.sA}, s{self.sB}")
        e(f"v_add_u32 v{self.vHs}, s{self.sA}, v{self.vHs}")
        e(f"s_lshr_b32 s{self.sA}, s{self.sXcd}, 1\ns_mul_i32 s{self.sB}, s{self.sA}, 6\ns_sub_u32 s{self.sB}, s{self.sCh}, s{self.sB}")
        e(f"s_lshl_b32 s{self.sC}, s{self.sRb}, 2\ns_add_u32 s{self.sA}, s{self.sA}, s{self.sC}\ns_lshl_b32 s{self.sA}, s{self.sA}, 10")
        e(f"s_mul_i32 s{self.sB}, s{self.sB}, {c['fstr']}")
        e(f"s_add_u32 s{self.sFl}, s{self.sA}, s{self.sB}")
        self.phase2_setup()
        e("MARK5:")
        lines = [l.strip() for l in e.L[mark:]]
        del e.L[mark:]
        e.t, e.tm, e.tv = tsave
        setup = []
        for l in lines:
            if l.split()[0] in ("s_cselect_b32", "s_addc_u32", "s_subb_u32", "s_nop", "v_cndmask_b32"):
                setup[-1] += "\n" + l
            else:
                setup.append(l)

        def setup_upto(m):
            while m in setup:
                it = setup.pop(0)
                if not it.startswith("MARK"):
                    e(it)

        seq = [(u, s, ks) for s in range(8) for ks in range(2) for u in range(NU)]
        k = c["tail"]
        seq += [(u, 8, ks) for ks in range(2) for u in range(k, NU)]
        for u in range(NU):
            if u < k:
                seq += [(u, 8, 0), (u, 8, 1)]
            seq += [(u, 9, 0), (u, 9, 1)]
        N = len(seq)
        first_use = {s: min(n for n in range(N) if seq[n][1] == s) for s in range(10)}
        last_use = {u: max(n for n in range(N) if seq[n][0] == u) for u in range(NU)}
        bpos = {s: first_use[s] - (D - E) for s in range(1, 10)}
        bpos[0] = 0
        if bpos[9] <= bpos[8] + 1:
            bpos[9] = bpos[8]

        def xread(n):
            u, s, ks = seq[n]
            e.ldsop(f"ds_read_b128 {vr(self.xr + (n % R)*4, 4)}, v{vXa + 2*(s % NSTAGE) + ks} offset:{u*2048}", ("x", n))

        def wbuf(s, ks):
            return self.wf + ((2 * s + ks) % NW) * 8

        def wread(s, ks, m, h):
            e.ldsop(f"ds_read_b64_tr_b16 {vr(wbuf(s, ks) + m*4 + h*2, 2)}, v{vWa + s % NSTAGE} offset:{ks*8192 + m*2048 + h*512}", ("w", s, ks))

        wneed, wlast = {}, {}
        for n, (u, s, ks) in enumerate(seq):
            wneed.setdefault((s, ks), n)
            wlast[(s, ks)] = n
        lq = []

        def validate(sx):
            for ks in range(2):
                for m in range(2):
                    for h in range(2):
                        lq.append((wneed[(sx, ks)], 0, ("w", sx, ks, m, h)))
            for n in range(N):
                if seq[n][1] == sx:
                    lq.append((n, 1, ("x", n)))
            lq.sort(key=lambda z: (z[0], z[1]))

        def lds_ok(it, n):
            if it[2][0] == "x":
                return it[0] <= n + R - 2
            if it[2][0] == "r":
                return True
            _, sx, ks, m, h = it[2]
            prev = 2 * sx + ks - NW
            return prev < 0 or wlast[(prev // 2, prev % 2)] < n

        def lds_issue(it):
            lq.remove(it)
            if it[2][0] == "x":
                xread(it[2][1])
            elif it[2][0] == "r":
                _, bb, h = it[2]
                e.ldsop(f"ds_read_b64_tr_b16 {vr(self.outb + 4*bb + 2*h, 2)}, v{vWa+2} offset:{RED0 - XS - 2*STAGE + bb*2048 + h*512}", ("r", bb))
            else:
                wread(*it[2][1:])

        for _ in range(c.get("pad", 0) // 4):
            e("s_nop 0")
        self.stamp()
        e.wait(vm=[("d", 0)])
        e("s_barrier")
        self.stamp()
        validate(0)
        while lq[0][0] < D:
            lds_issue(lq[0])
        epi = []
        st = dict(m0=False, vslot=0, tn=0, tv=32, epi=0)
        done_units = 0

        def run_events():
            while vq and vq[0][0] == "event":
                vq.pop(0)[1]()

        def vm_issue():
            run_events()
            m0, f = vq.pop(0)
            m0 = None if m0 and m0.startswith("hguard") else m0
            if m0 and not st["m0"]:
                e(m0 + "\ns_nop 0")
            f()
            st["m0"] = False
            st["tn"] = max(st["tn"], e.t - 12 - 24) + st["tv"]
            run_events()

        def gap(n, isA):
            used = None
            st["vslot"] += 1
            head = lq[0] if lq and lds_ok(lq[0], n) else None
            backlog = (sum(1 for m0, _ in vq if m0 and m0.startswith("s_")) > 3 and n < 52) or n < bpos[c["fastto"]]
            tv = c["tback"] if backlog else ((c["tdma"] if n < bpos[7] else c["tdma9"]) if about_dma(vq) else (c["tw2a"] if st["epi"] < c["ua"] else c["tw2"]))
            st["tv"] = tv
            vm_ready = vq and (vq[0][0] is None or st["m0"] or (vq[0][0].startswith("hguard") and st["epi"] >= int(vq[0][0][6:]))) and e.t >= st["tn"]
            if head and head[0] - n <= c["crit"]:
                lds_issue(head)
                used = "l"
                if backlog and vm_ready:
                    vm_issue()
                    used = "v"
            elif vm_ready:
                vm_issue()
                used = "v"
            else:
                cand = [it for it in lq[:24] if lds_ok(it, n) and (it[2][0] in "wr" or it[0] - n <= D + (1 if isA else 0))]
                if cand:
                    lds_issue(cand[0])
                    used = "l"
            if used != "v" and vq and vq[0][0] and vq[0][0].startswith("s_") and not st["m0"]:
                e(vq[0][0])
                st["m0"] = True
            elif used != "v" and setup:
                for _ in range(1 if used else 2):
                    if setup:
                        it = setup.pop(0)
                        if not it.startswith("MARK"):
                            e(it)

        def pop_epi(budget):
            while epi and budget > 0:
                it = epi.pop(0)
                if callable(it):
                    it()
                    budget -= 2
                elif it[0] == "mark":
                    st["epi"] = it[1]
                    if c["stamps"] == 3 and it[1] in (3, 6, 9):
                        self.stamp()
                else:
                    e(it[1])
                    budget -= it[0]

        def store_pair(pr):
            def f():
                ob = self.outb + (pr & 1) * 4
                e(f"s_mov_b32 s{self.sHo}, {pr*2*49152}\ns_nop 0")
                e(f"v_permlane16_swap_b32 v{ob}, v{ob+2}\nv_permlane16_swap_b32 v{ob+1}, v{ob+3}")
                if 2 * pr + 1 >= NU:
                    e("s_mov_b32 exec_lo, 0xffff\ns_mov_b32 exec_hi, 0xffff")
                e.vmop(f"buffer_store_dwordx4 {vr(ob, 4)}, v{self.vHs}, {sr(self.srdH, 4)}, s{self.sHo} offen {c['stf']}", ("hst", pr))
                if 2 * pr + 1 >= NU:
                    e("s_mov_b64 exec, -1")
            return f

        def flag_item(pr, stage):
            return lambda: self.publish_h(pr, stage)

        def unit_done(u):
            epi.extend(self.epi_ops(u))
            epi.append(("mark", u + 1))
            if u % 2 == 1 or u == NU - 1:
                epi.append(store_pair(u // 2))
            if u == c["fA"]:
                epi.append(flag_item(1, 1))
            if u == c["fB"]:
                epi.append(flag_item(3, 2))
            if u == NU - 1 and c["fC"] < 0:
                epi.append(flag_item(4, 3))

        def mfma(n, m):
            u, s, ks = seq[n]
            a = self.acc + u * 8 + m * 4
            cin = "0" if (s == 0 and ks == 0) else vr(a, 4)
            if not (c.get("no_mfma") and s >= 1):
                e(f"v_mfma_f32_16x16x32_bf16 {vr(a, 4)}, {vr(wbuf(s, ks) + m*4, 4)}, {vr(self.xr + (n % R)*4, 4)}, {cin}")

        tail0 = last_use[0]
        e.wait(lds=[("x", 0), ("w", 0, 0)])
        for n in range(N):
            u, s, ks = seq[n]
            intail = n > tail0 + 2
            mfma(n, 0)
            bars = [sb for sb in range(1, 10) if bpos[sb] == n]
            if bars:
                sb, s0 = max(bars), min(bars)
                setup_upto(f"MARK{s0}:")
                while len([x for x in e.vm if x == ("d", sb)]) < 11:
                    vm_issue()
                rel = s0 + 2 <= 9
                e.wait(vm=[("d", sb)], lds_all=rel)
                e("s_barrier")
                if c["stamps"] == 2 or sb in (1, 5, 8, 9):
                    self.stamp()
                for sx in bars:
                    validate(sx)
                held = [it for it in vq if getattr(it[1], "__name__", "") in ("w2", "chkp", "chk0", "chk2")]
                vq[:] = [it for it in vq if it not in held]
                if s0 == c["w2at"] and not c.get("p1only"):
                    held = self.seam_queue()
                if s0 == 5:
                    self.tok_probe()
                if s0 == 6:
                    self.tok_check("L_tok")
                if rel:
                    dl = self.dma_list(s0 + 2)
                    if s0 == c["w2at"] and not c.get("p1only"):
                        dl.insert(11 - c["r1d"], ("event", lambda: self.r1probe[1]()))
                    vq += dl
                vq += held
            else:
                gap(n, False)
                if intail:
                    pop_epi(c.get("epiB", 4))
            mfma(n, 1)
            if n + 1 < N:
                u2, s2, ks2 = seq[n + 1]
                while lq and lq[0][0] <= n + 1:
                    assert lds_ok(lq[0], n + 1)
                    lds_issue(lq[0])
                e.wait(lds=[("x", n + 1), ("w", s2, ks2)])
            gap(n, True)
            while done_units < NU and last_use[done_units] + 2 <= n:
                unit_done(done_units)
                done_units += 1
            if intail:
                pop_epi(c.get("epiA", 4))
        self.stamp()
        if c.get("p1only"):
            self.write_stamps()
            e("s_endpgm")
        e("s_nop 3")
        while done_units < NU:
            unit_done(done_units)
            done_units += 1
        while epi:
            pop_epi(2)
            if vq and e.t - e.tv >= c["tw2"] - 12 and not (vq[0][0] or "").startswith(f"hguard{st['epi'] + 1}"):
                vm_issue()
        self.stamp()
        k = 0
        while vq and not c.get("p1only"):
            if k == c["fC"]:
                flag_item(4, 3)()
            vm_issue()
            k += 1
        assert k > c["fC"] or c.get("p1only")
        self.stamp()

    def phase2_setup(self):
        e = self.e
        c = self.c
        t, L = self.vT, self.vLane
        if not hasattr(self, "sM2"):
            self.sM2, self.sNb, self.sSoP = e.s(), e.s(), e.s()
            self.sU, self.sFo, self.sRow = e.s(4), e.s(4), e.s(4)
            self.vP, self.vHl, self.vFr, self.vFh = e.v(), e.v(), e.v(), e.v()
            self.vRw, self.vRa, self.vOa = (e.v() for _ in range(3))
            self.sSoH = e.s()
            self.sT4o = e.s()
            self.sFr = e.s()
        if c["map2"] == "8x4":
            e(f"s_and_b32 s{self.sM2}, s{self.sXcd}, 3\ns_lshl_b32 s{self.sM2}, s{self.sM2}, 3\ns_and_b32 s{self.sA}, s{self.sSlot}, 7\ns_add_u32 s{self.sM2}, s{self.sM2}, s{self.sA}")
            e(f"s_lshr_b32 s{self.sNb}, s{self.sXcd}, 2\ns_lshl_b32 s{self.sNb}, s{self.sNb}, 2\ns_lshr_b32 s{self.sA}, s{self.sSlot}, 3\ns_add_u32 s{self.sNb}, s{self.sNb}, s{self.sA}")
        else:
            e(f"s_lshl_b32 s{self.sM2}, s{self.sXcd}, 2\ns_and_b32 s{self.sA}, s{self.sSlot}, 3\ns_add_u32 s{self.sM2}, s{self.sM2}, s{self.sA}")
            e(f"s_lshr_b32 s{self.sNb}, s{self.sSlot}, 2")
        e(f"s_mul_i32 s{self.sA}, s{self.sWave}, 12288\nv_lshlrev_b32 v{t}, 4, v{L}\nv_add_u32 v{self.vHl}, s{self.sA}, v{t}")
        e(f"s_mul_i32 s{self.sB}, s{self.sNb}, {4*49152}\nv_add_u32 v{self.vP}, s{self.sB}, v{self.vHl}")
        e(f"v_min_u32 v{t}, 3, v{L}\nv_mul_u32_u24 v{self.vFr}, {c['fstr']}, v{t}\ns_lshl_b32 s{self.sFr}, s{self.sWave}, 9\ns_add_u32 s{self.sFr}, s{self.sFr}, {FR_OFF}")
        e(f"v_min_u32 v{t}, 5, v{L}\nv_mul_u32_u24 v{self.vFh}, {c['fstr']}, v{t}")
        for j in range(4):
            e(f"s_add_u32 s{self.sA}, s{self.sM2}, {32*j}")
            e(f"s_mul_i32 s{self.sB}, s{self.sA}, 205\ns_lshr_b32 s{self.sB}, s{self.sB}, 11")
            e(f"s_mul_i32 s{self.sC}, s{self.sB}, 10\ns_sub_u32 s{self.sC}, s{self.sA}, s{self.sC}")
            if j == 3:
                e(f"s_cmp_ge_u32 s{self.sA}, 119\ns_cselect_b32 s{self.sU+3}, 12, 11\ns_cselect_b32 s{self.sRow+3}, 9, 0")
                e(f"s_sub_u32 s{self.sRow+3}, s{self.sA}, s{self.sRow+3}\ns_sub_u32 s{self.sRow+3}, s{self.sRow+3}, 110")
                e(f"s_cmp_ge_u32 s{self.sA}, 110\ns_cselect_b32 s{self.sB}, s{self.sU+3}, s{self.sB}\ns_cselect_b32 s{self.sC}, s{self.sRow+3}, s{self.sC}")
            e(f"s_lshl_b32 s{self.sFo+j}, s{self.sC}, 2\ns_add_u32 s{self.sFo+j}, s{self.sFo+j}, s{self.sWave}\ns_lshl_b32 s{self.sFo+j}, s{self.sFo+j}, 10")
            e(f"s_mul_i32 s{self.sC}, s{self.sC}, 13\ns_add_u32 s{self.sC}, s{self.sC}, s{self.sB}")
            e(f"s_mul_i32 s{self.sU+j}, s{self.sC}, {0 if c.get('hsame') else 49152}\ns_mul_i32 s{self.sRow+j}, s{self.sC}, 20480")
        e(f"v_lshrrev_b32 v{t}, 4, v{L}\nv_and_b32 v{t+1}, 15, v{L}\nv_mul_u32_u24 v{t+1}, {RST}, v{t+1}\nv_lshl_add_u32 v{t}, v{t}, 4, v{t+1}")
        e(f"s_mul_i32 s{self.sA}, s{self.sWave}, {SST}\nv_add_u32 v{self.vRw}, s{self.sA}, v{t}")
        e(f"v_min_u32 v{t}, 39, v{L}\nv_mul_u32_u24 v{t+1}, 26, v{t}\nv_lshrrev_b32 v{t+1}, 8, v{t+1}\nv_mul_u32_u24 v{t+2}, 10, v{t+1}\nv_sub_u32 v{t}, v{t}, v{t+2}")
        e(f"s_lshl_b32 s{self.sA}, s{self.sWave}, 2\nv_add_u32 v{t+1}, s{self.sA}, v{t+1}")
        e(f"v_mul_u32_u24 v{self.vRa}, {RST}, v{t+1}\nv_lshl_add_u32 v{self.vRa}, v{t}, 5, v{self.vRa}")
        e(f"v_mul_u32_u24 v{t+1}, 1280, v{t+1}\nv_lshl_add_u32 v{t+1}, v{t}, 4, v{t+1}")
        e(f"s_lshl_b32 s{self.sA}, s{self.sNb}, 7\ns_lshl_b32 s{self.sB}, s{self.sNb}, 5\ns_add_u32 s{self.sB}, s{self.sB}, 896")
        e(f"v_mov_b32 v{t+2}, s{self.sA}\nv_mov_b32 v{t+3}, s{self.sB}\nv_cmp_lt_u32 vcc, 7, v{t}\ns_nop 1\nv_cndmask_b32 v{t+2}, v{t+2}, v{t+3}, vcc")
        e(f"v_add_u32 v{self.vOa}, v{t+1}, v{t+2}")
        e(f"s_mul_i32 s{self.sT4o}, s{self.sNb}, {-3*49152}\ns_add_u32 s{self.sT4o}, s{self.sT4o}, {32*49152}")

    def w2p_list(self):
        e = self.e
        out = []
        for g in range(3):
            for tt in range(5):
                for k4 in range(4):
                    ks = g * 4 + k4

                    def w2(tt=tt, ks=ks, g=g, k4=k4):
                        assert g + 1 in self.rchecked and not self.c["grot"]
                        if k4 == 0:
                            e(f"s_add_u32 s{self.sSoP}, s{self.sT4o}, {g*4096}" if tt == 4 else f"s_mov_b32 s{self.sSoP}, {tt*49152 + g*4096}")
                        e.vmop(f"buffer_load_dwordx4 {ar((tt*12 + ks)*4, 4)}, v{self.vP}, {sr(self.srdP, 4)}, s{self.sSoP} offen offset:{k4*1024} {self.c['ldf']}", ("p", tt, ks))
                    out.append(w2)
        return out

    def hload(self, i):
        e = self.e
        j, ks = divmod(i, 12)
        assert j in self.checked, f"slot {j} loaded before its flags were checked"
        if ks % 4 == 0 and self.hprep != i:
            self.hprep_emit(i)
        e.vmop(f"buffer_load_dwordx4 {vr(self.hr + (i % self.c['HR'])*4, 4)}, v{self.vHl}, {sr(self.srdH, 4)}, s{self.sSoH} offen offset:{(ks & 3)*1024} {self.c['ldf']}", ("h", i))

    def hprep_emit(self, i):
        j, ks = divmod(i, 12)
        self.e(f"s_add_u32 s{self.sSoH}, s{self.sU+j}, {(ks >> 2)*4096}")
        self.hprep = i

    def pollh(self, j):
        self.polled.add(j)
        self.probe(self.sFo + j, j * FSTAGE, 6)

    def checkh(self, j, sfx=""):
        assert j in self.polled
        self.checked.add(j)
        self.probe_check(f"L_ph{j}{sfx}", self.vFh, self.sFo + j, j * FSTAGE, 6)

    def seam_queue(self, sfx=""):
        e = self.e
        c = self.c
        self.hr = self.acc

        self.polled = set()
        self.checked = set()
        self.rchecked = set()
        self.hprep = -1
        self.post = []

        def rpoll(k):
            def chkp():
                self.probe(self.sFr, (k - 1) * 2048, 4)

            def chk2():
                self.probe_check(f"L_pr{k}" + sfx, self.vFr, self.sFr, (k - 1) * 2048, 4)
                self.rchecked.add(k)
                if k == 1:
                    self.stamp()
            return ("event", chkp), ("event", chk2)
        self.r1probe, c1 = rpoll(1)
        q = [c1]
        w2l = [(None, f) for f in self.w2p_list()]
        p2, c2 = rpoll(2)
        p3, c3 = rpoll(3)
        rd, hf, pd = c["rpd"], c["hfirst"], c["pd0"]

        def chkp():
            self.pollh(0)
        ph0 = ("event", chkp)

        def chk0():
            if c["await"]:
                e("s_waitcnt lgkmcnt(0)")
                e.lds_done = len(e.lds)
            self.checkh(0, sfx)
            if not sfx:
                self.stamp()
        hl = []
        for i in range(c["PF"]):
            def w2(i=i):
                self.hload(i)
            hl.append((f"hguard{i // 2 + 1}", w2))
            if i + 1 == c["pollks"]:
                def chkp():
                    self.pollh(1)
                hl.append(("event", chkp))
        q += w2l[:20-rd] + [p2] + w2l[20-rd:20] + [c2]
        if c["g2late"]:
            hl = [it for it in hl if it[0] != "event"]
            q += w2l[20:40-pd] + [ph0] + w2l[40-pd:40] + [("event", chk0), p3] + hl[:c["g2late"]] + [c3]
            hl, rest = hl[c["g2late"]:], w2l[40:]

            def chkp():
                self.pollh(1)
            k = len(rest) - c["inp2"]
            self.post = [f for _, f in rest[k:]]
            rest = rest[:k]
            rest.insert(min(c["bpos"], len(rest)), ("event", chkp))
        else:
            assert hf >= 40
            q += w2l[20:40-rd] + [p3] + w2l[40-rd:40] + [c3] + w2l[40:hf] + [ph0] + w2l[hf:hf+pd] + [("event", chk0)]
            rest = w2l[hf+pd:]
        for it in hl:
            q.append(it)
            q += rest[:c["wper"]]
            rest = rest[c["wper"]:]
        return q + rest

    def phase2_main(self):
        e = self.e
        c = self.c
        HR, PF = c["HR"], c["PF"]
        assert PF < 12 and HR <= 16
        hr = self.hr
        acc = self.wf
        ra, rb, obase = self.xr, self.xr + 16, self.acc + 64
        self.vRwH, self.vRaH = self.xr + 36, self.xr + 37
        stores = []
        seq = [(j, ks) for j in range(4) for ks in range(12)]
        hload, pollh, checkh = self.hload, self.pollh, self.checkh
        hn = PF
        post = list(self.post)
        side = []

        def red_write(j, tt):
            e.ldsop(f"ds_write_b128 v{self.vRw if j & 1 else self.vRwH}, {vr(acc + (j & 1)*20 + tt*4, 4)} offset:{tt*TST}", ("rw", j))

        def reduce_items(j, last):
            ob = obase + 4 * j
            va = self.vRa if j & 1 else self.vRaH
            it = []
            for tt in range(4 if last else 0, 5):
                it.append(lambda tt=tt: red_write(j, tt))
                if not last and c["wspace"]:
                    it.append(None)
            if not last:
                it += [None] * 2

            def bar():
                e.wait(lds=[("rw", j)])
                e("s_barrier")
            it.append(bar)
            for src in range(4):
                for h, base in enumerate((ra, rb)):
                    def rd(src=src, h=h, base=base):
                        e.ldsop(f"ds_read_b128 {vr(base + src*4, 4)}, v{va} offset:{src*SST + h*16}", ("rr", j, h, src))
                    rd.isread = True
                    it.append(rd)
            if not last:
                it += [None] * 4
            for src in range(1, 4):
                for h, base in enumerate((ra, rb)):
                    for half in range(2):
                        def ad(h=h, base=base, src=src, half=half):
                            e.wait(lds=[("rr", j, h, src)])
                            for i2 in (2 * half, 2 * half + 1):
                                e(f"v_add_f32 v{base+i2}, v{base+i2}, v{base+src*4+i2}")
                        it.append(ad)

            def sto():
                e("s_mov_b32 exec_hi, 0xff")
                e.vmop(f"buffer_store_dwordx4 {vr(ob, 4)}, v{self.vOa}, {sr(self.srdOut, 4)}, s{self.sRow+j} offen {c['outflags'] if j < 3 else c.get('outlast', c['outflags'])}", ("o", j))
                e("s_mov_b32 exec_hi, -1")
            for h, base in enumerate((ra, rb)):
                def cvt(h=h, base=base):
                    e(f"v_cvt_pk_bf16_f32 v{ob+2*h}, v{base}, v{base+1}\nv_cvt_pk_bf16_f32 v{ob+2*h+1}, v{base+2}, v{base+3}")
                    if h:
                        stores.append(sto)
                it.append(cvt)
            return it
        e(f"v_add_u32 v{self.vRwH}, {RED0}, v{self.vRw}\nv_add_u32 v{self.vRaH}, {RED0}, v{self.vRa}")
        e.wait(vm=[("h", 0)] + [("p", tt, 0) for tt in range(5)])
        self.stamp()
        CH = c["chain"]
        published = False
        order = [(i0 + k, tt) for i0 in range(0, 44, CH) for tt in range(5) for k in range(CH)]
        for pos, (im, tm) in enumerate(order):
            i, tt = divmod(pos, 5)
            j, ks = seq[i]
            jm, km = seq[im]
            a = acc + (jm & 1) * 20 + tm * 4
            e.wait(vm=[("h", im), ("p", tm, km)])
            e(f"v_mfma_f32_16x16x32_bf16 {vr(a, 4)}, {ar((tm*12 + km)*4, 4)}, {vr(hr + (im % HR)*4, 4)}, {'0' if km == 0 else vr(a, 4)}")
            rt = (tt - c["gsh"]) % 5
            reads_left = any(it is not None and getattr(it, "isread", False) for it in side)
            if rt == 0 and hn < 48:
                hload(hn)
                hn += 1
            elif rt in (2, 3) and post:
                post.pop(0)()
            elif rt == 0 and stores:
                stores.pop(0)()
            elif rt == 3 and i == c["fD"]:
                self.publish_h(6, 4)
                published = True
            elif rt == 2 and hn < 48 and seq[hn][1] >= c['pollks'] and seq[hn][0] < 3 and seq[hn][0] + 1 not in self.polled and not reads_left:
                e.wait(lds_all=True)
                pollh(seq[hn][0] + 1)
            elif rt == 1 and hn < 48 and seq[hn][1] == 0:
                if c["await2"]:
                    e("s_waitcnt lgkmcnt(0)")
                    e.lds_done = len(e.lds)
                checkh(seq[hn][0])
            else:
                if side and ks >= 1:
                    it = side.pop(0)
                    if it:
                        it()
                if rt == 2 and hn < 48 and hn % 4 == 0 and self.hprep != hn:
                    self.hprep_emit(hn)
            if ks == 11 and tt == 4:
                if c["stamps"] == 3 and j < 3:
                    self.stamp()
                assert not side, len(side)
                side = reduce_items(j, False)
        assert HR >= PF + CH + 1 and published
        for tt in range(5):
            for i in range(44, 48):
                a = acc + 20 + tt * 4
                if tt == 0:
                    e.wait(vm=[("h", i)])
                e(f"v_mfma_f32_16x16x32_bf16 {vr(a, 4)}, {ar((tt*12 + i - 36)*4, 4)}, {vr(hr + (i % HR)*4, 4)}, {vr(a, 4)}")
                if tt >= 2 and i == 46:
                    red_write(3, tt - 2)
                elif side:
                    it = side.pop(0)
                    if it:
                        it()
                elif stores:
                    stores.pop(0)()
        assert not side
        self.stamp()
        e("s_nop 3")
        red_write(3, 3)
        e("s_nop 2")
        side = reduce_items(3, True)
        for k, it in enumerate(side):
            if it:
                it()
            if stores:
                stores.pop(0)()
        if c["stamps"] or c.get("ms") is not None:
            self.stamp()
            e.wait(vm_all=True)
            self.stamp()

    def repack(self):
        e = self.e
        c = self.c
        t, L = self.vT, self.vLane
        sR, sLo, sSt = e.s(), e.s(8), e.s(8)
        vD, vR, vS = e.v(4), e.v(4), e.v(4)
        F = e.v(32, 4)
        if c["klate"]:
            self.late_kernargs()
        self.srd_const(self.srdD, 256)
        e(f"s_lshl_b32 s{sR}, s{self.sXcd}, 1\ns_add_u32 s{sR}, s{sR}, s{self.sSlot}\ns_sub_u32 s{sR}, s{sR}, 30")
        e(f"s_lshr_b32 s{self.sB}, s{sR}, 2\ns_mul_i32 s{self.sB}, s{self.sB}, 384")
        e(f"v_lshrrev_b32 v{t}, 3, v{L}\nv_add_u32 v{t}, s{self.sB}, v{t}\nv_mul_u32_u24 v{vD}, 1280, v{t}")
        e(f"v_bfe_u32 v{t}, v{L}, 4, 1\nv_lshlrev_b32 v{t}, 1, v{t}")
        e(f"v_and_b32 v{t+1}, 7, v{L}\nv_xor_b32 v{t}, v{t}, v{t+1}\nv_lshl_add_u32 v{vD}, v{t}, 4, v{vD}")
        e(f"v_xor_b32 v{t}, 64, v{vD}")
        for p in range(1, 4):
            e(f"v_add_u32 v{vD+p}, {p*(10240 - 1024)}, v{vD if p % 2 == 0 else t}")
        e(f"s_and_b32 s{self.sFl}, s{sR}, 3\ns_lshl_b32 s{self.sFl}, s{self.sFl}, 2\ns_add_u32 s{self.sFl}, s{self.sFl}, s{self.sWave}")

        def offs(i):
            e(f"s_add_u32 s{self.sA}, s{self.sFl}, {16*i}\ns_mul_i32 s{self.sB}, s{self.sA}, 205\ns_lshr_b32 s{self.sB}, s{self.sB}, 11")
            e(f"s_mul_i32 s{self.sC}, s{self.sB}, 10\ns_sub_u32 s{self.sC}, s{self.sA}, s{self.sC}")
            e(f"s_mul_i32 s{sLo+i}, s{self.sB}, 40960\ns_lshl_b32 s{self.sSpin}, s{self.sC}, 7\ns_add_u32 s{sLo+i}, s{sLo+i}, s{self.sSpin}")
            e(f"s_mul_i32 s{sSt+i}, s{self.sC}, {4*49152}\ns_lshl_b32 s{self.sSpin}, s{self.sB}, 10\ns_add_u32 s{sSt+i}, s{sSt+i}, s{self.sSpin}")
            if i == 7:
                e(f"s_cmp_ge_u32 s{self.sA}, 120\ns_cselect_b32 s{sLo+i}, 0x40000000, s{sLo+i}\ns_cselect_b32 s{sSt+i}, 0x40000000, s{sSt+i}")
        AH = c["rah"]
        for i in range(AH):
            offs(i)
        sM = e.s()
        e(f"s_lshl_b32 s{sM}, s{self.sWave}, 15")
        self.after_kernarg("s")
        self.late_srds()

        def loads(i):
            e(f"s_add_u32 m0, s{sM}, {i*4096}\ns_nop 0")
            for p in range(4):
                e.vmop(f"buffer_load_dwordx4 v{vD+p}, {sr(self.srdW2, 4)}, s{sLo+i} offen offset:{p*1024} lds", ("rp", i))
        for i in range(AH):
            loads(i)
        for i in range(AH, 8):
            offs(i)
        self.tr_lane_addr(vR, 2048, 1024, None)
        e(f"v_add_u32 v{vR}, s{sM}, v{vR}")
        for sub in range(1, 4):
            e(f"v_xor_b32 v{vR+sub}, {sub*32}, v{vR}")
        e(f"s_lshr_b32 s{self.sB}, s{sR}, 2\ns_mul_i32 s{self.sB}, s{self.sB}, 12288\nv_lshlrev_b32 v{vS}, 4, v{L}\nv_add_u32 v{vS}, s{self.sB}, v{vS}")
        for sub in range(1, 4):
            e(f"v_add_u32 v{vS+sub}, {sub*49152}, v{vS}")
        e(f"s_lshr_b32 s{self.sA}, s{sR}, 2\ns_lshl_b32 s{self.sA}, s{self.sA}, 9\ns_and_b32 s{self.sFl}, s{sR}, 3\ns_mul_i32 s{self.sFl}, s{self.sFl}, {c['fstr']}")
        e(f"s_add_u32 s{self.sFl}, s{self.sFl}, s{self.sA}\ns_add_u32 s{self.sFl}, s{self.sFl}, {FR_OFF}")
        for i in range(8):
            fb = F + (i & 1) * 16
            e.wait(vm=[("rp", i)])
            for sub in range(4):
                for h in range(2):
                    e.ldsop(f"ds_read_b64_tr_b16 {vr(fb + 4*sub + 2*h, 2)}, v{vR+sub} offset:{i*4096 + h*512}", ("rr", i, sub))
            if i + AH < 8:
                loads(i + AH)
            if i == 1:
                self.tok_probe()
            for sub in range(4):
                e.wait(lds=[("rr", i, sub)])
                e.vmop(f"buffer_store_dwordx4 {vr(fb + 4*sub, 4)}, v{vS+sub}, {sr(self.srdP, 4)}, s{sSt+i} offen {c['stf']}", ("rst", i))
            if i in (2 + c["rlag"], 4 + c["rlag"]):
                e.wait(vm=[("rst", i - c["rlag"])])
                if i == 2 + c["rlag"]:
                    e("s_waitcnt lgkmcnt(0)")
                    self.tok_check("L_tok2")
                e("s_barrier")
                self.publish(f"L_r{i}", self.sFl)
                e(f"s_add_u32 s{self.sFl}, s{self.sFl}, 2048")
                self.stamp()
        self.phase2_setup()
        e.wait(vm_all=True)
        e("s_barrier")
        self.publish("L_rlast", self.sFl)
        self.stamp()

    def build(self):
        e = self.e
        c = self.c
        head = HEADER + f"; @launch grid=(256,1,1) block=(256,1,1) lds={LDS_TOTAL}\n"
        self.prologue()
        mark = len(e.L)
        self.phase2_setup()
        del e.L[mark:]
        vmark, smark = e.vnext, e.snext
        self.sPr = (smark + 3) // 4 * 4
        e(f"s_cmp_ge_u32 s{self.sSlot}, 30\ns_cbranch_scc1 L_spare")
        self.phase1_setup()
        self.after_kernarg("w")
        self.srd_adj(self.srdW3, -2048)
        self.phase1_main()
        e("L_join:")
        if not c.get("p1only"):
            self.phase2_main()
            self.write_stamps()
        e(f"L_end_{KN}:\ns_endpgm")
        e("L_spare:")
        self.in_spare = True
        e.reset_counts()
        if c.get("p1only") == 2:
            e("s_endpgm")
        e.vnext, e.snext = vmark, smark
        self.repack()
        if c.get("p1only"):
            e("s_endpgm")
        e(f"s_mov_b32 s{self.sFl}, {FR_OFF + 16384}")
        sq = self.seam_queue("s")
        self.r1probe[1]()
        for _, f in sq:
            f()
        e("s_waitcnt vmcnt(0)")
        e("s_branch L_join")
        e("\n".join(self.cold))
        e("L_codeend:")
        body = "\n".join(e.L)
        kd = f""".section .rodata,"a"
.p2align 6
.amdhsa_kernel {KN}
  .amdhsa_next_free_vgpr 512
  .amdhsa_next_free_sgpr 102
  .amdhsa_accum_offset 256
  .amdhsa_group_segment_fixed_size 0
  .amdhsa_kernarg_size 56
  .amdhsa_user_sgpr_count 2
  .amdhsa_user_sgpr_kernarg_segment_ptr 1
  .amdhsa_system_sgpr_workgroup_id_x 1
  .amdhsa_float_denorm_mode_32 3
.end_amdhsa_kernel
"""
        return head + '.amdgcn_target "amdgcn-amd-amdhsa--gfx950"\n.text\n' + body + "\n" + kd


def about_dma(vq):
    return bool(vq) and getattr(vq[0][1], "__name__", "") != "w2"


def parse_kw(args):
    kw = {}
    for a in args:
        k, v = a.split("=", 1)
        try:
            v = eval(v)
        except Exception:
            pass
        kw[k] = v
    return kw


if __name__ == "__main__":
    out = sys.argv[1]
    open(out, "w").write(Gen(**parse_kw(sys.argv[2:])).build())
```

```python
import sys

NAME = "standalone__glu_gated_swiglu__prompt"
KN = NAME + "_kernel"

X_BYTES = 2048 * 640 * 2
W_BYTES = 640 * 1536 * 2
OUT_BYTES = 2048 * 640 * 2
H_BYTES = 128 * 49152
W2P_OFF = 8 << 20
W2P_BYTES = 40 * 49152
FLAG_OFF = 12 << 20
FLAG_BYTES = 262144
FR_OFF = 196608
FSTAGE = 40960
STAMP_OFF = 16 << 20

NU = 13
XS = NU * 2048
STAGE = XS + 16384
NSTAGE = 3
RED0 = NSTAGE * STAGE
TST = 64
RST = 336
SST = 16 * RST
REDSZ = 4 * SST
LDS_TOTAL = RED0 + REDSZ

HEADER = """; Kernarg layout for this problem (56 bytes, ptrs only, base s[0:1]):
;   offset  24: d_in[3] w2  shape=(1536, 640) dtype=bfloat16 strides=(1280, 2) contiguous=True
"""


DOC = """;
; out = (silu(x @ w1) * (x @ w3)) @ w2 in one launch, one 4-wave workgroup per CU (id = slot*8 + die).
; Slots 30-31 rewrite w2 in MFMA fragment order (ws + 8 MiB) meanwhile.
; Phase 2 (all): tile of four 16-row units x 80 columns; each wave keeps its K quarter of w2 in AGPRs, streams h from
;   memory, and the four partial sums are added through LDS.
; Hand-offs: write-through stores, counted waits, a workgroup barrier, then a flag word (ws + 12 MiB) holding a token that
;   workgroup 0 publishes in d_debug for this launch. Readers probe the flags with scalar loads and fall back to bounded
;   vector polling until they equal the token; the data itself is read with sc1 loads.
"""


class Em:
    def __init__(self):
        self.L = []
        self.reset_counts()
        self.vnext = 1
        self.snext = 4
        self.skip = lambda kind, tag: False
        self.t = self.tm = self.tv = 0

    def __call__(self, s):
        for line in s.split("\n"):
            line = line.strip()
            if line:
                self.L.append(line if line.endswith(":") else "    " + line)
                if not line.startswith(";"):
                    self.tick(line)

    def tick(self, line):
        op = line.split(" ")[0]
        if op.startswith("v_mfma"):
            self.t = max(self.t, self.tm + 16)
            self.tm = self.t
            self.t += 4
        elif op.startswith("v_"):
            self.t = max(self.t, self.tm + 8) + (8 if op.startswith(("v_exp", "v_rcp", "v_perm")) else 4)
        elif op.startswith(("buffer", "global")):
            self.t += 12
            self.tv = self.t
        elif op.startswith("ds_write"):
            self.t += 16
        elif op.startswith(("s_waitcnt", "s_nop")) or op.endswith(":"):
            self.t += 1
        else:
            self.t += 4

    def v(self, n=1, align=1):
        b = (self.vnext + align - 1) // align * align
        self.vnext = b + n
        assert self.vnext <= 256, "out of arch VGPRs"
        return b

    def s(self, n=1, align=1):
        b = (self.snext + align - 1) // align * align
        self.snext = b + n
        assert self.snext <= 102, "out of SGPRs"
        return b

    def ldsop(self, txt, tag=None):
        if not self.skip("lds", tag):
            self(txt)
        self.lds.append(tag)

    def vmop(self, txt, tag=None):
        if not self.skip("vm", tag):
            self(txt)
        self.vm.append(tag)

    def _need(self, ops, tags):
        idx = -1
        for t in tags:
            c = [i for i, x in enumerate(ops) if x == t]
            assert c, f"tag {t} never issued"
            idx = max(idx, c[-1])
        return idx + 1

    def wait(self, lds=(), vm=(), lds_all=False, vm_all=False):
        parts = []
        n = len(self.vm) if vm_all else (self._need(self.vm, vm) if vm else 0)
        if n > self.vm_done:
            cnt = min(len(self.vm) - n, 63)
            parts.append(f"vmcnt({cnt})")
            self.vm_done = len(self.vm) - cnt
        n = len(self.lds) if lds_all else (self._need(self.lds, lds) if lds else 0)
        if n > self.lds_done:
            cnt = min(len(self.lds) - n, 15)
            parts.append(f"lgkmcnt({cnt})")
            self.lds_done = len(self.lds) - cnt
        if parts:
            self("s_waitcnt " + " ".join(parts))

    def reset_counts(self):
        self.lds, self.vm, self.lds_done, self.vm_done = [], [], 0, 0


def vr(b, n):
    return f"v[{b}:{b+n-1}]" if n > 1 else f"v{b}"


def ar(b, n):
    return f"a[{b}:{b+n-1}]"


def sr(b, n):
    return f"s[{b}:{b+n-1}]" if n > 1 else f"s{b}"


DEF = dict(D=9, E=2, stamps=False, G=5, lead=1, xm=0, map2="8x4", stf="sc1", ldf="sc1", codepf="dist", outflags="sc1",
           npre=20, pre0=11, tail=13, PF=9, HR=12, pollks=5, fA=6, fB=10, fC=-1, fD=1, align=12,
           tback=48, tdma=66, tw2=90, crit=3, rpv=1, rpos=0, rpub=3, rsk=8, l2pf=0, w2at=7, sleep=8, grot=0, wspace=1, ssleep=8, rah=3, rlag=1, rpd=8, r1d=7, fstr=4, tw2a=60, ua=2, g2late=0, bpos=12, chain=2, gsh=1, xlate=0, klate=0, tdma9=66, await2=0, g0=1, lead0=1, lsh=0, inp2=0, wper=2, cpf=None, fastto=1, spf=(2, 3, 4), hfirst=44, pd0=10, epiA=4, epiB=4)


class Gen:
    def __init__(self, **kw):
        self.c = dict(DEF)
        self.c["await"] = 1
        self.c.update(kw)
        self.e = Em()
        c = self.c

        def skip(kind, tag):
            if kind == "vm" and tag in c.get("skipvm", ()):
                return True
            if not isinstance(tag, tuple):
                return False
            if kind == "vm" and tag[0] in c.get("skipvm", ()):
                return True
            if c.get("nohst") and kind == "vm" and tag[0] == "hst":
                return True
            if c.get("no_dma") and kind == "vm" and tag[0] == "d" and tag[1] >= 3:
                return True
            if c.get("no_xread") and kind == "lds" and tag[0] == "x" and tag[1] >= 26:
                return True
            return False
        self.e.skip = skip
        self.nstamp = 0
        self.cold = []

    def stamp(self):
        e = self.e
        if self.c.get("ms") is not None:
            if self.nstamp + (100 if getattr(self, "in_spare", False) else 0) == self.c["ms"]:
                e("s_memrealtime s[98:99]")
            self.nstamp += 1
            return
        if not self.c["stamps"]:
            return
        i = self.nstamp
        self.nstamp += 1
        if self.c["stamps"] == 9 and i != 30:
            return
        assert i < 31
        e(f"s_memtime {sr(self.sT, 2)}\ns_memrealtime {sr(self.sT3, 2)}")
        e("s_waitcnt lgkmcnt(0)")
        e.lds_done = len(e.lds)
        e(f"v_writelane_b32 v{self.vStamp}, s{self.sT}, {i}\nv_writelane_b32 v{self.vStamp}, s{self.sT3}, {32 + i}")

    def write_stamps(self):
        e = self.e
        if self.c.get("ms") is not None:
            e("s_waitcnt lgkmcnt(0)\nL_dly:\ns_memrealtime s[100:101]\ns_waitcnt lgkmcnt(0)\ns_sub_u32 s100, s100, s98\ns_cmp_lt_u32 s100, 3000\ns_cbranch_scc1 L_dly")
            return
        if not self.c["stamps"]:
            return
        keep = self.nstamp
        self.nstamp = 30
        self.stamp()
        self.nstamp = keep
        e(f"s_lshl_b32 s{self.sT}, s2, 2\ns_add_u32 s{self.sT}, s{self.sT}, s{self.sWave}\ns_lshl_b32 s{self.sT}, s{self.sT}, 8")
        e(f"s_add_u32 s{self.sT}, s{self.sT}, {STAMP_OFF}")
        e(f"v_lshlrev_b32 v{self.vT}, 2, v{self.vLane}\nv_add_u32 v{self.vT}, s{self.sT}, v{self.vT}")
        e(f"s_mov_b32 s{self.srdH+2}, 0x10000000")
        e(f"buffer_store_dword v{self.vStamp}, v{self.vT}, {sr(self.srdH, 4)}, 0 offen")
        e("s_waitcnt vmcnt(0)")

    def srd_adj(self, dst, addoff):
        e = self.e
        if addoff > 0:
            e(f"s_add_u32 s{dst}, s{dst}, {addoff}\ns_addc_u32 s{dst+1}, s{dst+1}, 0")
        else:
            e(f"s_sub_u32 s{dst}, s{dst}, {-addoff}\ns_subb_u32 s{dst+1}, s{dst+1}, 0")

    def srd_const(self, dst, nbytes):
        self.e(f"s_mov_b32 s{dst+2}, {nbytes}\ns_mov_b32 s{dst+3}, 0x20000")

    def tr_lane_addr(self, dst, qstride_hi, qstride_lo, sub):
        e = self.e
        t, L = self.vT, self.vLane
        e(f"v_bfe_u32 v{t}, v{L}, 5, 1\nv_mul_u32_u24 v{dst}, {qstride_hi}, v{t}")
        e(f"v_bfe_u32 v{t}, v{L}, 4, 1\nv_mul_u32_u24 v{t+1}, {qstride_lo}, v{t}\nv_add_u32 v{dst}, v{dst}, v{t+1}")
        e(f"v_lshlrev_b32 v{t+1}, 2, v{t}")
        e(f"v_bfe_u32 v{t}, v{L}, 3, 1\nv_lshl_add_u32 v{t+1}, v{t}, 1, v{t+1}")
        e(f"v_bfe_u32 v{t}, v{L}, 1, 1")
        if sub is not None:
            e(f"s_lshl_b32 s{self.sA}, s{sub}, 1\nv_add_u32 v{t}, s{self.sA}, v{t}")
        e(f"v_xor_b32 v{t}, v{t}, v{t+1}\nv_lshl_add_u32 v{dst}, v{t}, 4, v{dst}")
        e(f"v_bfe_u32 v{t}, v{L}, 2, 2\nv_lshl_add_u32 v{dst}, v{t}, 7, v{dst}")
        e(f"v_and_b32 v{t}, 1, v{L}\nv_lshl_add_u32 v{dst}, v{t}, 3, v{dst}")

    def spin(self, label, load, check):
        e = self.e
        if self.c.get("nocheck"):
            return
        check()
        e(f"s_cbranch_vccz {label}_out")
        e(f"s_mov_b32 s{self.sSpin}, 0x40000")
        e(f"{label}_spin:")
        e(f"s_sleep {self.c['ssleep'] if label.endswith('s') else self.c['sleep']}")
        e(load)
        e("s_waitcnt vmcnt(0)")
        check()
        e(f"s_cbranch_vccz {label}_out")
        e(f"s_sub_u32 s{self.sSpin}, s{self.sSpin}, 1\ns_cbranch_scc0 {label}_spin")
        e(f"{label}_out:")

    def tok_probe(self):
        self.e(f"s_buffer_load_dword s{self.sTok}, {sr(self.srdD, 4)}, 0")

    def tok_check(self, label):
        e = self.e
        e(f"s_cmp_eq_u32 s{self.sTok}, 0\ns_cbranch_scc1 {label}_slow\n{label}_ok:")
        e(f"v_mov_b32 v{self.vTok}, s{self.sTok}\ns_mov_b32 s{self.sTok+1}, s{self.sTok}")
        self.cold += [f"{label}_slow:", f"s_mov_b32 s{self.sSpin}, 0x40000", f"{label}_spin:",
                      f"buffer_load_dword v{self.vTok}, off, {sr(self.srdD, 4)}, 0 sc1", "s_waitcnt vmcnt(0)",
                      f"v_readfirstlane_b32 s{self.sTok}, v{self.vTok}", "s_nop 3", f"s_cmp_lg_u32 s{self.sTok}, 0", f"s_cbranch_scc1 {label}_ok",
                      "s_sleep 2", f"s_sub_u32 s{self.sSpin}, s{self.sSpin}, 1", f"s_cbranch_scc0 {label}_spin", f"s_branch {label}_ok"]

    def probe(self, soff, imm, n):
        e = self.e
        if ("probe",)[0] in self.c.get("skipvm", ()):
            return
        for i in range(0, n, 2):
            e(f"s_mov_b64 {sr(self.sPr+i, 2)}, 0")
        if self.c["fstr"] == 4:
            w = 8 if n > 4 else 4
            e(f"s_buffer_load_dwordx{w} {sr(self.sPr, w)}, {sr(self.srdF, 4)}, s{soff} offset:{imm}")
            return
        for i in range(n):
            e(f"s_buffer_load_dword s{self.sPr+i}, {sr(self.srdF, 4)}, s{soff} offset:{imm + self.c['fstr']*i}")

    def probe_check(self, label, vaddr, soff, imm, n):
        e = self.e
        if self.c.get("nocheck"):
            return

        for i in range(0, n, 2):
            e(f"s_cmp_eq_u64 {sr(self.sPr+i, 2)}, {sr(self.sTok, 2)}\ns_cbranch_scc0 {label}_slow")
        e(f"{label}_out:")
        k = [f"{label}_slow:", "s_waitcnt lgkmcnt(0)"]
        ident = ["L_pr1", "L_pr2", "L_pr3", "L_ph0", "L_ph1", "L_ph2", "L_ph3"].index(label.rstrip("s"))
        if self.c["stamps"] == 9:
            k.append(f"v_writelane_b32 v{self.vStamp}, 1, {2*ident + 1}")
        for i in range(0, n, 2):
            k += [f"s_cmp_eq_u64 {sr(self.sPr+i, 2)}, {sr(self.sTok, 2)}", f"s_cbranch_scc0 {label}_vec" if i + 2 < n else f"s_cbranch_scc1 {label}_out"]
        k += [f"{label}_vec:"] + ([f"v_writelane_b32 v{self.vStamp}, 1, {2*ident + 2}"] if self.c["stamps"] == 9 else [])
        k += [f"s_add_u32 s{self.sA}, s{soff}, {imm}", f"s_mov_b32 s{self.sSpin}, 0x40000", f"{label}_spin:",
              f"buffer_load_dword v{self.vPoll}, v{vaddr}, {sr(self.srdF, 4)}, s{self.sA} offen sc1", "s_waitcnt vmcnt(0)",
              f"v_cmp_ne_u32 vcc, v{self.vPoll}, v{self.vTok}", f"s_cbranch_vccz {label}_out",
              f"s_sleep {self.c['ssleep'] if label.endswith('s') else self.c['sleep']}",
              f"s_sub_u32 s{self.sSpin}, s{self.sSpin}, 1", f"s_cbranch_scc0 {label}_spin", f"s_branch {label}_out"]
        self.cold += k

    def publish(self, label, sreg, srd=None, cond=None):
        e = self.e
        if self.c.get("noflag"):
            return
        e(f"s_cmp_lg_u32 s{self.sWave if cond is None else cond}, 0\ns_cbranch_scc1 {label}")
        e(f"s_mov_b64 exec, 1\nbuffer_store_dword v{self.vTok}, off, {sr(self.srdF if srd is None else srd, 4)}, s{sreg} sc1\ns_mov_b64 exec, -1")
        e(f"{label}:")

    def publish_h(self, pr, stage):
        e = self.e
        e.wait(vm=[("hst", pr)])
        e("s_barrier")
        self.publish(f"L_pub{stage}", self.sFl)
        if stage < 4:
            e(f"s_add_u32 s{self.sFl}, s{self.sFl}, {FSTAGE}")

    def prologue(self):
        e = self.e
        c = self.c
        e(f".p2align {c['align']}\n.globl {KN}\n.p2align 8\n.type {KN},@function\n{KN}:")
        self.srdX, self.srdW1, self.srdW3, self.srdW2 = (e.s(4, 4) for _ in range(4))
        self.srdOut, self.srdH, self.srdP, self.srdD, self.srdF = (e.s(4, 4) for _ in range(5))
        self.sT, self.sT2 = e.s(2, 2), e.s(2, 2)
        self.sWave, self.sXcd, self.sSlot = e.s(), e.s(), e.s()
        self.sA, self.sB, self.sC, self.sSpin, self.sFl = (e.s() for _ in range(5))
        if c["stamps"]:
            self.vStamp = e.v()
            self.sT3, self.sT4 = e.s(2, 2), e.s(2, 2)
        self.vLane = e.v()
        self.vT = e.v(4, 4)
        self.vTok, self.vPoll = e.v(), e.v()
        self.sTok = e.s(2, 2)
        e(f"s_cmp_ge_u32 s2, 256\ns_cbranch_scc1 L_end_{KN}")
        if c["codepf"]:
            e(f"s_getpc_b64 {sr(self.sT, 2)}")
        for srd, off in ((self.srdW1, 8), (self.srdW3, 16), (self.srdX, 0)):
            e(f"s_load_dwordx2 {sr(srd, 2)}, s[0:1], {off}")
        if c["stamps"] or not c["klate"]:
            e(f"s_memrealtime {sr(self.sT2, 2)}")
        if not c["klate"]:
            self.late_kernargs()
        if c.get("ms") is not None:
            e("s_memrealtime s[98:99]")
        if c["stamps"]:
            e(f"v_mov_b32 v{self.vStamp}, 0")
            e(f"s_memtime {sr(self.sT4, 2)}")
        e(f"v_lshrrev_b32 v{self.vT}, 6, v0")
        e(f"v_and_b32 v{self.vLane}, 63, v0")
        e(f"v_readfirstlane_b32 s{self.sWave}, v{self.vT}")
        if c["codepf"] == "dist":
            t = self.vT + 1
            e(f"s_lshr_b32 s{self.sSlot}, s2, 3\nv_lshrrev_b32 v{t}, 5, v0\ns_lshl_b32 s{self.sA}, s{self.sSlot}, 3\nv_add_u32 v{t}, s{self.sA}, v{t}")
            e(f"v_lshlrev_b32 v{t}, 7, v{t}")
            e(f"s_and_b32 s{self.sT}, s{self.sT}, 0xffffff00")
            e(f"v_min_u32 v{t}, L_codeend - {KN} - 4, v{t}")
            e.vmop(f"global_load_dword v{self.vPoll}, v{t}, {sr(self.sT, 2)}", "codepf")
        elif c["codepf"]:
            t = self.vT + 1
            e(f"v_lshlrev_b32 v{t}, 7, v0")
            e(f"s_and_b32 s{self.sT}, s{self.sT}, 0xffffff00")
            e(f"v_min_u32 v{t}, L_codeend - {KN} - 4, v{t}")
            e.vmop(f"global_load_dword v{self.vPoll}, v{t}, {sr(self.sT, 2)}", "codepf")
        e(f"s_and_b32 s{self.sXcd}, s2, 7\ns_lshr_b32 s{self.sSlot}, s2, 3")
        for dst, nbytes in ((self.srdW1, W_BYTES), (self.srdW3, W_BYTES + 2048)):
            self.srd_const(dst, nbytes)

    def late_kernargs(self):
        for srd, off in ((self.srdW2, 24), (self.srdP, 48), (self.srdD, 40), (self.srdOut, 32), (self.srdH, 48), (self.srdF, 48)):
            self.e(f"s_load_dwordx2 {sr(srd, 2)}, s[0:1], {off}")

    def after_kernarg(self, tag):
        e = self.e
        e("s_waitcnt lgkmcnt(0)")
        if self.c.get("ms") is not None:
            self.nstamp = 1
            self.stamp()
        if self.c["stamps"]:
            e(f"v_writelane_b32 v{self.vStamp}, s{self.sT4}, 0\nv_writelane_b32 v{self.vStamp}, s{self.sT2}, 32")
            self.nstamp = 1
            self.stamp()

    def late_srds(self):
        for dst, nbytes in ((self.srdW2, W_BYTES), (self.srdOut, OUT_BYTES), (self.srdH, H_BYTES), (self.srdP, W2P_BYTES),
                            (self.srdF, FLAG_BYTES)):
            self.srd_const(dst, nbytes)
        self.srd_adj(self.srdP, W2P_OFF)
        self.srd_adj(self.srdF, FLAG_OFF)

    def publish_token(self):
        e = self.e
        t = self.vT
        e(f"s_or_b32 s{self.sA}, s2, s{self.sWave}\ns_cmp_lg_u32 s{self.sA}, 0\ns_cbranch_scc1 L_notok")
        e(f"s_max_u32 s{self.sA}, s{self.sT2}, 1\nv_mov_b32 v{t}, s{self.sA}")
        e(f"s_mov_b64 exec, 1\nbuffer_store_dword v{t}, off, {sr(self.srdD, 4)}, 0 sc1\ns_mov_b64 exec, -1")
        e("L_notok:")

    def phase1_setup(self):
        e = self.e
        c = self.c
        t, L = self.vT, self.vLane
        self.sRb, self.sCh = e.s(), e.s()
        self.sSoX, self.sSoW = e.s(10), e.s()
        self.sMx, self.sMw = e.s(), e.s()
        sG, sSig = e.s(), e.s()
        e(f"s_mul_i32 s{self.sA}, s{self.sSlot}, 43\ns_lshr_b32 s{self.sA}, s{self.sA}, 8")
        e(f"s_mul_i32 s{self.sB}, s{self.sA}, 6\ns_sub_u32 s{self.sB}, s{self.sSlot}, s{self.sB}")
        e(f"s_and_b32 s{self.sC}, s{self.sXcd}, 1\ns_mul_i32 s{self.sC}, s{self.sC}, 5\ns_add_u32 s{self.sRb}, s{self.sC}, s{self.sA}")
        e(f"s_lshr_b32 s{self.sC}, s{self.sXcd}, 1\ns_mul_i32 s{self.sC}, s{self.sC}, 6\ns_add_u32 s{self.sCh}, s{self.sC}, s{self.sB}")
        G = c["G"]
        if c["cpf"]:
            self.sRbl, self.sChl = e.s(), e.s()
            e(f"s_mov_b32 s{self.sRbl}, s{self.sA}\ns_mov_b32 s{self.sChl}, s{self.sB}")
        e(f"s_add_u32 s{sG}, s{self.sA}, s{self.sB}")
        if G == 1:
            e(f"s_mov_b32 s{sG}, 0")
        elif G == 2:
            e(f"s_and_b32 s{sG}, s{sG}, 1")
        else:
            e(f"s_mul_i32 s{self.sC}, s{sG}, {-(-256 // G)}\ns_lshr_b32 s{self.sC}, s{self.sC}, 8\ns_mul_i32 s{self.sC}, s{self.sC}, {G}\ns_sub_u32 s{sG}, s{sG}, s{self.sC}")
        if c["xm"]:
            e(f"s_lshr_b32 s{self.sC}, s{self.sXcd}, 1\ns_add_u32 s{self.sC}, s{self.sC}, s{self.sXcd}\ns_and_b32 s{sSig}, s{self.sC}, 1")
        self.sG, self.sSig = sG, sSig
        self.slab_off(0)
        self.vXo = e.v(7)
        self.vWo = e.v(2)
        e(f"s_lshl_b32 s{self.sA}, s{self.sWave}, 4\nv_lshrrev_b32 v{t+3}, 3, v{L}\nv_add_u32 v{t}, s{self.sA}, v{t+3}")
        e(f"v_mul_u32_u24 v{t}, 3072, v{t}\nv_and_b32 v{t+2}, 7, v{L}")
        e(f"v_bfe_u32 v{t+1}, v{L}, 4, 1\nv_lshlrev_b32 v{t+1}, 1, v{t+1}\nv_xor_b32 v{t+1}, v{t+1}, v{t+2}")
        e(f"v_lshl_add_u32 v{t}, v{t+1}, 4, v{t}\ns_lshl_b32 s{self.sA}, s{self.sCh}, 7\nv_add_u32 v{self.vWo}, s{self.sA}, v{t}")
        e(f"v_xor_b32 v{t}, 64, v{self.vWo}\nv_add_u32 v{self.vWo+1}, {8*3072 - 1024}, v{t}")
        e(f"s_lshl_b32 s{self.sMw}, s{self.sWave}, 12\ns_add_u32 s{self.sMw}, s{self.sMw}, {XS}")
        if not c["xlate"]:
            self.x_setup()

    def x_setup(self):
        e = self.e
        t = self.vT
        e(f"s_mul_i32 s{self.sA}, s{self.sWave}, 52\nv_add_u32 v{t}, s{self.sA}, v{t+3}")
        e(f"v_bfe_u32 v{t+1}, v{t}, 1, 3\nv_xor_b32 v{t+1}, v{t+1}, v{t+2}")
        e(f"s_mul_i32 s{self.sB}, s{self.sRb}, 208\nv_add_u32 v{t}, s{self.sB}, v{t}\nv_mul_u32_u24 v{t}, 1280, v{t}")
        e(f"v_lshl_add_u32 v{self.vXo}, v{t+1}, 4, v{t}")
        e(f"v_xor_b32 v{t+1}, 64, v{self.vXo}")
        for i in range(1, 7):
            src = self.vXo if i % 2 == 0 else t + 1
            e(f"v_add_u32 v{self.vXo+i}, {i*10240 - (i & 3)*1024}, v{src}")
        e(f"s_mul_i32 s{self.sMx}, s{self.sWave}, 6656")
        self.srd_const(self.srdX, X_BYTES)

    def slab_off(self, s):
        e = self.e
        G, xm = self.c["G"], self.c["xm"]
        base = s // G * G
        d = self.sSoX + s
        if self.c.get("lead"):
            ld = self.c["lead"]
            e(f"s_mov_b32 s{d}, {s}")
            for cl in range(5):
                o = list(range(10))
                g0 = self.c["g0"]
                o[:g0] = [(i + cl) % g0 for i in range(g0)]
                for a in range(max(g0, self.c["lead0"]), 10):
                    if (a - ld) % 5 == (cl + self.c["lsh"]) % 5:
                        o.remove(a)
                        o.insert(a - ld, a)
                if o[s] != s:
                    e(f"s_cmp_eq_u32 s{self.sG}, {cl}\ns_cselect_b32 s{d}, {o[s]}, s{d}")
        elif base + G > 10 or G == 1:
            e(f"s_mov_b32 s{d}, {s}")
        elif G == 2:
            e(f"s_xor_b32 s{d}, s{self.sG}, {s}")
        else:
            e(f"s_add_u32 s{d}, s{self.sG}, {s}\ns_sub_u32 s{self.sC}, s{d}, {G}\ns_cmp_ge_u32 s{d}, {base + G}\ns_cselect_b32 s{d}, s{self.sC}, s{d}")
        if xm == "rev":
            e(f"s_sub_u32 s{self.sC}, 9, s{d}\ns_cmp_eq_u32 s{self.sSig}, 1\ns_cselect_b32 s{d}, s{self.sC}, s{d}")
        elif xm:
            e(f"s_mul_i32 s{self.sC}, s{self.sSig}, {xm}\ns_add_u32 s{d}, s{d}, s{self.sC}\ns_sub_u32 s{self.sC}, s{d}, 10\ns_cmp_ge_u32 s{d}, 10\ns_cselect_b32 s{d}, s{self.sC}, s{d}")
        e(f"s_lshl_b32 s{d}, s{d}, 7")

    def dma_list(self, s):
        e = self.e
        sb = (s % NSTAGE) * STAGE
        out = []
        for m in range(2):
            for j in range(2):
                def f(m=m, j=j):
                    srd = self.srdW1 if m == 0 else self.srdW3
                    e.vmop(f"buffer_load_dwordx4 v{self.vWo+j}, {sr(srd, 4)}, s{self.sSoW} offen offset:{m*2048 + j*1024} lds", ("d", s))
                out.append((f"s_add_u32 m0, s{self.sMw}, {sb}\ns_mul_i32 s{self.sSoW}, s{self.sSoX+s}, 1536" if m + j == 0 else None, f))
        for i in range(7):
            def f(i=i):
                if i == 6:
                    e("s_mov_b32 exec_hi, 0")
                e.vmop(f"buffer_load_dwordx4 v{self.vXo+i}, {sr(self.srdX, 4)}, s{self.sSoX+s} offen offset:{(i & 3)*1024} lds", ("d", s))
                if i == 6:
                    e("s_mov_b32 exec_hi, -1")
            out.append((f"s_add_u32 m0, s{self.sMx}, {sb + (i >> 2)*4096}" if i % 4 == 0 else None, f))
        return out

    def epi_ops(self, u):
        g = self.acc + u * 8
        up = g + 4
        T = self.tmp + (u & 1) * 4
        dst = self.outb + ((u >> 1) & 1) * 4 + (u & 1) * 2
        ops = []
        for i in range(4):
            ops.append((1, f"v_mul_f32 v{T+i}, s{self.sK}, v{g+i}"))
        for i in range(4):
            ops.append((2, f"v_exp_f32 v{T+i}, v{T+i}"))
            ops.append((1, f"v_mul_f32 v{g+i}, v{g+i}, v{up+i}"))
        for i in range(4):
            ops.append((1, f"v_add_f32 v{T+i}, 1.0, v{T+i}"))
        for i in range(4):
            ops.append((2, f"v_rcp_f32 v{T+i}, v{T+i}"))
        for i in range(4):
            ops.append((1, f"v_mul_f32 v{g+i}, v{g+i}, v{T+i}"))
        ops.append((1, f"v_cvt_pk_bf16_f32 v{dst}, v{g}, v{g+1}"))
        ops.append((1, f"v_cvt_pk_bf16_f32 v{dst+1}, v{g+2}, v{g+3}"))
        return ops

    def phase1_main(self):
        e = self.e
        c = self.c
        D, E = c["D"], c["E"]
        R = D + 2
        t, L = self.vT, self.vLane
        first = self.dma_list(0) + self.dma_list(1) + self.dma_list(2)
        def coop(s0, n):
            def f():
                assert not c["xm"]
                e(f"s_mov_b64 exec, {(1 << (4*n)) - 1}\ns_mov_b32 s{self.sA}, {s0*196608}")
                e.vmop(f"buffer_load_dword v{self.vPoll}, v{self.vPw}, {sr(self.srdW1, 4)}, s{self.sA} offen", "cpf")
                e.vmop(f"buffer_load_dword v{self.vPoll}, v{self.vPw}, {sr(self.srdW3, 4)}, s{self.sA} offen offset:2048", "cpf")
                e(f"s_mov_b64 exec, {(1 << (9*n)) - 1}")
                e.vmop(f"buffer_load_dword v{self.vPoll}, v{self.vPx}, {sr(self.srdX, 4)}, 0 offen offset:{s0*128}", "cpf")
                e("s_mov_b64 exec, -1")
            return (None, f)
        for pos, s0, n in reversed(c["cpf"] or ()):
            first.insert(pos, coop(s0, n))
        npre = c["npre"] + len(c["cpf"] or ())
        assert npre <= 26
        def emit_now(items):
            for m0, f in items:
                if m0:
                    e(m0 + "\ns_nop 0")
                f()
        pre0 = c["pre0"]
        emit_now(first[:4])
        if c["klate"]:
            self.late_kernargs()
            if not c["stamps"]:
                e(f"s_memrealtime {sr(self.sT2, 2)}")
        if c["xlate"]:
            self.x_setup()
        emit_now(first[4:min(pre0, 11)])
        self.slab_off(1)
        emit_now(first[11:pre0])
        self.acc = e.v(NU * 8, 4)
        self.xr = e.v(R * 4, 4)
        NW = 5
        self.wf = e.v(8 * NW, 4)
        vXa, vWa = e.v(6), e.v(3)
        self.vHs = e.v()
        self.tmp = e.v(8, 4)
        self.outb = e.v(8, 4)
        self.sK, self.sHo = e.s(), e.s()
        self.srd_const(self.srdD, 256)
        e("s_waitcnt lgkmcnt(0)")
        self.publish_token()
        if c.get("tlbw"):
            e(f"v_lshlrev_b32 v{t}, 21, v{L}\ns_mov_b32 s{self.srdH+2}, {14 << 20}\ns_mov_b32 s{self.srdH+3}, 0x20000")
            e(f"s_mov_b32 s{self.srdOut+2}, {OUT_BYTES}\ns_mov_b32 s{self.srdOut+3}, 0x20000\ns_mov_b64 exec, 127")
            e.vmop(f"buffer_load_dword v{self.vPoll}, v{t}, {sr(self.srdH, 4)}, 0 offen", "tlbw")
            e.vmop(f"buffer_load_dword v{self.vPoll}, v{t}, {sr(self.srdOut, 4)}, 0 offen", "tlbw")
            e("s_mov_b64 exec, -1")
        self.slab_off(2)
        e(f"v_and_b32 v{t}, 15, v{L}\nv_bfe_u32 v{t+1}, v{L}, 1, 3\nv_lshrrev_b32 v{t+2}, 4, v{L}\nv_xor_b32 v{t+1}, v{t+1}, v{t+2}")
        e(f"v_lshlrev_b32 v{t}, 7, v{t}\nv_lshl_add_u32 v{vXa}, v{t+1}, 4, v{t}\nv_xor_b32 v{vXa+1}, 64, v{vXa}")
        self.tr_lane_addr(vWa, 4096, 1024, self.sWave)
        e(f"v_add_u32 v{vWa}, {XS}, v{vWa}")
        emit_now(first[pre0:npre])
        vq = list(first[npre:])
        mark = len(e.L)
        tsave = (e.t, e.tm, e.tv)
        self.slab_off(3)
        for st in (1, 2):
            e(f"v_add_u32 v{vXa+2*st}, {st*STAGE}, v{vXa}\nv_add_u32 v{vXa+2*st+1}, {st*STAGE}, v{vXa+1}")
        e(f"v_add_u32 v{vWa+1}, {STAGE}, v{vWa}\nv_add_u32 v{vWa+2}, {2*STAGE}, v{vWa}")
        self.late_srds()
        e("MARK1:")
        self.slab_off(4)
        e("MARK2:")
        for sx in range(5, 10):
            self.slab_off(sx)
        e("MARK3:")
        e(f"s_mov_b32 s{self.sK}, 0xbfb8aa3b")
        e(f"v_bfe_u32 v{t}, v{L}, 4, 1\nv_mul_u32_u24 v{self.vHs}, 49152, v{t}")
        e(f"v_bfe_u32 v{t}, v{L}, 5, 1\nv_lshl_add_u32 v{self.vHs}, v{t}, 8, v{self.vHs}")
        e(f"v_and_b32 v{t}, 15, v{L}\nv_lshl_add_u32 v{self.vHs}, v{t}, 4, v{self.vHs}")
        e(f"s_mul_i32 s{self.sA}, s{self.sRb}, {NU*49152}\ns_lshl_b32 s{self.sB}, s{self.sCh}, 11\ns_add_u32 s{self.sA}, s{self.sA}, s{self.sB}")
        e(f"s_lshl_b32 s{self.sB}, s{self.sWave}, 9\ns_add_u32 s{self.sA}, s{self.sA}, s{self.sB}")
        e(f"v_add_u32 v{self.vHs}, s{self.sA}, v{self.vHs}")
        e(f"s_lshr_b32 s{self.sA}, s{self.sXcd}, 1\ns_mul_i32 s{self.sB}, s{self.sA}, 6\ns_sub_u32 s{self.sB}, s{self.sCh}, s{self.sB}")
        e(f"s_lshl_b32 s{self.sC}, s{self.sRb}, 2\ns_add_u32 s{self.sA}, s{self.sA}, s{self.sC}\ns_lshl_b32 s{self.sA}, s{self.sA}, 10")
        e(f"s_mul_i32 s{self.sB}, s{self.sB}, {c['fstr']}")
        e(f"s_add_u32 s{self.sFl}, s{self.sA}, s{self.sB}")
        self.phase2_setup()
        e("MARK5:")
        lines = [l.strip() for l in e.L[mark:]]
        del e.L[mark:]
        e.t, e.tm, e.tv = tsave
        setup = []
        for l in lines:
            if l.split()[0] in ("s_cselect_b32", "s_addc_u32", "s_subb_u32", "s_nop", "v_cndmask_b32"):
                setup[-1] += "\n" + l
            else:
                setup.append(l)

        def setup_upto(m):
            while m in setup:
                it = setup.pop(0)
                if not it.startswith("MARK"):
                    e(it)

        seq = [(u, s, ks) for s in range(8) for ks in range(2) for u in range(NU)]
        k = c["tail"]
        seq += [(u, 8, ks) for ks in range(2) for u in range(k, NU)]
        for u in range(NU):
            if u < k:
                seq += [(u, 8, 0), (u, 8, 1)]
            seq += [(u, 9, 0), (u, 9, 1)]
        N = len(seq)
        first_use = {s: min(n for n in range(N) if seq[n][1] == s) for s in range(10)}
        last_use = {u: max(n for n in range(N) if seq[n][0] == u) for u in range(NU)}
        bpos = {s: first_use[s] - (D - E) for s in range(1, 10)}
        bpos[0] = 0
        if bpos[9] <= bpos[8] + 1:
            bpos[9] = bpos[8]

        def xread(n):
            u, s, ks = seq[n]
            e.ldsop(f"ds_read_b128 {vr(self.xr + (n % R)*4, 4)}, v{vXa + 2*(s % NSTAGE) + ks} offset:{u*2048}", ("x", n))

        def wbuf(s, ks):
            return self.wf + ((2 * s + ks) % NW) * 8

        def wread(s, ks, m, h):
            e.ldsop(f"ds_read_b64_tr_b16 {vr(wbuf(s, ks) + m*4 + h*2, 2)}, v{vWa + s % NSTAGE} offset:{ks*8192 + m*2048 + h*512}", ("w", s, ks))

        wneed, wlast = {}, {}
        for n, (u, s, ks) in enumerate(seq):
            wneed.setdefault((s, ks), n)
            wlast[(s, ks)] = n
        lq = []

        def validate(sx):
            for ks in range(2):
                for m in range(2):
                    for h in range(2):
                        lq.append((wneed[(sx, ks)], 0, ("w", sx, ks, m, h)))
            for n in range(N):
                if seq[n][1] == sx:
                    lq.append((n, 1, ("x", n)))
            lq.sort(key=lambda z: (z[0], z[1]))

        def lds_ok(it, n):
            if it[2][0] == "x":
                return it[0] <= n + R - 2
            if it[2][0] == "r":
                return True
            _, sx, ks, m, h = it[2]
            prev = 2 * sx + ks - NW
            return prev < 0 or wlast[(prev // 2, prev % 2)] < n

        def lds_issue(it):
            lq.remove(it)
            if it[2][0] == "x":
                xread(it[2][1])
            elif it[2][0] == "r":
                _, bb, h = it[2]
                e.ldsop(f"ds_read_b64_tr_b16 {vr(self.outb + 4*bb + 2*h, 2)}, v{vWa+2} offset:{RED0 - XS - 2*STAGE + bb*2048 + h*512}", ("r", bb))
            else:
                wread(*it[2][1:])

        for _ in range(c.get("pad", 0) // 4):
            e("s_nop 0")
        self.stamp()
        e.wait(vm=[("d", 0)])
        e("s_barrier")
        self.stamp()
        validate(0)
        while lq[0][0] < D:
            lds_issue(lq[0])
        epi = []
        st = dict(m0=False, vslot=0, tn=0, tv=32, epi=0)
        done_units = 0

        def run_events():
            while vq and vq[0][0] == "event":
                vq.pop(0)[1]()

        def vm_issue():
            run_events()
            m0, f = vq.pop(0)
            m0 = None if m0 and m0.startswith("hguard") else m0
            if m0 and not st["m0"]:
                e(m0 + "\ns_nop 0")
            f()
            st["m0"] = False
            st["tn"] = max(st["tn"], e.t - 12 - 24) + st["tv"]
            run_events()

        def gap(n, isA):
            used = None
            st["vslot"] += 1
            head = lq[0] if lq and lds_ok(lq[0], n) else None
            backlog = (sum(1 for m0, _ in vq if m0 and m0.startswith("s_")) > 3 and n < 52) or n < bpos[c["fastto"]]
            tv = c["tback"] if backlog else ((c["tdma"] if n < bpos[7] else c["tdma9"]) if about_dma(vq) else (c["tw2a"] if st["epi"] < c["ua"] else c["tw2"]))
            st["tv"] = tv
            vm_ready = vq and (vq[0][0] is None or st["m0"] or (vq[0][0].startswith("hguard") and st["epi"] >= int(vq[0][0][6:]))) and e.t >= st["tn"]
            if head and head[0] - n <= c["crit"]:
                lds_issue(head)
                used = "l"
                if backlog and vm_ready:
                    vm_issue()
                    used = "v"
            elif vm_ready:
                vm_issue()
                used = "v"
            else:
                cand = [it for it in lq[:24] if lds_ok(it, n) and (it[2][0] in "wr" or it[0] - n <= D + (1 if isA else 0))]
                if cand:
                    lds_issue(cand[0])
                    used = "l"
            if used != "v" and vq and vq[0][0] and vq[0][0].startswith("s_") and not st["m0"]:
                e(vq[0][0])
                st["m0"] = True
            elif used != "v" and setup:
                for _ in range(1 if used else 2):
                    if setup:
                        it = setup.pop(0)
                        if not it.startswith("MARK"):
                            e(it)

        def pop_epi(budget):
            while epi and budget > 0:
                it = epi.pop(0)
                if callable(it):
                    it()
                    budget -= 2
                elif it[0] == "mark":
                    st["epi"] = it[1]
                    if c["stamps"] == 3 and it[1] in (3, 6, 9):
                        self.stamp()
                else:
                    e(it[1])
                    budget -= it[0]

        def store_pair(pr):
            def f():
                ob = self.outb + (pr & 1) * 4
                e(f"s_mov_b32 s{self.sHo}, {pr*2*49152}\ns_nop 0")
                e(f"v_permlane16_swap_b32 v{ob}, v{ob+2}\nv_permlane16_swap_b32 v{ob+1}, v{ob+3}")
                if 2 * pr + 1 >= NU:
                    e("s_mov_b32 exec_lo, 0xffff\ns_mov_b32 exec_hi, 0xffff")
                e.vmop(f"buffer_store_dwordx4 {vr(ob, 4)}, v{self.vHs}, {sr(self.srdH, 4)}, s{self.sHo} offen {c['stf']}", ("hst", pr))
                if 2 * pr + 1 >= NU:
                    e("s_mov_b64 exec, -1")
            return f

        def flag_item(pr, stage):
            return lambda: self.publish_h(pr, stage)

        def unit_done(u):
            epi.extend(self.epi_ops(u))
            epi.append(("mark", u + 1))
            if u % 2 == 1 or u == NU - 1:
                epi.append(store_pair(u // 2))
            if u == c["fA"]:
                epi.append(flag_item(1, 1))
            if u == c["fB"]:
                epi.append(flag_item(3, 2))
            if u == NU - 1 and c["fC"] < 0:
                epi.append(flag_item(4, 3))

        def mfma(n, m):
            u, s, ks = seq[n]
            a = self.acc + u * 8 + m * 4
            cin = "0" if (s == 0 and ks == 0) else vr(a, 4)
            if not (c.get("no_mfma") and s >= 1):
                e(f"v_mfma_f32_16x16x32_bf16 {vr(a, 4)}, {vr(wbuf(s, ks) + m*4, 4)}, {vr(self.xr + (n % R)*4, 4)}, {cin}")

        tail0 = last_use[0]
        e.wait(lds=[("x", 0), ("w", 0, 0)])
        for n in range(N):
            u, s, ks = seq[n]
            intail = n > tail0 + 2
            mfma(n, 0)
            bars = [sb for sb in range(1, 10) if bpos[sb] == n]
            if bars:
                sb, s0 = max(bars), min(bars)
                setup_upto(f"MARK{s0}:")
                while len([x for x in e.vm if x == ("d", sb)]) < 11:
                    vm_issue()
                rel = s0 + 2 <= 9
                e.wait(vm=[("d", sb)], lds_all=rel)
                e("s_barrier")
                if c["stamps"] == 2 or sb in (1, 5, 8, 9):
                    self.stamp()
                for sx in bars:
                    validate(sx)
                held = [it for it in vq if getattr(it[1], "__name__", "") in ("w2", "chkp", "chk0", "chk2")]
                vq[:] = [it for it in vq if it not in held]
                if s0 == c["w2at"] and not c.get("p1only"):
                    held = self.seam_queue()
                if s0 == 5:
                    self.tok_probe()
                if s0 == 6:
                    self.tok_check("L_tok")
                if rel:
                    dl = self.dma_list(s0 + 2)
                    if s0 == c["w2at"] and not c.get("p1only"):
                        dl.insert(11 - c["r1d"], ("event", lambda: self.r1probe[1]()))
                    vq += dl
                vq += held
            else:
                gap(n, False)
                if intail:
                    pop_epi(c.get("epiB", 4))
            mfma(n, 1)
            if n + 1 < N:
                u2, s2, ks2 = seq[n + 1]
                while lq and lq[0][0] <= n + 1:
                    assert lds_ok(lq[0], n + 1)
                    lds_issue(lq[0])
                e.wait(lds=[("x", n + 1), ("w", s2, ks2)])
            gap(n, True)
            while done_units < NU and last_use[done_units] + 2 <= n:
                unit_done(done_units)
                done_units += 1
            if intail:
                pop_epi(c.get("epiA", 4))
        self.stamp()
        if c.get("p1only"):
            self.write_stamps()
            e("s_endpgm")
        e("s_nop 3")
        while done_units < NU:
            unit_done(done_units)
            done_units += 1
        while epi:
            pop_epi(2)
            if vq and e.t - e.tv >= c["tw2"] - 12 and not (vq[0][0] or "").startswith(f"hguard{st['epi'] + 1}"):
                vm_issue()
        self.stamp()
        k = 0
        while vq and not c.get("p1only"):
            if k == c["fC"]:
                flag_item(4, 3)()
            vm_issue()
            k += 1
        assert k > c["fC"] or c.get("p1only")
        self.stamp()

    def phase2_setup(self):
        e = self.e
        c = self.c
        t, L = self.vT, self.vLane
        if not hasattr(self, "sM2"):
            self.sM2, self.sNb, self.sSoP = e.s(), e.s(), e.s()
            self.sU, self.sFo, self.sRow = e.s(4), e.s(4), e.s(4)
            self.vP, self.vHl, self.vFr, self.vFh = e.v(), e.v(), e.v(), e.v()
            self.vRw, self.vRa, self.vOa = (e.v() for _ in range(3))
            self.sSoH = e.s()
            self.sT4o = e.s()
            self.sFr = e.s()
        if c["map2"] == "8x4":
            e(f"s_and_b32 s{self.sM2}, s{self.sXcd}, 3\ns_lshl_b32 s{self.sM2}, s{self.sM2}, 3\ns_and_b32 s{self.sA}, s{self.sSlot}, 7\ns_add_u32 s{self.sM2}, s{self.sM2}, s{self.sA}")
            e(f"s_lshr_b32 s{self.sNb}, s{self.sXcd}, 2\ns_lshl_b32 s{self.sNb}, s{self.sNb}, 2\ns_lshr_b32 s{self.sA}, s{self.sSlot}, 3\ns_add_u32 s{self.sNb}, s{self.sNb}, s{self.sA}")
        else:
            e(f"s_lshl_b32 s{self.sM2}, s{self.sXcd}, 2\ns_and_b32 s{self.sA}, s{self.sSlot}, 3\ns_add_u32 s{self.sM2}, s{self.sM2}, s{self.sA}")
            e(f"s_lshr_b32 s{self.sNb}, s{self.sSlot}, 2")
        e(f"s_mul_i32 s{self.sA}, s{self.sWave}, 12288\nv_lshlrev_b32 v{t}, 4, v{L}\nv_add_u32 v{self.vHl}, s{self.sA}, v{t}")
        e(f"s_mul_i32 s{self.sB}, s{self.sNb}, {4*49152}\nv_add_u32 v{self.vP}, s{self.sB}, v{self.vHl}")
        e(f"v_min_u32 v{t}, 3, v{L}\nv_mul_u32_u24 v{self.vFr}, {c['fstr']}, v{t}\ns_lshl_b32 s{self.sFr}, s{self.sWave}, 9\ns_add_u32 s{self.sFr}, s{self.sFr}, {FR_OFF}")
        e(f"v_min_u32 v{t}, 5, v{L}\nv_mul_u32_u24 v{self.vFh}, {c['fstr']}, v{t}")
        for j in range(4):
            e(f"s_add_u32 s{self.sA}, s{self.sM2}, {32*j}")
            e(f"s_mul_i32 s{self.sB}, s{self.sA}, 205\ns_lshr_b32 s{self.sB}, s{self.sB}, 11")
            e(f"s_mul_i32 s{self.sC}, s{self.sB}, 10\ns_sub_u32 s{self.sC}, s{self.sA}, s{self.sC}")
            if j == 3:
                e(f"s_cmp_ge_u32 s{self.sA}, 119\ns_cselect_b32 s{self.sU+3}, 12, 11\ns_cselect_b32 s{self.sRow+3}, 9, 0")
                e(f"s_sub_u32 s{self.sRow+3}, s{self.sA}, s{self.sRow+3}\ns_sub_u32 s{self.sRow+3}, s{self.sRow+3}, 110")
                e(f"s_cmp_ge_u32 s{self.sA}, 110\ns_cselect_b32 s{self.sB}, s{self.sU+3}, s{self.sB}\ns_cselect_b32 s{self.sC}, s{self.sRow+3}, s{self.sC}")
            e(f"s_lshl_b32 s{self.sFo+j}, s{self.sC}, 2\ns_add_u32 s{self.sFo+j}, s{self.sFo+j}, s{self.sWave}\ns_lshl_b32 s{self.sFo+j}, s{self.sFo+j}, 10")
            e(f"s_mul_i32 s{self.sC}, s{self.sC}, 13\ns_add_u32 s{self.sC}, s{self.sC}, s{self.sB}")
            e(f"s_mul_i32 s{self.sU+j}, s{self.sC}, {0 if c.get('hsame') else 49152}\ns_mul_i32 s{self.sRow+j}, s{self.sC}, 20480")
        e(f"v_lshrrev_b32 v{t}, 4, v{L}\nv_and_b32 v{t+1}, 15, v{L}\nv_mul_u32_u24 v{t+1}, {RST}, v{t+1}\nv_lshl_add_u32 v{t}, v{t}, 4, v{t+1}")
        e(f"s_mul_i32 s{self.sA}, s{self.sWave}, {SST}\nv_add_u32 v{self.vRw}, s{self.sA}, v{t}")
        e(f"v_min_u32 v{t}, 39, v{L}\nv_mul_u32_u24 v{t+1}, 26, v{t}\nv_lshrrev_b32 v{t+1}, 8, v{t+1}\nv_mul_u32_u24 v{t+2}, 10, v{t+1}\nv_sub_u32 v{t}, v{t}, v{t+2}")
        e(f"s_lshl_b32 s{self.sA}, s{self.sWave}, 2\nv_add_u32 v{t+1}, s{self.sA}, v{t+1}")
        e(f"v_mul_u32_u24 v{self.vRa}, {RST}, v{t+1}\nv_lshl_add_u32 v{self.vRa}, v{t}, 5, v{self.vRa}")
        e(f"v_mul_u32_u24 v{t+1}, 1280, v{t+1}\nv_lshl_add_u32 v{t+1}, v{t}, 4, v{t+1}")
        e(f"s_lshl_b32 s{self.sA}, s{self.sNb}, 7\ns_lshl_b32 s{self.sB}, s{self.sNb}, 5\ns_add_u32 s{self.sB}, s{self.sB}, 896")
        e(f"v_mov_b32 v{t+2}, s{self.sA}\nv_mov_b32 v{t+3}, s{self.sB}\nv_cmp_lt_u32 vcc, 7, v{t}\ns_nop 1\nv_cndmask_b32 v{t+2}, v{t+2}, v{t+3}, vcc")
        e(f"v_add_u32 v{self.vOa}, v{t+1}, v{t+2}")
        e(f"s_mul_i32 s{self.sT4o}, s{self.sNb}, {-3*49152}\ns_add_u32 s{self.sT4o}, s{self.sT4o}, {32*49152}")

    def w2p_list(self):
        e = self.e
        out = []
        for g in range(3):
            for tt in range(5):
                for k4 in range(4):
                    ks = g * 4 + k4

                    def w2(tt=tt, ks=ks, g=g, k4=k4):
                        assert g + 1 in self.rchecked and not self.c["grot"]
                        if k4 == 0:
                            e(f"s_add_u32 s{self.sSoP}, s{self.sT4o}, {g*4096}" if tt == 4 else f"s_mov_b32 s{self.sSoP}, {tt*49152 + g*4096}")
                        e.vmop(f"buffer_load_dwordx4 {ar((tt*12 + ks)*4, 4)}, v{self.vP}, {sr(self.srdP, 4)}, s{self.sSoP} offen offset:{k4*1024} {self.c['ldf']}", ("p", tt, ks))
                    out.append(w2)
        return out

    def hload(self, i):
        e = self.e
        j, ks = divmod(i, 12)
        assert j in self.checked, f"slot {j} loaded before its flags were checked"
        if ks % 4 == 0 and self.hprep != i:
            self.hprep_emit(i)
        e.vmop(f"buffer_load_dwordx4 {vr(self.hr + (i % self.c['HR'])*4, 4)}, v{self.vHl}, {sr(self.srdH, 4)}, s{self.sSoH} offen offset:{(ks & 3)*1024} {self.c['ldf']}", ("h", i))

    def hprep_emit(self, i):
        j, ks = divmod(i, 12)
        self.e(f"s_add_u32 s{self.sSoH}, s{self.sU+j}, {(ks >> 2)*4096}")
        self.hprep = i

    def pollh(self, j):
        self.polled.add(j)
        self.probe(self.sFo + j, j * FSTAGE, 6)

    def checkh(self, j, sfx=""):
        assert j in self.polled
        self.checked.add(j)
        self.probe_check(f"L_ph{j}{sfx}", self.vFh, self.sFo + j, j * FSTAGE, 6)

    def seam_queue(self, sfx=""):
        e = self.e
        c = self.c
        self.hr = self.acc

        self.polled = set()
        self.checked = set()
        self.rchecked = set()
        self.hprep = -1
        self.post = []

        def rpoll(k):
            def chkp():
                self.probe(self.sFr, (k - 1) * 2048, 4)

            def chk2():
                self.probe_check(f"L_pr{k}" + sfx, self.vFr, self.sFr, (k - 1) * 2048, 4)
                self.rchecked.add(k)
                if k == 1:
                    self.stamp()
            return ("event", chkp), ("event", chk2)
        self.r1probe, c1 = rpoll(1)
        q = [c1]
        w2l = [(None, f) for f in self.w2p_list()]
        p2, c2 = rpoll(2)
        p3, c3 = rpoll(3)
        rd, hf, pd = c["rpd"], c["hfirst"], c["pd0"]

        def chkp():
            self.pollh(0)
        ph0 = ("event", chkp)

        def chk0():
            if c["await"]:
                e("s_waitcnt lgkmcnt(0)")
                e.lds_done = len(e.lds)
            self.checkh(0, sfx)
            if not sfx:
                self.stamp()
        hl = []
        for i in range(c["PF"]):
            def w2(i=i):
                self.hload(i)
            hl.append((f"hguard{i // 2 + 1}", w2))
            if i + 1 == c["pollks"]:
                def chkp():
                    self.pollh(1)
                hl.append(("event", chkp))
        q += w2l[:20-rd] + [p2] + w2l[20-rd:20] + [c2]
        if c["g2late"]:
            hl = [it for it in hl if it[0] != "event"]
            q += w2l[20:40-pd] + [ph0] + w2l[40-pd:40] + [("event", chk0), p3] + hl[:c["g2late"]] + [c3]
            hl, rest = hl[c["g2late"]:], w2l[40:]

            def chkp():
                self.pollh(1)
            k = len(rest) - c["inp2"]
            self.post = [f for _, f in rest[k:]]
            rest = rest[:k]
            rest.insert(min(c["bpos"], len(rest)), ("event", chkp))
        else:
            assert hf >= 40
            q += w2l[20:40-rd] + [p3] + w2l[40-rd:40] + [c3] + w2l[40:hf] + [ph0] + w2l[hf:hf+pd] + [("event", chk0)]
            rest = w2l[hf+pd:]
        for it in hl:
            q.append(it)
            q += rest[:c["wper"]]
            rest = rest[c["wper"]:]
        return q + rest

    def phase2_main(self):
        e = self.e
        c = self.c
        HR, PF = c["HR"], c["PF"]
        assert PF < 12 and HR <= 16
        hr = self.hr
        acc = self.wf
        ra, rb, obase = self.xr, self.xr + 16, self.acc + 64
        self.vRwH, self.vRaH = self.xr + 36, self.xr + 37
        stores = []
        seq = [(j, ks) for j in range(4) for ks in range(12)]
        hload, pollh, checkh = self.hload, self.pollh, self.checkh
        hn = PF
        post = list(self.post)
        side = []

        def red_write(j, tt):
            e.ldsop(f"ds_write_b128 v{self.vRw if j & 1 else self.vRwH}, {vr(acc + (j & 1)*20 + tt*4, 4)} offset:{tt*TST}", ("rw", j))

        def reduce_items(j, last):
            ob = obase + 4 * j
            va = self.vRa if j & 1 else self.vRaH
            it = []
            for tt in range(4 if last else 0, 5):
                it.append(lambda tt=tt: red_write(j, tt))
                if not last and c["wspace"]:
                    it.append(None)
            if not last:
                it += [None] * 2

            def bar():
                e.wait(lds=[("rw", j)])
                e("s_barrier")
            it.append(bar)
            for src in range(4):
                for h, base in enumerate((ra, rb)):
                    def rd(src=src, h=h, base=base):
                        e.ldsop(f"ds_read_b128 {vr(base + src*4, 4)}, v{va} offset:{src*SST + h*16}", ("rr", j, h, src))
                    rd.isread = True
                    it.append(rd)
            if not last:
                it += [None] * 4
            for src in range(1, 4):
                for h, base in enumerate((ra, rb)):
                    for half in range(2):
                        def ad(h=h, base=base, src=src, half=half):
                            e.wait(lds=[("rr", j, h, src)])
                            for i2 in (2 * half, 2 * half + 1):
                                e(f"v_add_f32 v{base+i2}, v{base+i2}, v{base+src*4+i2}")
                        it.append(ad)

            def sto():
                e("s_mov_b32 exec_hi, 0xff")
                e.vmop(f"buffer_store_dwordx4 {vr(ob, 4)}, v{self.vOa}, {sr(self.srdOut, 4)}, s{self.sRow+j} offen {c['outflags'] if j < 3 else c.get('outlast', c['outflags'])}", ("o", j))
                e("s_mov_b32 exec_hi, -1")
            for h, base in enumerate((ra, rb)):
                def cvt(h=h, base=base):
                    e(f"v_cvt_pk_bf16_f32 v{ob+2*h}, v{base}, v{base+1}\nv_cvt_pk_bf16_f32 v{ob+2*h+1}, v{base+2}, v{base+3}")
                    if h:
                        stores.append(sto)
                it.append(cvt)
            return it
        e(f"v_add_u32 v{self.vRwH}, {RED0}, v{self.vRw}\nv_add_u32 v{self.vRaH}, {RED0}, v{self.vRa}")
        e.wait(vm=[("h", 0)] + [("p", tt, 0) for tt in range(5)])
        self.stamp()
        CH = c["chain"]
        published = False
        order = [(i0 + k, tt) for i0 in range(0, 44, CH) for tt in range(5) for k in range(CH)]
        for pos, (im, tm) in enumerate(order):
            i, tt = divmod(pos, 5)
            j, ks = seq[i]
            jm, km = seq[im]
            a = acc + (jm & 1) * 20 + tm * 4
            e.wait(vm=[("h", im), ("p", tm, km)])
            e(f"v_mfma_f32_16x16x32_bf16 {vr(a, 4)}, {ar((tm*12 + km)*4, 4)}, {vr(hr + (im % HR)*4, 4)}, {'0' if km == 0 else vr(a, 4)}")
            rt = (tt - c["gsh"]) % 5
            reads_left = any(it is not None and getattr(it, "isread", False) for it in side)
            if rt == 0 and hn < 48:
                hload(hn)
                hn += 1
            elif rt in (2, 3) and post:
                post.pop(0)()
            elif rt == 0 and stores:
                stores.pop(0)()
            elif rt == 3 and i == c["fD"]:
                self.publish_h(6, 4)
                published = True
            elif rt == 2 and hn < 48 and seq[hn][1] >= c['pollks'] and seq[hn][0] < 3 and seq[hn][0] + 1 not in self.polled and not reads_left:
                e.wait(lds_all=True)
                pollh(seq[hn][0] + 1)
            elif rt == 1 and hn < 48 and seq[hn][1] == 0:
                if c["await2"]:
                    e("s_waitcnt lgkmcnt(0)")
                    e.lds_done = len(e.lds)
                checkh(seq[hn][0])
            else:
                if side and ks >= 1:
                    it = side.pop(0)
                    if it:
                        it()
                if rt == 2 and hn < 48 and hn % 4 == 0 and self.hprep != hn:
                    self.hprep_emit(hn)
            if ks == 11 and tt == 4:
                if c["stamps"] == 3 and j < 3:
                    self.stamp()
                assert not side, len(side)
                side = reduce_items(j, False)
        assert HR >= PF + CH + 1 and published
        for tt in range(5):
            for i in range(44, 48):
                a = acc + 20 + tt * 4
                if tt == 0:
                    e.wait(vm=[("h", i)])
                e(f"v_mfma_f32_16x16x32_bf16 {vr(a, 4)}, {ar((tt*12 + i - 36)*4, 4)}, {vr(hr + (i % HR)*4, 4)}, {vr(a, 4)}")
                if tt >= 2 and i == 46:
                    red_write(3, tt - 2)
                elif side:
                    it = side.pop(0)
                    if it:
                        it()
                elif stores:
                    stores.pop(0)()
        assert not side
        self.stamp()
        e("s_nop 3")
        red_write(3, 3)
        e("s_nop 2")
        side = reduce_items(3, True)
        for k, it in enumerate(side):
            if it:
                it()
            if stores:
                stores.pop(0)()
        if c["stamps"] or c.get("ms") is not None:
            self.stamp()
            e.wait(vm_all=True)
            self.stamp()

    def repack(self):
        e = self.e
        c = self.c
        t, L = self.vT, self.vLane
        sR, sLo, sSt = e.s(), e.s(8), e.s(8)
        vD, vR, vS = e.v(4), e.v(4), e.v(4)
        F = e.v(32, 4)
        if c["klate"]:
            self.late_kernargs()
        self.srd_const(self.srdD, 256)
        e(f"s_lshl_b32 s{sR}, s{self.sXcd}, 1\ns_add_u32 s{sR}, s{sR}, s{self.sSlot}\ns_sub_u32 s{sR}, s{sR}, 30")
        e(f"s_lshr_b32 s{self.sB}, s{sR}, 2\ns_mul_i32 s{self.sB}, s{self.sB}, 384")
        e(f"v_lshrrev_b32 v{t}, 3, v{L}\nv_add_u32 v{t}, s{self.sB}, v{t}\nv_mul_u32_u24 v{vD}, 1280, v{t}")
        e(f"v_bfe_u32 v{t}, v{L}, 4, 1\nv_lshlrev_b32 v{t}, 1, v{t}")
        e(f"v_and_b32 v{t+1}, 7, v{L}\nv_xor_b32 v{t}, v{t}, v{t+1}\nv_lshl_add_u32 v{vD}, v{t}, 4, v{vD}")
        e(f"v_xor_b32 v{t}, 64, v{vD}")
        for p in range(1, 4):
            e(f"v_add_u32 v{vD+p}, {p*(10240 - 1024)}, v{vD if p % 2 == 0 else t}")
        e(f"s_and_b32 s{self.sFl}, s{sR}, 3\ns_lshl_b32 s{self.sFl}, s{self.sFl}, 2\ns_add_u32 s{self.sFl}, s{self.sFl}, s{self.sWave}")

        def offs(i):
            e(f"s_add_u32 s{self.sA}, s{self.sFl}, {16*i}\ns_mul_i32 s{self.sB}, s{self.sA}, 205\ns_lshr_b32 s{self.sB}, s{self.sB}, 11")
            e(f"s_mul_i32 s{self.sC}, s{self.sB}, 10\ns_sub_u32 s{self.sC}, s{self.sA}, s{self.sC}")
            e(f"s_mul_i32 s{sLo+i}, s{self.sB}, 40960\ns_lshl_b32 s{self.sSpin}, s{self.sC}, 7\ns_add_u32 s{sLo+i}, s{sLo+i}, s{self.sSpin}")
            e(f"s_mul_i32 s{sSt+i}, s{self.sC}, {4*49152}\ns_lshl_b32 s{self.sSpin}, s{self.sB}, 10\ns_add_u32 s{sSt+i}, s{sSt+i}, s{self.sSpin}")
            if i == 7:
                e(f"s_cmp_ge_u32 s{self.sA}, 120\ns_cselect_b32 s{sLo+i}, 0x40000000, s{sLo+i}\ns_cselect_b32 s{sSt+i}, 0x40000000, s{sSt+i}")
        AH = c["rah"]
        for i in range(AH):
            offs(i)
        sM = e.s()
        e(f"s_lshl_b32 s{sM}, s{self.sWave}, 15")
        self.after_kernarg("s")
        self.late_srds()

        def loads(i):
            e(f"s_add_u32 m0, s{sM}, {i*4096}\ns_nop 0")
            for p in range(4):
                e.vmop(f"buffer_load_dwordx4 v{vD+p}, {sr(self.srdW2, 4)}, s{sLo+i} offen offset:{p*1024} lds", ("rp", i))
        for i in range(AH):
            loads(i)
        for i in range(AH, 8):
            offs(i)
        self.tr_lane_addr(vR, 2048, 1024, None)
        e(f"v_add_u32 v{vR}, s{sM}, v{vR}")
        for sub in range(1, 4):
            e(f"v_xor_b32 v{vR+sub}, {sub*32}, v{vR}")
        e(f"s_lshr_b32 s{self.sB}, s{sR}, 2\ns_mul_i32 s{self.sB}, s{self.sB}, 12288\nv_lshlrev_b32 v{vS}, 4, v{L}\nv_add_u32 v{vS}, s{self.sB}, v{vS}")
        for sub in range(1, 4):
            e(f"v_add_u32 v{vS+sub}, {sub*49152}, v{vS}")
        e(f"s_lshr_b32 s{self.sA}, s{sR}, 2\ns_lshl_b32 s{self.sA}, s{self.sA}, 9\ns_and_b32 s{self.sFl}, s{sR}, 3\ns_mul_i32 s{self.sFl}, s{self.sFl}, {c['fstr']}")
        e(f"s_add_u32 s{self.sFl}, s{self.sFl}, s{self.sA}\ns_add_u32 s{self.sFl}, s{self.sFl}, {FR_OFF}")
        for i in range(8):
            fb = F + (i & 1) * 16
            e.wait(vm=[("rp", i)])
            for sub in range(4):
                for h in range(2):
                    e.ldsop(f"ds_read_b64_tr_b16 {vr(fb + 4*sub + 2*h, 2)}, v{vR+sub} offset:{i*4096 + h*512}", ("rr", i, sub))
            if i + AH < 8:
                loads(i + AH)
            for sub in range(4):
                e.wait(lds=[("rr", i, sub)])
                e.vmop(f"buffer_store_dwordx4 {vr(fb + 4*sub, 4)}, v{vS+sub}, {sr(self.srdP, 4)}, s{sSt+i} offen {c['stf']}", ("rst", i))
            if i == 1 + c["rlag"]:
                self.tok_probe()
            if i in (2 + c["rlag"], 4 + c["rlag"]):
                e.wait(vm=[("rst", i - c["rlag"])])
                if i == 2 + c["rlag"]:
                    e("s_waitcnt lgkmcnt(0)")
                    self.tok_check("L_tok2")
                e("s_barrier")
                self.publish(f"L_r{i}", self.sFl)
                e(f"s_add_u32 s{self.sFl}, s{self.sFl}, 2048")
                self.stamp()
        self.phase2_setup()
        e.wait(vm_all=True)
        e("s_barrier")
        self.publish("L_rlast", self.sFl)
        self.stamp()

    def build(self):
        e = self.e
        c = self.c
        head = HEADER + f"; @launch grid=(256,1,1) block=(256,1,1) lds={LDS_TOTAL}\n" + DOC
        self.prologue()
        mark = len(e.L)
        self.phase2_setup()
        del e.L[mark:]
        vmark, smark = e.vnext, e.snext
        self.sPr = (smark + 3) // 4 * 4
        e(f"s_cmp_ge_u32 s{self.sSlot}, 30\ns_cbranch_scc1 L_spare")
        self.phase1_setup()
        self.after_kernarg("w")
        self.srd_adj(self.srdW3, -2048)
        self.phase1_main()
        e("; ---- phase 2")
        e("L_join:")
        if not c.get("p1only"):
            self.phase2_main()
            self.write_stamps()
        e(f"L_end_{KN}:\ns_endpgm")
        e("; ---- w2 repack role, then the same lead-in as the phase-1 workgroups")
        e("L_spare:")
        self.in_spare = True
        e.reset_counts()
        if c.get("p1only") == 2:
            e("s_endpgm")
        e.vnext, e.snext = vmark, smark
        self.repack()
        if c.get("p1only"):
            e("s_endpgm")
        e(f"s_mov_b32 s{self.sFl}, {FR_OFF + 16384}")
        sq = self.seam_queue("s")
        self.r1probe[1]()
        for _, f in sq:
            f()
        e("s_waitcnt vmcnt(0)")
        e("s_branch L_join")
        e("\n".join(self.cold))
        e("L_codeend:")
        body = "\n".join(e.L)
        kd = f""".section .rodata,"a"
.p2align 6
.amdhsa_kernel {KN}
  .amdhsa_next_free_vgpr 512
  .amdhsa_next_free_sgpr 102
  .amdhsa_accum_offset 256
  .amdhsa_group_segment_fixed_size 0
  .amdhsa_kernarg_size 56
  .amdhsa_user_sgpr_count 2
  .amdhsa_user_sgpr_kernarg_segment_ptr 1
  .amdhsa_system_sgpr_workgroup_id_x 1
  .amdhsa_float_denorm_mode_32 3
.end_amdhsa_kernel
"""
        return head + '.amdgcn_target "amdgcn-amd-amdhsa--gfx950"\n.text\n' + body + "\n" + kd


def about_dma(vq):
    return bool(vq) and getattr(vq[0][1], "__name__", "") != "w2"


def parse_kw(args):
    kw = {}
    for a in args:
        k, v = a.split("=", 1)
        try:
            v = eval(v)
        except Exception:
            pass
        kw[k] = v
    return kw


if __name__ == "__main__":
    out = sys.argv[1]
    open(out, "w").write(Gen(**parse_kw(sys.argv[2:])).build())
```

```python
import sys

NAME = "standalone__glu_gated_swiglu__prompt"
KN = NAME + "_kernel"

X_BYTES = 2048 * 640 * 2
W_BYTES = 640 * 1536 * 2
OUT_BYTES = 2048 * 640 * 2
H_BYTES = 128 * 49152
W2P_OFF = 8 << 20
W2P_BYTES = 40 * 49152
FLAG_OFF = 12 << 20
FLAG_BYTES = 262144
FR_OFF = 196608
FSTAGE = 40960
STAMP_OFF = 16 << 20

NU = 13
XS = NU * 2048
STAGE = XS + 16384
NSTAGE = 3
RED0 = NSTAGE * STAGE
TST = 64
RST = 336
SST = 16 * RST
REDSZ = 4 * SST
LDS_TOTAL = RED0 + REDSZ

HEADER = """; Kernarg layout for this problem (56 bytes, ptrs only, base s[0:1]):
;   offset  24: d_in[3] w2  shape=(1536, 640) dtype=bfloat16 strides=(1280, 2) contiguous=True
"""


DOC = """;
; out = (silu(x @ w1) * (x @ w3)) @ w2 in one launch, one 4-wave workgroup per CU (id = slot*8 + die).
; Slots 30-31 rewrite w2 in MFMA fragment order (ws + 8 MiB) meanwhile.
; Phase 2 (all): tile of four 16-row units x 80 columns; each wave keeps its K quarter of w2 in AGPRs, streams h from
;   memory, and the four partial sums are added through LDS.
; Hand-offs: write-through stores, counted waits, a workgroup barrier, then a flag word (ws + 12 MiB) holding a token that
;   workgroup 0 publishes in d_debug for this launch. Readers probe the flags with scalar loads and fall back to bounded
;   vector polling until they equal the token; the data itself is read with sc1 loads.
"""


class Em:
    def __init__(self):
        self.L = []
        self.reset_counts()
        self.vnext = 1
        self.snext = 4
        self.skip = lambda kind, tag: False
        self.t = self.tm = self.tv = 0

    def __call__(self, s):
        for line in s.split("\n"):
            line = line.strip()
            if line:
                self.L.append(line if line.endswith(":") else "    " + line)
                if not line.startswith(";"):
                    self.tick(line)

    def tick(self, line):
        op = line.split(" ")[0]
        if op.startswith("v_mfma"):
            self.t = max(self.t, self.tm + 16)
            self.tm = self.t
            self.t += 4
        elif op.startswith("v_"):
            self.t = max(self.t, self.tm + 8) + (8 if op.startswith(("v_exp", "v_rcp", "v_perm")) else 4)
        elif op.startswith(("buffer", "global")):
            self.t += 12
            self.tv = self.t
        elif op.startswith("ds_write"):
            self.t += 16
        elif op.startswith(("s_waitcnt", "s_nop")) or op.endswith(":"):
            self.t += 1
        else:
            self.t += 4

    def v(self, n=1, align=1):
        b = (self.vnext + align - 1) // align * align
        self.vnext = b + n
        assert self.vnext <= 256, "out of arch VGPRs"
        return b

    def s(self, n=1, align=1):
        b = (self.snext + align - 1) // align * align
        self.snext = b + n
        assert self.snext <= 102, "out of SGPRs"
        return b

    def ldsop(self, txt, tag=None):
        if not self.skip("lds", tag):
            self(txt)
        self.lds.append(tag)

    def vmop(self, txt, tag=None):
        if not self.skip("vm", tag):
            self(txt)
        self.vm.append(tag)

    def _need(self, ops, tags):
        idx = -1
        for t in tags:
            c = [i for i, x in enumerate(ops) if x == t]
            assert c, f"tag {t} never issued"
            idx = max(idx, c[-1])
        return idx + 1

    def wait(self, lds=(), vm=(), lds_all=False, vm_all=False):
        parts = []
        n = len(self.vm) if vm_all else (self._need(self.vm, vm) if vm else 0)
        if n > self.vm_done:
            cnt = min(len(self.vm) - n, 63)
            parts.append(f"vmcnt({cnt})")
            self.vm_done = len(self.vm) - cnt
        n = len(self.lds) if lds_all else (self._need(self.lds, lds) if lds else 0)
        if n > self.lds_done:
            cnt = min(len(self.lds) - n, 15)
            parts.append(f"lgkmcnt({cnt})")
            self.lds_done = len(self.lds) - cnt
        if parts:
            self("s_waitcnt " + " ".join(parts))

    def reset_counts(self):
        self.lds, self.vm, self.lds_done, self.vm_done = [], [], 0, 0


def vr(b, n):
    return f"v[{b}:{b+n-1}]" if n > 1 else f"v{b}"


def ar(b, n):
    return f"a[{b}:{b+n-1}]"


def sr(b, n):
    return f"s[{b}:{b+n-1}]" if n > 1 else f"s{b}"


DEF = dict(D=9, E=2, stamps=False, G=5, lead=1, xm=0, map2="8x4", stf="sc1", ldf="sc1", codepf="dist", outflags="sc1",
           npre=20, pre0=11, tail=13, PF=9, HR=12, pollks=5, fA=6, fB=10, fC=-1, fD=1, align=12,
           tback=48, tdma=66, tw2=90, crit=3, rpv=1, rpos=0, rpub=3, rsk=8, l2pf=0, w2at=7, sleep=8, grot=0, wspace=1, ssleep=8, rah=3, rlag=1, rpd=8, r1d=7, fstr=4, tw2a=60, ua=2, g2late=0, bpos=12, chain=2, gsh=1, xlate=0, klate=0, tdma9=66, await2=0, l2g=(), g0=1, lead0=1, lsh=0, inp2=0, wper=2, cpf=None, fastto=1, spf=(2, 3, 4), hfirst=44, pd0=10, epiA=4, epiB=4)


class Gen:
    def __init__(self, **kw):
        self.c = dict(DEF)
        self.c["await"] = 1
        self.c.update(kw)
        self.e = Em()
        c = self.c

        def skip(kind, tag):
            if kind == "vm" and tag in c.get("skipvm", ()):
                return True
            if not isinstance(tag, tuple):
                return False
            if kind == "vm" and tag[0] in c.get("skipvm", ()):
                return True
            if c.get("nohst") and kind == "vm" and tag[0] == "hst":
                return True
            if c.get("no_dma") and kind == "vm" and tag[0] == "d" and tag[1] >= 3:
                return True
            if c.get("no_xread") and kind == "lds" and tag[0] == "x" and tag[1] >= 26:
                return True
            return False
        self.e.skip = skip
        self.nstamp = 0
        self.cold = []

    def stamp(self):
        e = self.e
        if self.c.get("ms") is not None:
            if self.nstamp + (100 if getattr(self, "in_spare", False) else 0) == self.c["ms"]:
                e("s_memrealtime s[98:99]")
            self.nstamp += 1
            return
        if not self.c["stamps"]:
            return
        i = self.nstamp
        self.nstamp += 1
        if self.c["stamps"] == 9 and i != 30:
            return
        assert i < 31
        e(f"s_memtime {sr(self.sT, 2)}\ns_memrealtime {sr(self.sT3, 2)}")
        e("s_waitcnt lgkmcnt(0)")
        e.lds_done = len(e.lds)
        e(f"v_writelane_b32 v{self.vStamp}, s{self.sT}, {i}\nv_writelane_b32 v{self.vStamp}, s{self.sT3}, {32 + i}")

    def write_stamps(self):
        e = self.e
        if self.c.get("ms") is not None:
            e("s_waitcnt lgkmcnt(0)\nL_dly:\ns_memrealtime s[100:101]\ns_waitcnt lgkmcnt(0)\ns_sub_u32 s100, s100, s98\ns_cmp_lt_u32 s100, 3000\ns_cbranch_scc1 L_dly")
            return
        if not self.c["stamps"]:
            return
        keep = self.nstamp
        self.nstamp = 30
        self.stamp()
        self.nstamp = keep
        e(f"s_lshl_b32 s{self.sT}, s2, 2\ns_add_u32 s{self.sT}, s{self.sT}, s{self.sWave}\ns_lshl_b32 s{self.sT}, s{self.sT}, 8")
        e(f"s_add_u32 s{self.sT}, s{self.sT}, {STAMP_OFF}")
        e(f"v_lshlrev_b32 v{self.vT}, 2, v{self.vLane}\nv_add_u32 v{self.vT}, s{self.sT}, v{self.vT}")
        e(f"s_mov_b32 s{self.srdH+2}, 0x10000000")
        e(f"buffer_store_dword v{self.vStamp}, v{self.vT}, {sr(self.srdH, 4)}, 0 offen")
        e("s_waitcnt vmcnt(0)")

    def srd_adj(self, dst, addoff):
        e = self.e
        if addoff > 0:
            e(f"s_add_u32 s{dst}, s{dst}, {addoff}\ns_addc_u32 s{dst+1}, s{dst+1}, 0")
        else:
            e(f"s_sub_u32 s{dst}, s{dst}, {-addoff}\ns_subb_u32 s{dst+1}, s{dst+1}, 0")

    def srd_const(self, dst, nbytes):
        self.e(f"s_mov_b32 s{dst+2}, {nbytes}\ns_mov_b32 s{dst+3}, 0x20000")

    def tr_lane_addr(self, dst, qstride_hi, qstride_lo, sub):
        e = self.e
        t, L = self.vT, self.vLane
        e(f"v_bfe_u32 v{t}, v{L}, 5, 1\nv_mul_u32_u24 v{dst}, {qstride_hi}, v{t}")
        e(f"v_bfe_u32 v{t}, v{L}, 4, 1\nv_mul_u32_u24 v{t+1}, {qstride_lo}, v{t}\nv_add_u32 v{dst}, v{dst}, v{t+1}")
        e(f"v_lshlrev_b32 v{t+1}, 2, v{t}")
        e(f"v_bfe_u32 v{t}, v{L}, 3, 1\nv_lshl_add_u32 v{t+1}, v{t}, 1, v{t+1}")
        e(f"v_bfe_u32 v{t}, v{L}, 1, 1")
        if sub is not None:
            e(f"s_lshl_b32 s{self.sA}, s{sub}, 1\nv_add_u32 v{t}, s{self.sA}, v{t}")
        e(f"v_xor_b32 v{t}, v{t}, v{t+1}\nv_lshl_add_u32 v{dst}, v{t}, 4, v{dst}")
        e(f"v_bfe_u32 v{t}, v{L}, 2, 2\nv_lshl_add_u32 v{dst}, v{t}, 7, v{dst}")
        e(f"v_and_b32 v{t}, 1, v{L}\nv_lshl_add_u32 v{dst}, v{t}, 3, v{dst}")

    def spin(self, label, load, check):
        e = self.e
        if self.c.get("nocheck"):
            return
        check()
        e(f"s_cbranch_vccz {label}_out")
        e(f"s_mov_b32 s{self.sSpin}, 0x40000")
        e(f"{label}_spin:")
        e(f"s_sleep {self.c['ssleep'] if label.endswith('s') else self.c['sleep']}")
        e(load)
        e("s_waitcnt vmcnt(0)")
        check()
        e(f"s_cbranch_vccz {label}_out")
        e(f"s_sub_u32 s{self.sSpin}, s{self.sSpin}, 1\ns_cbranch_scc0 {label}_spin")
        e(f"{label}_out:")

    def tok_probe(self):
        self.e(f"s_buffer_load_dword s{self.sTok}, {sr(self.srdD, 4)}, 0")

    def tok_check(self, label):
        e = self.e
        e(f"s_cmp_eq_u32 s{self.sTok}, 0\ns_cbranch_scc1 {label}_slow\n{label}_ok:")
        e(f"v_mov_b32 v{self.vTok}, s{self.sTok}\ns_mov_b32 s{self.sTok+1}, s{self.sTok}")
        self.cold += [f"{label}_slow:", f"s_mov_b32 s{self.sSpin}, 0x40000", f"{label}_spin:",
                      f"buffer_load_dword v{self.vTok}, off, {sr(self.srdD, 4)}, 0 sc1", "s_waitcnt vmcnt(0)",
                      f"v_readfirstlane_b32 s{self.sTok}, v{self.vTok}", "s_nop 3", f"s_cmp_lg_u32 s{self.sTok}, 0", f"s_cbranch_scc1 {label}_ok",
                      "s_sleep 2", f"s_sub_u32 s{self.sSpin}, s{self.sSpin}, 1", f"s_cbranch_scc0 {label}_spin", f"s_branch {label}_ok"]

    def probe(self, soff, imm, n):
        e = self.e
        if ("probe",)[0] in self.c.get("skipvm", ()):
            return
        for i in range(0, n, 2):
            e(f"s_mov_b64 {sr(self.sPr+i, 2)}, 0")
        if self.c["fstr"] == 4:
            w = 8 if n > 4 else 4
            e(f"s_buffer_load_dwordx{w} {sr(self.sPr, w)}, {sr(self.srdF, 4)}, s{soff} offset:{imm}")
            return
        for i in range(n):
            e(f"s_buffer_load_dword s{self.sPr+i}, {sr(self.srdF, 4)}, s{soff} offset:{imm + self.c['fstr']*i}")

    def probe_check(self, label, vaddr, soff, imm, n):
        e = self.e
        if self.c.get("nocheck"):
            return

        for i in range(0, n, 2):
            e(f"s_cmp_eq_u64 {sr(self.sPr+i, 2)}, {sr(self.sTok, 2)}\ns_cbranch_scc0 {label}_slow")
        e(f"{label}_out:")
        k = [f"{label}_slow:", "s_waitcnt lgkmcnt(0)"]
        ident = ["L_pr1", "L_pr2", "L_pr3", "L_ph0", "L_ph1", "L_ph2", "L_ph3"].index(label.rstrip("s"))
        if self.c["stamps"] == 9:
            k.append(f"v_writelane_b32 v{self.vStamp}, 1, {2*ident + 1}")
        for i in range(0, n, 2):
            k += [f"s_cmp_eq_u64 {sr(self.sPr+i, 2)}, {sr(self.sTok, 2)}", f"s_cbranch_scc0 {label}_vec" if i + 2 < n else f"s_cbranch_scc1 {label}_out"]
        k += [f"{label}_vec:"] + ([f"v_writelane_b32 v{self.vStamp}, 1, {2*ident + 2}"] if self.c["stamps"] == 9 else [])
        k += [f"s_add_u32 s{self.sA}, s{soff}, {imm}", f"s_mov_b32 s{self.sSpin}, 0x40000", f"{label}_spin:",
              f"buffer_load_dword v{self.vPoll}, v{vaddr}, {sr(self.srdF, 4)}, s{self.sA} offen sc1", "s_waitcnt vmcnt(0)",
              f"v_cmp_ne_u32 vcc, v{self.vPoll}, v{self.vTok}", f"s_cbranch_vccz {label}_out",
              f"s_sleep {self.c['ssleep'] if label.endswith('s') else self.c['sleep']}",
              f"s_sub_u32 s{self.sSpin}, s{self.sSpin}, 1", f"s_cbranch_scc0 {label}_spin", f"s_branch {label}_out"]
        self.cold += k

    def publish(self, label, sreg, srd=None, cond=None):
        e = self.e
        if self.c.get("noflag"):
            return
        e(f"s_cmp_lg_u32 s{self.sWave if cond is None else cond}, 0\ns_cbranch_scc1 {label}")
        e(f"s_mov_b64 exec, 1\nbuffer_store_dword v{self.vTok}, off, {sr(self.srdF if srd is None else srd, 4)}, s{sreg} sc1\ns_mov_b64 exec, -1")
        e(f"{label}:")

    def publish_h(self, pr, stage):
        e = self.e
        e.wait(vm=[("hst", pr)])
        e("s_barrier")
        self.publish(f"L_pub{stage}", self.sFl)
        if stage < 4:
            e(f"s_add_u32 s{self.sFl}, s{self.sFl}, {FSTAGE}")

    def prologue(self):
        e = self.e
        c = self.c
        e(f".p2align {c['align']}\n.globl {KN}\n.p2align 8\n.type {KN},@function\n{KN}:")
        self.srdX, self.srdW1, self.srdW3, self.srdW2 = (e.s(4, 4) for _ in range(4))
        self.srdOut, self.srdH, self.srdP, self.srdD, self.srdF = (e.s(4, 4) for _ in range(5))
        self.sT, self.sT2 = e.s(2, 2), e.s(2, 2)
        self.sWave, self.sXcd, self.sSlot = e.s(), e.s(), e.s()
        self.sA, self.sB, self.sC, self.sSpin, self.sFl = (e.s() for _ in range(5))
        if c["stamps"]:
            self.vStamp = e.v()
            self.sT3, self.sT4 = e.s(2, 2), e.s(2, 2)
        self.vLane = e.v()
        self.vT = e.v(4, 4)
        self.vTok, self.vPoll = e.v(), e.v()
        self.sTok = e.s(2, 2)
        e(f"s_cmp_ge_u32 s2, 256\ns_cbranch_scc1 L_end_{KN}")
        if c["codepf"]:
            e(f"s_getpc_b64 {sr(self.sT, 2)}")
        for srd, off in ((self.srdW1, 8), (self.srdW3, 16), (self.srdX, 0)):
            e(f"s_load_dwordx2 {sr(srd, 2)}, s[0:1], {off}")
        if c["stamps"] or not c["klate"]:
            e(f"s_memrealtime {sr(self.sT2, 2)}")
        if not c["klate"]:
            self.late_kernargs()
        if c.get("ms") is not None:
            e("s_memrealtime s[98:99]")
        if c["stamps"]:
            e(f"v_mov_b32 v{self.vStamp}, 0")
            e(f"s_memtime {sr(self.sT4, 2)}")
        e(f"v_lshrrev_b32 v{self.vT}, 6, v0")
        e(f"v_and_b32 v{self.vLane}, 63, v0")
        e(f"v_readfirstlane_b32 s{self.sWave}, v{self.vT}")
        if c["codepf"] == "dist":
            t = self.vT + 1
            e(f"s_lshr_b32 s{self.sSlot}, s2, 3\nv_lshrrev_b32 v{t}, 5, v0\ns_lshl_b32 s{self.sA}, s{self.sSlot}, 3\nv_add_u32 v{t}, s{self.sA}, v{t}")
            e(f"v_lshlrev_b32 v{t}, 7, v{t}")
            e(f"s_and_b32 s{self.sT}, s{self.sT}, 0xffffff00")
            e(f"v_min_u32 v{t}, L_codeend - {KN} - 4, v{t}")
            e.vmop(f"global_load_dword v{self.vPoll}, v{t}, {sr(self.sT, 2)}", "codepf")
        elif c["codepf"]:
            t = self.vT + 1
            e(f"v_lshlrev_b32 v{t}, 7, v0")
            e(f"s_and_b32 s{self.sT}, s{self.sT}, 0xffffff00")
            e(f"v_min_u32 v{t}, L_codeend - {KN} - 4, v{t}")
            e.vmop(f"global_load_dword v{self.vPoll}, v{t}, {sr(self.sT, 2)}", "codepf")
        e(f"s_and_b32 s{self.sXcd}, s2, 7\ns_lshr_b32 s{self.sSlot}, s2, 3")
        for dst, nbytes in ((self.srdW1, W_BYTES), (self.srdW3, W_BYTES + 2048)):
            self.srd_const(dst, nbytes)

    def late_kernargs(self):
        for srd, off in ((self.srdW2, 24), (self.srdP, 48), (self.srdD, 40), (self.srdOut, 32), (self.srdH, 48), (self.srdF, 48)):
            self.e(f"s_load_dwordx2 {sr(srd, 2)}, s[0:1], {off}")

    def after_kernarg(self, tag):
        e = self.e
        e("s_waitcnt lgkmcnt(0)")
        if self.c.get("ms") is not None:
            self.nstamp = 1
            self.stamp()
        if self.c["stamps"]:
            e(f"v_writelane_b32 v{self.vStamp}, s{self.sT4}, 0\nv_writelane_b32 v{self.vStamp}, s{self.sT2}, 32")
            self.nstamp = 1
            self.stamp()

    def late_srds(self):
        for dst, nbytes in ((self.srdW2, W_BYTES), (self.srdOut, OUT_BYTES), (self.srdH, H_BYTES), (self.srdP, W2P_BYTES),
                            (self.srdF, FLAG_BYTES)):
            self.srd_const(dst, nbytes)
        self.srd_adj(self.srdP, W2P_OFF)
        self.srd_adj(self.srdF, FLAG_OFF)

    def publish_token(self):
        e = self.e
        t = self.vT
        e(f"s_or_b32 s{self.sA}, s2, s{self.sWave}\ns_cmp_lg_u32 s{self.sA}, 0\ns_cbranch_scc1 L_notok")
        e(f"s_max_u32 s{self.sA}, s{self.sT2}, 1\nv_mov_b32 v{t}, s{self.sA}")
        e(f"s_mov_b64 exec, 1\nbuffer_store_dword v{t}, off, {sr(self.srdD, 4)}, 0 sc1\ns_mov_b64 exec, -1")
        e("L_notok:")

    def phase1_setup(self):
        e = self.e
        c = self.c
        t, L = self.vT, self.vLane
        self.sRb, self.sCh = e.s(), e.s()
        self.sSoX, self.sSoW = e.s(10), e.s()
        self.sMx, self.sMw = e.s(), e.s()
        sG, sSig = e.s(), e.s()
        e(f"s_mul_i32 s{self.sA}, s{self.sSlot}, 43\ns_lshr_b32 s{self.sA}, s{self.sA}, 8")
        e(f"s_mul_i32 s{self.sB}, s{self.sA}, 6\ns_sub_u32 s{self.sB}, s{self.sSlot}, s{self.sB}")
        e(f"s_and_b32 s{self.sC}, s{self.sXcd}, 1\ns_mul_i32 s{self.sC}, s{self.sC}, 5\ns_add_u32 s{self.sRb}, s{self.sC}, s{self.sA}")
        e(f"s_lshr_b32 s{self.sC}, s{self.sXcd}, 1\ns_mul_i32 s{self.sC}, s{self.sC}, 6\ns_add_u32 s{self.sCh}, s{self.sC}, s{self.sB}")
        G = c["G"]
        if c["cpf"]:
            self.sRbl, self.sChl = e.s(), e.s()
            e(f"s_mov_b32 s{self.sRbl}, s{self.sA}\ns_mov_b32 s{self.sChl}, s{self.sB}")
        e(f"s_add_u32 s{sG}, s{self.sA}, s{self.sB}")
        if G == 1:
            e(f"s_mov_b32 s{sG}, 0")
        elif G == 2:
            e(f"s_and_b32 s{sG}, s{sG}, 1")
        else:
            e(f"s_mul_i32 s{self.sC}, s{sG}, {-(-256 // G)}\ns_lshr_b32 s{self.sC}, s{self.sC}, 8\ns_mul_i32 s{self.sC}, s{self.sC}, {G}\ns_sub_u32 s{sG}, s{sG}, s{self.sC}")
        if c["xm"]:
            e(f"s_lshr_b32 s{self.sC}, s{self.sXcd}, 1\ns_add_u32 s{self.sC}, s{self.sC}, s{self.sXcd}\ns_and_b32 s{sSig}, s{self.sC}, 1")
        self.sG, self.sSig = sG, sSig
        self.slab_off(0)
        self.vXo = e.v(7)
        self.vWo = e.v(2)
        e(f"s_lshl_b32 s{self.sA}, s{self.sWave}, 4\nv_lshrrev_b32 v{t+3}, 3, v{L}\nv_add_u32 v{t}, s{self.sA}, v{t+3}")
        e(f"v_mul_u32_u24 v{t}, 3072, v{t}\nv_and_b32 v{t+2}, 7, v{L}")
        e(f"v_bfe_u32 v{t+1}, v{L}, 4, 1\nv_lshlrev_b32 v{t+1}, 1, v{t+1}\nv_xor_b32 v{t+1}, v{t+1}, v{t+2}")
        e(f"v_lshl_add_u32 v{t}, v{t+1}, 4, v{t}\ns_lshl_b32 s{self.sA}, s{self.sCh}, 7\nv_add_u32 v{self.vWo}, s{self.sA}, v{t}")
        e(f"v_xor_b32 v{t}, 64, v{self.vWo}\nv_add_u32 v{self.vWo+1}, {8*3072 - 1024}, v{t}")
        e(f"s_lshl_b32 s{self.sMw}, s{self.sWave}, 12\ns_add_u32 s{self.sMw}, s{self.sMw}, {XS}")
        if not c["xlate"]:
            self.x_setup()

    def x_setup(self):
        e = self.e
        t = self.vT
        e(f"s_mul_i32 s{self.sA}, s{self.sWave}, 52\nv_add_u32 v{t}, s{self.sA}, v{t+3}")
        e(f"v_bfe_u32 v{t+1}, v{t}, 1, 3\nv_xor_b32 v{t+1}, v{t+1}, v{t+2}")
        e(f"s_mul_i32 s{self.sB}, s{self.sRb}, 208\nv_add_u32 v{t}, s{self.sB}, v{t}\nv_mul_u32_u24 v{t}, 1280, v{t}")
        e(f"v_lshl_add_u32 v{self.vXo}, v{t+1}, 4, v{t}")
        e(f"v_xor_b32 v{t+1}, 64, v{self.vXo}")
        for i in range(1, 7):
            src = self.vXo if i % 2 == 0 else t + 1
            e(f"v_add_u32 v{self.vXo+i}, {i*10240 - (i & 3)*1024}, v{src}")
        e(f"s_mul_i32 s{self.sMx}, s{self.sWave}, 6656")
        self.srd_const(self.srdX, X_BYTES)

    def slab_off(self, s):
        e = self.e
        G, xm = self.c["G"], self.c["xm"]
        base = s // G * G
        d = self.sSoX + s
        if self.c.get("lead"):
            ld = self.c["lead"]
            e(f"s_mov_b32 s{d}, {s}")
            for cl in range(5):
                o = list(range(10))
                g0 = self.c["g0"]
                o[:g0] = [(i + cl) % g0 for i in range(g0)]
                for a in range(max(g0, self.c["lead0"]), 10):
                    if (a - ld) % 5 == (cl + self.c["lsh"]) % 5:
                        o.remove(a)
                        o.insert(a - ld, a)
                if o[s] != s:
                    e(f"s_cmp_eq_u32 s{self.sG}, {cl}\ns_cselect_b32 s{d}, {o[s]}, s{d}")
        elif base + G > 10 or G == 1:
            e(f"s_mov_b32 s{d}, {s}")
        elif G == 2:
            e(f"s_xor_b32 s{d}, s{self.sG}, {s}")
        else:
            e(f"s_add_u32 s{d}, s{self.sG}, {s}\ns_sub_u32 s{self.sC}, s{d}, {G}\ns_cmp_ge_u32 s{d}, {base + G}\ns_cselect_b32 s{d}, s{self.sC}, s{d}")
        if xm == "rev":
            e(f"s_sub_u32 s{self.sC}, 9, s{d}\ns_cmp_eq_u32 s{self.sSig}, 1\ns_cselect_b32 s{d}, s{self.sC}, s{d}")
        elif xm:
            e(f"s_mul_i32 s{self.sC}, s{self.sSig}, {xm}\ns_add_u32 s{d}, s{d}, s{self.sC}\ns_sub_u32 s{self.sC}, s{d}, 10\ns_cmp_ge_u32 s{d}, 10\ns_cselect_b32 s{d}, s{self.sC}, s{d}")
        e(f"s_lshl_b32 s{d}, s{d}, 7")

    def dma_list(self, s):
        e = self.e
        sb = (s % NSTAGE) * STAGE
        out = []
        for m in range(2):
            for j in range(2):
                def f(m=m, j=j):
                    srd = self.srdW1 if m == 0 else self.srdW3
                    e.vmop(f"buffer_load_dwordx4 v{self.vWo+j}, {sr(srd, 4)}, s{self.sSoW} offen offset:{m*2048 + j*1024} lds", ("d", s))
                out.append((f"s_add_u32 m0, s{self.sMw}, {sb}\ns_mul_i32 s{self.sSoW}, s{self.sSoX+s}, 1536" if m + j == 0 else None, f))
        for i in range(7):
            def f(i=i):
                if i == 6:
                    e("s_mov_b32 exec_hi, 0")
                e.vmop(f"buffer_load_dwordx4 v{self.vXo+i}, {sr(self.srdX, 4)}, s{self.sSoX+s} offen offset:{(i & 3)*1024} lds", ("d", s))
                if i == 6:
                    e("s_mov_b32 exec_hi, -1")
            out.append((f"s_add_u32 m0, s{self.sMx}, {sb + (i >> 2)*4096}" if i % 4 == 0 else None, f))
        return out

    def epi_ops(self, u):
        g = self.acc + u * 8
        up = g + 4
        T = self.tmp + (u & 1) * 4
        dst = self.outb + ((u >> 1) & 1) * 4 + (u & 1) * 2
        ops = []
        for i in range(4):
            ops.append((1, f"v_mul_f32 v{T+i}, s{self.sK}, v{g+i}"))
        for i in range(4):
            ops.append((2, f"v_exp_f32 v{T+i}, v{T+i}"))
        for i in range(4):
            ops.append((1, f"v_add_f32 v{T+i}, 1.0, v{T+i}"))
        for i in range(4):
            ops.append((2, f"v_rcp_f32 v{T+i}, v{T+i}"))
        for i in range(4):
            ops.append((1, f"v_mul_f32 v{g+i}, v{g+i}, v{T+i}"))
        for i in range(4):
            ops.append((1, f"v_mul_f32 v{g+i}, v{g+i}, v{up+i}"))
        ops.append((1, f"v_cvt_pk_bf16_f32 v{dst}, v{g}, v{g+1}"))
        ops.append((1, f"v_cvt_pk_bf16_f32 v{dst+1}, v{g+2}, v{g+3}"))
        return ops

    def phase1_main(self):
        e = self.e
        c = self.c
        D, E = c["D"], c["E"]
        R = D + 2
        t, L = self.vT, self.vLane
        first = self.dma_list(0) + self.dma_list(1) + self.dma_list(2)
        def coop(s0, n):
            def f():
                assert not c["xm"]
                e(f"s_mov_b64 exec, {(1 << (4*n)) - 1}\ns_mov_b32 s{self.sA}, {s0*196608}")
                e.vmop(f"buffer_load_dword v{self.vPoll}, v{self.vPw}, {sr(self.srdW1, 4)}, s{self.sA} offen", "cpf")
                e.vmop(f"buffer_load_dword v{self.vPoll}, v{self.vPw}, {sr(self.srdW3, 4)}, s{self.sA} offen offset:2048", "cpf")
                e(f"s_mov_b64 exec, {(1 << (9*n)) - 1}")
                e.vmop(f"buffer_load_dword v{self.vPoll}, v{self.vPx}, {sr(self.srdX, 4)}, 0 offen offset:{s0*128}", "cpf")
                e("s_mov_b64 exec, -1")
            return (None, f)
        for pos, s0, n in reversed(c["cpf"] or ()):
            first.insert(pos, coop(s0, n))
        npre = c["npre"] + len(c["cpf"] or ())
        assert npre <= 26
        def emit_now(items):
            for m0, f in items:
                if m0:
                    e(m0 + "\ns_nop 0")
                f()
        pre0 = c["pre0"]
        emit_now(first[:4])
        if c["klate"]:
            self.late_kernargs()
            if not c["stamps"]:
                e(f"s_memrealtime {sr(self.sT2, 2)}")
        if c["xlate"]:
            self.x_setup()
        emit_now(first[4:min(pre0, 11)])
        self.slab_off(1)
        emit_now(first[11:pre0])
        self.acc = e.v(NU * 8, 4)
        self.xr = e.v(R * 4, 4)
        NW = 5
        self.wf = e.v(8 * NW, 4)
        vXa, vWa = e.v(6), e.v(3)
        self.vHs = e.v()
        self.tmp = e.v(8, 4)
        self.outb = e.v(8, 4)
        self.sK, self.sHo = e.s(), e.s()
        self.srd_const(self.srdD, 256)
        e("s_waitcnt lgkmcnt(0)")
        self.publish_token()
        if c.get("tlbw"):
            e(f"v_lshlrev_b32 v{t}, 21, v{L}\ns_mov_b32 s{self.srdH+2}, {14 << 20}\ns_mov_b32 s{self.srdH+3}, 0x20000")
            e(f"s_mov_b32 s{self.srdOut+2}, {OUT_BYTES}\ns_mov_b32 s{self.srdOut+3}, 0x20000\ns_mov_b64 exec, 127")
            e.vmop(f"buffer_load_dword v{self.vPoll}, v{t}, {sr(self.srdH, 4)}, 0 offen", "tlbw")
            e.vmop(f"buffer_load_dword v{self.vPoll}, v{t}, {sr(self.srdOut, 4)}, 0 offen", "tlbw")
            e("s_mov_b64 exec, -1")
        self.slab_off(2)
        e(f"v_and_b32 v{t}, 15, v{L}\nv_bfe_u32 v{t+1}, v{L}, 1, 3\nv_lshrrev_b32 v{t+2}, 4, v{L}\nv_xor_b32 v{t+1}, v{t+1}, v{t+2}")
        e(f"v_lshlrev_b32 v{t}, 7, v{t}\nv_lshl_add_u32 v{vXa}, v{t+1}, 4, v{t}\nv_xor_b32 v{vXa+1}, 64, v{vXa}")
        self.tr_lane_addr(vWa, 4096, 1024, self.sWave)
        e(f"v_add_u32 v{vWa}, {XS}, v{vWa}")
        emit_now(first[pre0:npre])
        vq = list(first[npre:])
        mark = len(e.L)
        tsave = (e.t, e.tm, e.tv)
        self.slab_off(3)
        for st in (1, 2):
            e(f"v_add_u32 v{vXa+2*st}, {st*STAGE}, v{vXa}\nv_add_u32 v{vXa+2*st+1}, {st*STAGE}, v{vXa+1}")
        e(f"v_add_u32 v{vWa+1}, {STAGE}, v{vWa}\nv_add_u32 v{vWa+2}, {2*STAGE}, v{vWa}")
        self.late_srds()
        e("MARK1:")
        self.slab_off(4)
        e("MARK2:")
        for sx in range(5, 10):
            self.slab_off(sx)
        e("MARK3:")
        e(f"s_mov_b32 s{self.sK}, 0xbfb8aa3b")
        e(f"v_bfe_u32 v{t}, v{L}, 4, 1\nv_mul_u32_u24 v{self.vHs}, 49152, v{t}")
        e(f"v_bfe_u32 v{t}, v{L}, 5, 1\nv_lshl_add_u32 v{self.vHs}, v{t}, 8, v{self.vHs}")
        e(f"v_and_b32 v{t}, 15, v{L}\nv_lshl_add_u32 v{self.vHs}, v{t}, 4, v{self.vHs}")
        e(f"s_mul_i32 s{self.sA}, s{self.sRb}, {NU*49152}\ns_lshl_b32 s{self.sB}, s{self.sCh}, 11\ns_add_u32 s{self.sA}, s{self.sA}, s{self.sB}")
        e(f"s_lshl_b32 s{self.sB}, s{self.sWave}, 9\ns_add_u32 s{self.sA}, s{self.sA}, s{self.sB}")
        e(f"v_add_u32 v{self.vHs}, s{self.sA}, v{self.vHs}")
        e(f"s_lshr_b32 s{self.sA}, s{self.sXcd}, 1\ns_mul_i32 s{self.sB}, s{self.sA}, 6\ns_sub_u32 s{self.sB}, s{self.sCh}, s{self.sB}")
        e(f"s_lshl_b32 s{self.sC}, s{self.sRb}, 2\ns_add_u32 s{self.sA}, s{self.sA}, s{self.sC}\ns_lshl_b32 s{self.sA}, s{self.sA}, 10")
        e(f"s_mul_i32 s{self.sB}, s{self.sB}, {c['fstr']}")
        e(f"s_add_u32 s{self.sFl}, s{self.sA}, s{self.sB}")
        self.phase2_setup()
        e("MARK5:")
        lines = [l.strip() for l in e.L[mark:]]
        del e.L[mark:]
        e.t, e.tm, e.tv = tsave
        setup = []
        for l in lines:
            if l.split()[0] in ("s_cselect_b32", "s_addc_u32", "s_subb_u32", "s_nop", "v_cndmask_b32"):
                setup[-1] += "\n" + l
            else:
                setup.append(l)

        def setup_upto(m):
            while m in setup:
                it = setup.pop(0)
                if not it.startswith("MARK"):
                    e(it)

        seq = [(u, s, ks) for s in range(8) for ks in range(2) for u in range(NU)]
        k = c["tail"]
        seq += [(u, 8, ks) for ks in range(2) for u in range(k, NU)]
        for u in range(NU):
            if u < k:
                seq += [(u, 8, 0), (u, 8, 1)]
            seq += [(u, 9, 0), (u, 9, 1)]
        N = len(seq)
        first_use = {s: min(n for n in range(N) if seq[n][1] == s) for s in range(10)}
        last_use = {u: max(n for n in range(N) if seq[n][0] == u) for u in range(NU)}
        bpos = {s: first_use[s] - (D - E) for s in range(1, 10)}
        bpos[0] = 0
        if bpos[9] <= bpos[8] + 1:
            bpos[9] = bpos[8]

        def xread(n):
            u, s, ks = seq[n]
            e.ldsop(f"ds_read_b128 {vr(self.xr + (n % R)*4, 4)}, v{vXa + 2*(s % NSTAGE) + ks} offset:{u*2048}", ("x", n))

        def wbuf(s, ks):
            return self.wf + ((2 * s + ks) % NW) * 8

        def wread(s, ks, m, h):
            e.ldsop(f"ds_read_b64_tr_b16 {vr(wbuf(s, ks) + m*4 + h*2, 2)}, v{vWa + s % NSTAGE} offset:{ks*8192 + m*2048 + h*512}", ("w", s, ks))

        wneed, wlast = {}, {}
        for n, (u, s, ks) in enumerate(seq):
            wneed.setdefault((s, ks), n)
            wlast[(s, ks)] = n
        lq = []

        def validate(sx):
            for ks in range(2):
                for m in range(2):
                    for h in range(2):
                        lq.append((wneed[(sx, ks)], 0, ("w", sx, ks, m, h)))
            for n in range(N):
                if seq[n][1] == sx:
                    lq.append((n, 1, ("x", n)))
            lq.sort(key=lambda z: (z[0], z[1]))

        def lds_ok(it, n):
            if it[2][0] == "x":
                return it[0] <= n + R - 2
            if it[2][0] == "r":
                return True
            _, sx, ks, m, h = it[2]
            prev = 2 * sx + ks - NW
            return prev < 0 or wlast[(prev // 2, prev % 2)] < n

        def lds_issue(it):
            lq.remove(it)
            if it[2][0] == "x":
                xread(it[2][1])
            elif it[2][0] == "r":
                _, bb, h = it[2]
                e.ldsop(f"ds_read_b64_tr_b16 {vr(self.outb + 4*bb + 2*h, 2)}, v{vWa+2} offset:{RED0 - XS - 2*STAGE + bb*2048 + h*512}", ("r", bb))
            else:
                wread(*it[2][1:])

        for _ in range(c.get("pad", 0) // 4):
            e("s_nop 0")
        self.stamp()
        e.wait(vm=[("d", 0)])
        e("s_barrier")
        self.stamp()
        validate(0)
        while lq[0][0] < D:
            lds_issue(lq[0])
        epi = []
        st = dict(m0=False, vslot=0, tn=0, tv=32, epi=0)
        done_units = 0

        def run_events():
            while vq and vq[0][0] == "event":
                vq.pop(0)[1]()

        def vm_issue():
            run_events()
            m0, f = vq.pop(0)
            m0 = None if m0 and m0.startswith("hguard") else m0
            if m0 and not st["m0"]:
                e(m0 + "\ns_nop 0")
            f()
            st["m0"] = False
            st["tn"] = max(st["tn"], e.t - 12 - 24) + st["tv"]
            run_events()

        def gap(n, isA):
            used = None
            st["vslot"] += 1
            head = lq[0] if lq and lds_ok(lq[0], n) else None
            backlog = (sum(1 for m0, _ in vq if m0 and m0.startswith("s_")) > 3 and n < 52) or n < bpos[c["fastto"]]
            tv = c["tback"] if backlog else ((c["tdma"] if n < bpos[7] else c["tdma9"]) if about_dma(vq) else (c["tw2a"] if st["epi"] < c["ua"] else c["tw2"]))
            st["tv"] = tv
            vm_ready = vq and (vq[0][0] is None or st["m0"] or (vq[0][0].startswith("hguard") and st["epi"] >= int(vq[0][0][6:]))) and e.t >= st["tn"]
            if head and head[0] - n <= c["crit"]:
                lds_issue(head)
                used = "l"
                if backlog and vm_ready:
                    vm_issue()
                    used = "v"
            elif vm_ready:
                vm_issue()
                used = "v"
            else:
                cand = [it for it in lq[:24] if lds_ok(it, n) and (it[2][0] in "wr" or it[0] - n <= D + (1 if isA else 0))]
                if cand:
                    lds_issue(cand[0])
                    used = "l"
            if used != "v" and vq and vq[0][0] and vq[0][0].startswith("s_") and not st["m0"]:
                e(vq[0][0])
                st["m0"] = True
            elif used != "v" and setup:
                for _ in range(1 if used else 2):
                    if setup:
                        it = setup.pop(0)
                        if not it.startswith("MARK"):
                            e(it)

        def pop_epi(budget):
            while epi and budget > 0:
                it = epi.pop(0)
                if callable(it):
                    it()
                    budget -= 2
                elif it[0] == "mark":
                    st["epi"] = it[1]
                    if c["stamps"] == 3 and it[1] in (3, 6, 9):
                        self.stamp()
                else:
                    e(it[1])
                    budget -= it[0]

        def store_pair(pr):
            def f():
                ob = self.outb + (pr & 1) * 4
                e(f"s_mov_b32 s{self.sHo}, {pr*2*49152}\ns_nop 0")
                e(f"v_permlane16_swap_b32 v{ob}, v{ob+2}\nv_permlane16_swap_b32 v{ob+1}, v{ob+3}")
                if 2 * pr + 1 >= NU:
                    e("s_mov_b32 exec_lo, 0xffff\ns_mov_b32 exec_hi, 0xffff")
                e.vmop(f"buffer_store_dwordx4 {vr(ob, 4)}, v{self.vHs}, {sr(self.srdH, 4)}, s{self.sHo} offen {c['stf']}", ("hst", pr))
                if 2 * pr + 1 >= NU:
                    e("s_mov_b64 exec, -1")
            return f

        def flag_item(pr, stage):
            return lambda: self.publish_h(pr, stage)

        def unit_done(u):
            epi.extend(self.epi_ops(u))
            epi.append(("mark", u + 1))
            if u % 2 == 1 or u == NU - 1:
                epi.append(store_pair(u // 2))
            if u == c["fA"]:
                epi.append(flag_item(1, 1))
            if u == c["fB"]:
                epi.append(flag_item(3, 2))
            if u == NU - 1 and c["fC"] < 0:
                epi.append(flag_item(4, 3))

        def mfma(n, m):
            u, s, ks = seq[n]
            a = self.acc + u * 8 + m * 4
            cin = "0" if (s == 0 and ks == 0) else vr(a, 4)
            if not (c.get("no_mfma") and s >= 1):
                e(f"v_mfma_f32_16x16x32_bf16 {vr(a, 4)}, {vr(wbuf(s, ks) + m*4, 4)}, {vr(self.xr + (n % R)*4, 4)}, {cin}")

        tail0 = last_use[0]
        e.wait(lds=[("x", 0), ("w", 0, 0)])
        for n in range(N):
            u, s, ks = seq[n]
            intail = n > tail0 + 2
            mfma(n, 0)
            bars = [sb for sb in range(1, 10) if bpos[sb] == n]
            if bars:
                sb, s0 = max(bars), min(bars)
                setup_upto(f"MARK{s0}:")
                while len([x for x in e.vm if x == ("d", sb)]) < 11:
                    vm_issue()
                rel = s0 + 2 <= 9
                e.wait(vm=[("d", sb)], lds_all=rel)
                e("s_barrier")
                if c["stamps"] == 2 or sb in (1, 5, 8, 9):
                    self.stamp()
                for sx in bars:
                    validate(sx)
                held = [it for it in vq if getattr(it[1], "__name__", "") in ("w2", "chkp", "chk0", "chk2")]
                vq[:] = [it for it in vq if it not in held]
                if s0 == c["w2at"] and not c.get("p1only"):
                    held = self.seam_queue()
                if s0 == 5:
                    self.tok_probe()
                if s0 == 6:
                    self.tok_check("L_tok")
                if rel:
                    dl = self.dma_list(s0 + 2)
                    if s0 == c["w2at"] and not c.get("p1only"):
                        dl.insert(11 - c["r1d"], ("event", lambda: self.r1probe[1]()))
                    vq += dl
                vq += held
            else:
                gap(n, False)
                if intail:
                    pop_epi(c.get("epiB", 4))
            mfma(n, 1)
            if n + 1 < N:
                u2, s2, ks2 = seq[n + 1]
                while lq and lq[0][0] <= n + 1:
                    assert lds_ok(lq[0], n + 1)
                    lds_issue(lq[0])
                e.wait(lds=[("x", n + 1), ("w", s2, ks2)])
            gap(n, True)
            while done_units < NU and last_use[done_units] + 2 <= n:
                unit_done(done_units)
                done_units += 1
            if intail:
                pop_epi(c.get("epiA", 4))
        self.stamp()
        if c.get("p1only"):
            self.write_stamps()
            e("s_endpgm")
        e("s_nop 3")
        while done_units < NU:
            unit_done(done_units)
            done_units += 1
        while epi:
            pop_epi(2)
            if vq and e.t - e.tv >= c["tw2"] - 12 and not (vq[0][0] or "").startswith(f"hguard{st['epi'] + 1}"):
                vm_issue()
        self.stamp()
        k = 0
        while vq and not c.get("p1only"):
            if k == c["fC"]:
                flag_item(4, 3)()
            vm_issue()
            k += 1
        assert k > c["fC"] or c.get("p1only")
        self.stamp()

    def phase2_setup(self):
        e = self.e
        c = self.c
        t, L = self.vT, self.vLane
        if not hasattr(self, "sM2"):
            self.sM2, self.sNb, self.sSoP = e.s(), e.s(), e.s()
            self.sU, self.sFo, self.sRow = e.s(4), e.s(4), e.s(4)
            self.vP, self.vHl, self.vFr, self.vFh = e.v(), e.v(), e.v(), e.v()
            self.vRw, self.vRa, self.vOa = (e.v() for _ in range(3))
            self.sSoH = e.s()
            self.sT4o = e.s()
            self.sFr = e.s()
        if c["map2"] == "8x4":
            e(f"s_and_b32 s{self.sM2}, s{self.sXcd}, 3\ns_lshl_b32 s{self.sM2}, s{self.sM2}, 3\ns_and_b32 s{self.sA}, s{self.sSlot}, 7\ns_add_u32 s{self.sM2}, s{self.sM2}, s{self.sA}")
            e(f"s_lshr_b32 s{self.sNb}, s{self.sXcd}, 2\ns_lshl_b32 s{self.sNb}, s{self.sNb}, 2\ns_lshr_b32 s{self.sA}, s{self.sSlot}, 3\ns_add_u32 s{self.sNb}, s{self.sNb}, s{self.sA}")
        else:
            e(f"s_lshl_b32 s{self.sM2}, s{self.sXcd}, 2\ns_and_b32 s{self.sA}, s{self.sSlot}, 3\ns_add_u32 s{self.sM2}, s{self.sM2}, s{self.sA}")
            e(f"s_lshr_b32 s{self.sNb}, s{self.sSlot}, 2")
        e(f"s_mul_i32 s{self.sA}, s{self.sWave}, 12288\nv_lshlrev_b32 v{t}, 4, v{L}\nv_add_u32 v{self.vHl}, s{self.sA}, v{t}")
        e(f"s_mul_i32 s{self.sB}, s{self.sNb}, {4*49152}\nv_add_u32 v{self.vP}, s{self.sB}, v{self.vHl}")
        e(f"v_min_u32 v{t}, 3, v{L}\nv_mul_u32_u24 v{self.vFr}, {c['fstr']}, v{t}\ns_lshl_b32 s{self.sFr}, s{self.sWave}, 9\ns_add_u32 s{self.sFr}, s{self.sFr}, {FR_OFF}")
        e(f"v_min_u32 v{t}, 5, v{L}\nv_mul_u32_u24 v{self.vFh}, {c['fstr']}, v{t}")
        for j in range(4):
            e(f"s_add_u32 s{self.sA}, s{self.sM2}, {32*j}")
            e(f"s_mul_i32 s{self.sB}, s{self.sA}, 205\ns_lshr_b32 s{self.sB}, s{self.sB}, 11")
            e(f"s_mul_i32 s{self.sC}, s{self.sB}, 10\ns_sub_u32 s{self.sC}, s{self.sA}, s{self.sC}")
            if j == 3:
                e(f"s_cmp_ge_u32 s{self.sA}, 119\ns_cselect_b32 s{self.sU+3}, 12, 11\ns_cselect_b32 s{self.sRow+3}, 9, 0")
                e(f"s_sub_u32 s{self.sRow+3}, s{self.sA}, s{self.sRow+3}\ns_sub_u32 s{self.sRow+3}, s{self.sRow+3}, 110")
                e(f"s_cmp_ge_u32 s{self.sA}, 110\ns_cselect_b32 s{self.sB}, s{self.sU+3}, s{self.sB}\ns_cselect_b32 s{self.sC}, s{self.sRow+3}, s{self.sC}")
            e(f"s_lshl_b32 s{self.sFo+j}, s{self.sC}, 2\ns_add_u32 s{self.sFo+j}, s{self.sFo+j}, s{self.sWave}\ns_lshl_b32 s{self.sFo+j}, s{self.sFo+j}, 10")
            e(f"s_mul_i32 s{self.sC}, s{self.sC}, 13\ns_add_u32 s{self.sC}, s{self.sC}, s{self.sB}")
            e(f"s_mul_i32 s{self.sU+j}, s{self.sC}, {0 if c.get('hsame') else 49152}\ns_mul_i32 s{self.sRow+j}, s{self.sC}, 20480")
        e(f"v_lshrrev_b32 v{t}, 4, v{L}\nv_and_b32 v{t+1}, 15, v{L}\nv_mul_u32_u24 v{t+1}, {RST}, v{t+1}\nv_lshl_add_u32 v{t}, v{t}, 4, v{t+1}")
        e(f"s_mul_i32 s{self.sA}, s{self.sWave}, {SST}\nv_add_u32 v{self.vRw}, s{self.sA}, v{t}")
        e(f"v_min_u32 v{t}, 39, v{L}\nv_mul_u32_u24 v{t+1}, 26, v{t}\nv_lshrrev_b32 v{t+1}, 8, v{t+1}\nv_mul_u32_u24 v{t+2}, 10, v{t+1}\nv_sub_u32 v{t}, v{t}, v{t+2}")
        e(f"s_lshl_b32 s{self.sA}, s{self.sWave}, 2\nv_add_u32 v{t+1}, s{self.sA}, v{t+1}")
        e(f"v_mul_u32_u24 v{self.vRa}, {RST}, v{t+1}\nv_lshl_add_u32 v{self.vRa}, v{t}, 5, v{self.vRa}")
        e(f"v_mul_u32_u24 v{t+1}, 1280, v{t+1}\nv_lshl_add_u32 v{t+1}, v{t}, 4, v{t+1}")
        e(f"s_lshl_b32 s{self.sA}, s{self.sNb}, 7\ns_lshl_b32 s{self.sB}, s{self.sNb}, 5\ns_add_u32 s{self.sB}, s{self.sB}, 896")
        e(f"v_mov_b32 v{t+2}, s{self.sA}\nv_mov_b32 v{t+3}, s{self.sB}\nv_cmp_lt_u32 vcc, 7, v{t}\ns_nop 1\nv_cndmask_b32 v{t+2}, v{t+2}, v{t+3}, vcc")
        e(f"v_add_u32 v{self.vOa}, v{t+1}, v{t+2}")
        e(f"s_mul_i32 s{self.sT4o}, s{self.sNb}, {-3*49152}\ns_add_u32 s{self.sT4o}, s{self.sT4o}, {32*49152}")

    def w2p_list(self):
        e = self.e
        out = []
        for g in range(3):
            for tt in range(5):
                for k4 in range(4):
                    ks = g * 4 + k4

                    def w2(tt=tt, ks=ks, g=g, k4=k4):
                        assert g + 1 in self.rchecked and not self.c["grot"]
                        if k4 == 0:
                            e(f"s_add_u32 s{self.sSoP}, s{self.sT4o}, {g*4096}" if tt == 4 else f"s_mov_b32 s{self.sSoP}, {tt*49152 + g*4096}")
                        e.vmop(f"buffer_load_dwordx4 {ar((tt*12 + ks)*4, 4)}, v{self.vP}, {sr(self.srdP, 4)}, s{self.sSoP} offen offset:{k4*1024} {self.c['ldf']}", ("p", tt, ks))
                    out.append(w2)
        return out

    def hload(self, i):
        e = self.e
        j, ks = divmod(i, 12)
        assert j in self.checked, f"slot {j} loaded before its flags were checked"
        if ks % 4 == 0 and self.hprep != i:
            self.hprep_emit(i)
        e.vmop(f"buffer_load_dwordx4 {vr(self.hr + (i % self.c['HR'])*4, 4)}, v{self.vHl}, {sr(self.srdH, 4)}, s{self.sSoH} offen offset:{(ks & 3)*1024} {self.c['ldf']}", ("h", i))

    def hprep_emit(self, i):
        j, ks = divmod(i, 12)
        self.e(f"s_add_u32 s{self.sSoH}, s{self.sU+j}, {(ks >> 2)*4096}")
        self.hprep = i

    def pollh(self, j):
        self.polled.add(j)
        self.probe(self.sFo + j, j * FSTAGE, 6)

    def checkh(self, j, sfx=""):
        assert j in self.polled
        self.checked.add(j)
        self.probe_check(f"L_ph{j}{sfx}", self.vFh, self.sFo + j, j * FSTAGE, 6)

    def seam_queue(self, sfx=""):
        e = self.e
        c = self.c
        self.hr = self.acc

        self.polled = set()
        self.checked = set()
        self.rchecked = set()
        self.hprep = -1
        self.post = []

        def rpoll(k):
            def chkp():
                self.probe(self.sFr, (k - 1) * 2048, 4)

            def chk2():
                self.probe_check(f"L_pr{k}" + sfx, self.vFr, self.sFr, (k - 1) * 2048, 4)
                self.rchecked.add(k)
                if k == 1:
                    self.stamp()
            return ("event", chkp), ("event", chk2)
        self.r1probe, c1 = rpoll(1)
        q = [c1]
        w2l = [(None, f) for f in self.w2p_list()]
        p2, c2 = rpoll(2)
        p3, c3 = rpoll(3)
        rd, hf, pd = c["rpd"], c["hfirst"], c["pd0"]

        def chkp():
            self.pollh(0)
        ph0 = ("event", chkp)

        def chk0():
            if c["await"]:
                e("s_waitcnt lgkmcnt(0)")
                e.lds_done = len(e.lds)
            self.checkh(0, sfx)
            if not sfx:
                self.stamp()
        hl = []
        for i in range(c["PF"]):
            def w2(i=i):
                self.hload(i)
            hl.append((f"hguard{i // 2 + 1}", w2))
            if i + 1 == c["pollks"]:
                def chkp():
                    self.pollh(1)
                hl.append(("event", chkp))
        q += w2l[:20-rd] + [p2] + w2l[20-rd:20] + [c2]
        if c["g2late"]:
            hl = [it for it in hl if it[0] != "event"]
            q += w2l[20:40-pd] + [ph0] + w2l[40-pd:40] + [("event", chk0), p3] + hl[:c["g2late"]] + [c3]
            hl, rest = hl[c["g2late"]:], w2l[40:]

            def chkp():
                self.pollh(1)
            k = len(rest) - c["inp2"]
            self.post = [f for _, f in rest[k:]]
            rest = rest[:k]
            rest.insert(min(c["bpos"], len(rest)), ("event", chkp))
        else:
            assert hf >= 40
            q += w2l[20:40-rd] + [p3] + w2l[40-rd:40] + [c3] + w2l[40:hf] + [ph0] + w2l[hf:hf+pd] + [("event", chk0)]
            rest = w2l[hf+pd:]
        for it in hl:
            q.append(it)
            q += rest[:c["wper"]]
            rest = rest[c["wper"]:]
        return q + rest

    def phase2_main(self):
        e = self.e
        c = self.c
        HR, PF = c["HR"], c["PF"]
        assert PF < 12 and HR <= 16
        hr = self.hr
        acc = self.wf
        ra, rb, obase = self.xr, self.xr + 16, self.acc + 64
        self.vRwH, self.vRaH = self.xr + 36, self.xr + 37
        stores = []
        seq = [(j, ks) for j in range(4) for ks in range(12)]
        hload, pollh, checkh = self.hload, self.pollh, self.checkh
        hn = PF
        post = list(self.post)
        side = []

        def red_write(j, tt):
            e.ldsop(f"ds_write_b128 v{self.vRw if j & 1 else self.vRwH}, {vr(acc + (j & 1)*20 + tt*4, 4)} offset:{tt*TST}", ("rw", j))

        def reduce_items(j, last):
            ob = obase + 4 * j
            va = self.vRa if j & 1 else self.vRaH
            it = []
            for tt in range(4 if last else 0, 5):
                it.append(lambda tt=tt: red_write(j, tt))
                if not last and c["wspace"]:
                    it.append(None)
            if not last:
                it += [None] * 2

            def bar():
                e.wait(lds=[("rw", j)])
                e("s_barrier")
            it.append(bar)
            for src in range(4):
                for h, base in enumerate((ra, rb)):
                    def rd(src=src, h=h, base=base):
                        e.ldsop(f"ds_read_b128 {vr(base + src*4, 4)}, v{va} offset:{src*SST + h*16}", ("rr", j, h, src))
                    rd.isread = True
                    it.append(rd)
            if not last:
                it += [None] * 4
            for src in range(1, 4):
                for h, base in enumerate((ra, rb)):
                    for half in range(2):
                        def ad(h=h, base=base, src=src, half=half):
                            e.wait(lds=[("rr", j, h, src)])
                            for i2 in (2 * half, 2 * half + 1):
                                e(f"v_add_f32 v{base+i2}, v{base+i2}, v{base+src*4+i2}")
                        it.append(ad)

            def sto():
                e("s_mov_b32 exec_hi, 0xff")
                e.vmop(f"buffer_store_dwordx4 {vr(ob, 4)}, v{self.vOa}, {sr(self.srdOut, 4)}, s{self.sRow+j} offen {c['outflags'] if j < 3 else c.get('outlast', c['outflags'])}", ("o", j))
                e("s_mov_b32 exec_hi, -1")
            for h, base in enumerate((ra, rb)):
                def cvt(h=h, base=base):
                    e(f"v_cvt_pk_bf16_f32 v{ob+2*h}, v{base}, v{base+1}\nv_cvt_pk_bf16_f32 v{ob+2*h+1}, v{base+2}, v{base+3}")
                    if h:
                        stores.append(sto)
                it.append(cvt)
            return it
        e(f"v_add_u32 v{self.vRwH}, {RED0}, v{self.vRw}\nv_add_u32 v{self.vRaH}, {RED0}, v{self.vRa}")
        e.wait(vm=[("h", 0)] + [("p", tt, 0) for tt in range(5)])
        self.stamp()
        CH = c["chain"]
        published = False
        order = [(i0 + k, tt) for i0 in range(0, 44, CH) for tt in range(5) for k in range(CH)]
        for pos, (im, tm) in enumerate(order):
            i, tt = divmod(pos, 5)
            j, ks = seq[i]
            jm, km = seq[im]
            a = acc + (jm & 1) * 20 + tm * 4
            e.wait(vm=[("h", im), ("p", tm, km)])
            e(f"v_mfma_f32_16x16x32_bf16 {vr(a, 4)}, {ar((tm*12 + km)*4, 4)}, {vr(hr + (im % HR)*4, 4)}, {'0' if km == 0 else vr(a, 4)}")
            rt = (tt - c["gsh"]) % 5
            reads_left = any(it is not None and getattr(it, "isread", False) for it in side)
            if rt == 0 and hn < 48:
                hload(hn)
                hn += 1
            elif rt in (2, 3) and post:
                post.pop(0)()
            elif rt == 0 and stores:
                stores.pop(0)()
            elif rt == 3 and i == c["fD"]:
                self.publish_h(6, 4)
                published = True
            elif rt == 2 and hn < 48 and seq[hn][1] >= c['pollks'] and seq[hn][0] < 3 and seq[hn][0] + 1 not in self.polled and not reads_left:
                e.wait(lds_all=True)
                pollh(seq[hn][0] + 1)
            elif rt == 1 and hn < 48 and seq[hn][1] == 0:
                if c["await2"]:
                    e("s_waitcnt lgkmcnt(0)")
                    e.lds_done = len(e.lds)
                checkh(seq[hn][0])
            else:
                if side and ks >= 1:
                    it = side.pop(0)
                    if it:
                        it()
                if rt == 2 and hn < 48 and hn % 4 == 0 and self.hprep != hn:
                    self.hprep_emit(hn)
            if ks == 11 and tt == 4:
                if c["stamps"] == 3 and j < 3:
                    self.stamp()
                assert not side, len(side)
                side = reduce_items(j, False)
        assert HR >= PF + CH + 1 and published
        for tt in range(5):
            for i in range(44, 48):
                a = acc + 20 + tt * 4
                if tt == 0:
                    e.wait(vm=[("h", i)])
                e(f"v_mfma_f32_16x16x32_bf16 {vr(a, 4)}, {ar((tt*12 + i - 36)*4, 4)}, {vr(hr + (i % HR)*4, 4)}, {vr(a, 4)}")
                if tt >= 2 and i == 46:
                    red_write(3, tt - 2)
                elif side:
                    it = side.pop(0)
                    if it:
                        it()
                elif stores:
                    stores.pop(0)()
        assert not side
        self.stamp()
        e("s_nop 3")
        red_write(3, 3)
        e("s_nop 2")
        side = reduce_items(3, True)
        for k, it in enumerate(side):
            if it:
                it()
            if stores:
                stores.pop(0)()
        if c["stamps"] or c.get("ms") is not None:
            self.stamp()
            e.wait(vm_all=True)
            self.stamp()

    def repack(self):
        e = self.e
        c = self.c
        t, L = self.vT, self.vLane
        sR, sLo, sSt = e.s(), e.s(8), e.s(8)
        vD, vR, vS = e.v(4), e.v(4), e.v(4)
        F = e.v(32, 4)
        if c["klate"]:
            self.late_kernargs()
        self.srd_const(self.srdD, 256)
        e(f"s_lshl_b32 s{sR}, s{self.sXcd}, 1\ns_add_u32 s{sR}, s{sR}, s{self.sSlot}\ns_sub_u32 s{sR}, s{sR}, 30")
        e(f"s_lshr_b32 s{self.sB}, s{sR}, 2\ns_mul_i32 s{self.sB}, s{self.sB}, 384")
        e(f"v_lshrrev_b32 v{t}, 3, v{L}\nv_add_u32 v{t}, s{self.sB}, v{t}\nv_mul_u32_u24 v{vD}, 1280, v{t}")
        e(f"v_bfe_u32 v{t}, v{L}, 4, 1\nv_lshlrev_b32 v{t}, 1, v{t}")
        e(f"v_and_b32 v{t+1}, 7, v{L}\nv_xor_b32 v{t}, v{t}, v{t+1}\nv_lshl_add_u32 v{vD}, v{t}, 4, v{vD}")
        e(f"v_xor_b32 v{t}, 64, v{vD}")
        for p in range(1, 4):
            e(f"v_add_u32 v{vD+p}, {p*(10240 - 1024)}, v{vD if p % 2 == 0 else t}")
        e(f"s_and_b32 s{self.sFl}, s{sR}, 3\ns_lshl_b32 s{self.sFl}, s{self.sFl}, 2\ns_add_u32 s{self.sFl}, s{self.sFl}, s{self.sWave}")

        def offs(i):
            e(f"s_add_u32 s{self.sA}, s{self.sFl}, {16*i}\ns_mul_i32 s{self.sB}, s{self.sA}, 205\ns_lshr_b32 s{self.sB}, s{self.sB}, 11")
            e(f"s_mul_i32 s{self.sC}, s{self.sB}, 10\ns_sub_u32 s{self.sC}, s{self.sA}, s{self.sC}")
            e(f"s_mul_i32 s{sLo+i}, s{self.sB}, 40960\ns_lshl_b32 s{self.sSpin}, s{self.sC}, 7\ns_add_u32 s{sLo+i}, s{sLo+i}, s{self.sSpin}")
            e(f"s_mul_i32 s{sSt+i}, s{self.sC}, {4*49152}\ns_lshl_b32 s{self.sSpin}, s{self.sB}, 10\ns_add_u32 s{sSt+i}, s{sSt+i}, s{self.sSpin}")
            if i == 7:
                e(f"s_cmp_ge_u32 s{self.sA}, 120\ns_cselect_b32 s{sLo+i}, 0x40000000, s{sLo+i}\ns_cselect_b32 s{sSt+i}, 0x40000000, s{sSt+i}")
        AH = c["rah"]
        for i in range(AH):
            offs(i)
        sM = e.s()
        e(f"s_lshl_b32 s{sM}, s{self.sWave}, 15")
        self.after_kernarg("s")
        self.late_srds()

        def loads(i):
            e(f"s_add_u32 m0, s{sM}, {i*4096}\ns_nop 0")
            for p in range(4):
                e.vmop(f"buffer_load_dwordx4 v{vD+p}, {sr(self.srdW2, 4)}, s{sLo+i} offen offset:{p*1024} lds", ("rp", i))
        for i in range(AH):
            loads(i)
        for i in range(AH, 8):
            offs(i)
        self.tr_lane_addr(vR, 2048, 1024, None)
        e(f"v_add_u32 v{vR}, s{sM}, v{vR}")
        for sub in range(1, 4):
            e(f"v_xor_b32 v{vR+sub}, {sub*32}, v{vR}")
        e(f"s_lshr_b32 s{self.sB}, s{sR}, 2\ns_mul_i32 s{self.sB}, s{self.sB}, 12288\nv_lshlrev_b32 v{vS}, 4, v{L}\nv_add_u32 v{vS}, s{self.sB}, v{vS}")
        for sub in range(1, 4):
            e(f"v_add_u32 v{vS+sub}, {sub*49152}, v{vS}")
        e(f"s_lshr_b32 s{self.sA}, s{sR}, 2\ns_lshl_b32 s{self.sA}, s{self.sA}, 9\ns_and_b32 s{self.sFl}, s{sR}, 3\ns_mul_i32 s{self.sFl}, s{self.sFl}, {c['fstr']}")
        e(f"s_add_u32 s{self.sFl}, s{self.sFl}, s{self.sA}\ns_add_u32 s{self.sFl}, s{self.sFl}, {FR_OFF}")
        for i in range(8):
            fb = F + (i & 1) * 16
            e.wait(vm=[("rp", i)])
            for sub in range(4):
                for h in range(2):
                    e.ldsop(f"ds_read_b64_tr_b16 {vr(fb + 4*sub + 2*h, 2)}, v{vR+sub} offset:{i*4096 + h*512}", ("rr", i, sub))
            if i + AH < 8:
                loads(i + AH)
            for sub in range(4):
                e.wait(lds=[("rr", i, sub)])
                e.vmop(f"buffer_store_dwordx4 {vr(fb + 4*sub, 4)}, v{vS+sub}, {sr(self.srdP, 4)}, s{sSt+i} offen {c['stf']}", ("rst", i))
            if i == 1 + c["rlag"]:
                self.tok_probe()
            if i in (2 + c["rlag"], 4 + c["rlag"]):
                e.wait(vm=[("rst", i - c["rlag"])])
                if i == 2 + c["rlag"]:
                    e("s_waitcnt lgkmcnt(0)")
                    self.tok_check("L_tok2")
                e("s_barrier")
                self.publish(f"L_r{i}", self.sFl)
                e(f"s_add_u32 s{self.sFl}, s{self.sFl}, 2048")
                self.stamp()
        self.phase2_setup()
        e.wait(vm_all=True)
        e("s_barrier")
        self.publish("L_rlast", self.sFl)
        self.stamp()

    def build(self):
        e = self.e
        c = self.c
        head = HEADER + f"; @launch grid=(256,1,1) block=(256,1,1) lds={LDS_TOTAL}\n" + DOC
        self.prologue()
        mark = len(e.L)
        self.phase2_setup()
        del e.L[mark:]
        vmark, smark = e.vnext, e.snext
        self.sPr = (smark + 3) // 4 * 4
        e(f"s_cmp_ge_u32 s{self.sSlot}, 30\ns_cbranch_scc1 L_spare")
        self.phase1_setup()
        self.after_kernarg("w")
        self.srd_adj(self.srdW3, -2048)
        self.phase1_main()
        e("; ---- phase 2")
        e("L_join:")
        if not c.get("p1only"):
            self.phase2_main()
            self.write_stamps()
        e(f"L_end_{KN}:\ns_endpgm")
        e("; ---- w2 repack role, then the same lead-in as the phase-1 workgroups")
        e("L_spare:")
        self.in_spare = True
        e.reset_counts()
        if c.get("p1only") == 2:
            e("s_endpgm")
        e.vnext, e.snext = vmark, smark
        self.repack()
        if c.get("p1only"):
            e("s_endpgm")
        e(f"s_mov_b32 s{self.sFl}, {FR_OFF + 16384}")
        sq = self.seam_queue("s")
        if c["l2g"]:
            evs = [it for it in sq if it[0] == "event" and it[1].__name__ in ("chkp", "chk2")][:5]
            self.r1probe[1]()
            for it in evs:
                it[1]()
                sq.remove(it)
            t, L = self.vT, self.vLane
            e(f"s_lshr_b32 s{self.sA}, s{self.sXcd}, 2\ns_lshl_b32 s{self.sA}, s{self.sA}, 2\ns_sub_u32 s{self.sB}, s{self.sSlot}, 30\ns_lshl_b32 s{self.sB}, s{self.sB}, 1")
            e(f"s_add_u32 s{self.sA}, s{self.sA}, s{self.sB}\nv_lshrrev_b32 v{t}, 5, v{L}\nv_add_u32 v{t}, s{self.sA}, v{t}")
            e(f"v_and_b32 v{t+1}, 31, v{L}\nv_lshlrev_b32 v{t+1}, 7, v{t+1}\ns_mul_i32 s{self.sA}, s{self.sWave}, 12288\nv_add_u32 v{t+1}, s{self.sA}, v{t+1}")
            e(f"v_mul_u32_u24 v{t+2}, 49152, v{t}\nv_lshl_add_u32 v{t}, v{t+2}, 2, v{t+1}\nv_add_u32 v{t+1}, v{t+2}, v{t+1}")
            for g in c["l2g"]:
                for tt in range(5):
                    e(f"s_mov_b32 s{self.sA}, {(tt if tt < 4 else 32)*49152 + g*4096}")
                    e(f"buffer_load_dword v{self.vPoll}, v{t if tt < 4 else t+1}, {sr(self.srdP, 4)}, s{self.sA} offen {c['ldf']}")
        else:
            self.r1probe[1]()
        for _, f in sq:
            f()
        e("s_waitcnt vmcnt(0)")
        e("s_branch L_join")
        e("\n".join(self.cold))
        e("L_codeend:")
        body = "\n".join(e.L)
        kd = f""".section .rodata,"a"
.p2align 6
.amdhsa_kernel {KN}
  .amdhsa_next_free_vgpr 512
  .amdhsa_next_free_sgpr 102
  .amdhsa_accum_offset 256
  .amdhsa_group_segment_fixed_size 0
  .amdhsa_kernarg_size 56
  .amdhsa_user_sgpr_count 2
  .amdhsa_user_sgpr_kernarg_segment_ptr 1
  .amdhsa_system_sgpr_workgroup_id_x 1
  .amdhsa_float_denorm_mode_32 3
.end_amdhsa_kernel
"""
        return head + '.amdgcn_target "amdgcn-amd-amdhsa--gfx950"\n.text\n' + body + "\n" + kd


def about_dma(vq):
    return bool(vq) and getattr(vq[0][1], "__name__", "") != "w2"


def parse_kw(args):
    kw = {}
    for a in args:
        k, v = a.split("=", 1)
        try:
            v = eval(v)
        except Exception:
            pass
        kw[k] = v
    return kw


if __name__ == "__main__":
    out = sys.argv[1]
    open(out, "w").write(Gen(**parse_kw(sys.argv[2:])).build())
```
